```python
import torch

def _softmax(x, axis=-1):
    return torch.softmax(x, dim=axis)
def _gelu(x):
    return torch.nn.functional.gelu(x, approximate="tanh")
def _silu(x):
    return torch.nn.functional.silu(x)
def _sigmoid(x):
    return torch.sigmoid(x)
def _layernorm(x, axis=-1, eps=1e-5):
    m = x.mean(dim=axis, keepdim=True)
    v = x.var(dim=axis, keepdim=True, unbiased=False)
    return (x - m) / torch.sqrt(v + eps)
def _scatter_add(tgt, idx, src, axis=0):
    return tgt.clone().index_add_(axis, idx, src)
def _segment_sum(src, seg, n):
    out = torch.zeros((n,) + src.shape[1:], dtype=src.dtype)
    return out.index_add_(0, seg, src)
def _pad(x, pw):
    flat = tuple(v for pair in reversed(pw) for v in pair)
    return torch.nn.functional.pad(x, flat)

kernel_name = 'gated_mix__ssm_conv_s5__linear_attn_block__prompt'

def setup_inputs():

    _w = (lambda a: (lambda t: t.to(torch.bfloat16) if t.is_floating_point() else t)(torch.as_tensor(a)))
    def _A_setup():
        B, S, D = 1, 2048, 640
        P = D
        Lambda_re = -0.5 * (lambda _x: torch.exp(torch.as_tensor(_x)))((lambda *s: torch.randn(*s, dtype=torch.bfloat16) * 0.2)(P))
        Lambda_im = (lambda *s: torch.randn(*s, dtype=torch.bfloat16) * 0.8)(P) * 1.0
        B_re = (lambda *s: torch.randn(*s, dtype=torch.bfloat16) * 0.4)(P, D) * (D ** -0.5)
        B_im = (lambda *s: torch.randn(*s, dtype=torch.bfloat16) * 0.4)(P, D) * (D ** -0.5)
        C_re = (lambda *s: torch.randn(*s, dtype=torch.bfloat16) * 0.4)(D, P) * (P ** -0.5)
        C_im = (lambda *s: torch.randn(*s, dtype=torch.bfloat16) * 0.4)(D, P) * (P ** -0.5)
        log_dt = (lambda *s: torch.randn(*s, dtype=torch.bfloat16) * 0.2)(P) * 0.3 - 2.0
        Dskip = (lambda *s: torch.randn(*s, dtype=torch.bfloat16) * 0.05)(D)
        return {
            "x": _w((lambda *s: torch.randn(*s, dtype=torch.bfloat16) * 0.05)(B, S, D)),
            "Lambda_re": _w(Lambda_re),
            "Lambda_im": _w(Lambda_im),
            "B_re": _w(B_re),
            "B_im": _w(B_im),
            "C_re": _w(C_re),
            "C_im": _w(C_im),
            "log_dt": _w(log_dt),
            "Dskip": _w(Dskip),
        }
    _A_in = _A_setup()

    def _B_setup():
        B, S, D = 1, 2048, 640
        return {
            "x": _w((lambda *s: torch.randn(*s, dtype=torch.bfloat16) * 0.05)(B, S, D)),
            "wqkv": _w((lambda *s: torch.randn(*s, dtype=torch.bfloat16) * 0.8)(D, 3 * D)),
            "wo": _w((lambda *s: torch.randn(*s, dtype=torch.bfloat16) * 0.05)(D, D)),
        }
    _B_in = _B_setup()

    return {
        "A_x": _A_in["x"],
        "A_Lambda_re": _A_in["Lambda_re"],
        "A_Lambda_im": _A_in["Lambda_im"],
        "A_B_re": _A_in["B_re"],
        "A_B_im": _A_in["B_im"],
        "A_C_re": _A_in["C_re"],
        "A_C_im": _A_in["C_im"],
        "A_log_dt": _A_in["log_dt"],
        "A_Dskip": _A_in["Dskip"],
        "B_x": _B_in["x"],
        "B_wqkv": _B_in["wqkv"],
        "B_wo": _B_in["wo"],
        "gate_w": _w((lambda *s: torch.randn(*s, dtype=torch.bfloat16) * 0.05)(640) * 16.0),
    }

def reference(A_x, A_Lambda_re, A_Lambda_im, A_B_re, A_B_im, A_C_re, A_C_im, A_log_dt, A_Dskip, B_x, B_wqkv, B_wo, gate_w):
    def _A_ref(x, Lambda_re, Lambda_im, B_re, B_im, C_re, C_im, log_dt, Dskip):
        Bsz, L, H = x.shape
        Lam = Lambda_re + 1j * Lambda_im
        Bmat = B_re + 1j * B_im
        Cmat = C_re + 1j * C_im
        dt = torch.exp(log_dt)
        Lam_bar = torch.exp(dt * Lam)
        B_bar = ((Lam_bar - 1.0) / Lam)[:, None] * Bmat
        Bu = torch.einsum("bld,pd->blp", x + 0j, B_bar)
        h = torch.zeros_like(Bu[:, 0, :])
        hs = []
        for t in range(L):
            h = Lam_bar[None, :] * h + Bu[:, t, :]
            hs.append(h)
        hseq = torch.stack(hs, 1)
        y = 2.0 * torch.einsum("blp,dp->bld", hseq, Cmat).real + x * Dskip[None, None, :]
        return y

    def _B_ref(x, wqkv, wo):
        B, S, D = x.shape
        H = 32; Dh = D // H
        qkv = (lambda x, *d: x.permute(*d))((x @ wqkv).reshape(B, S, 3, H, Dh), 2, 0, 3, 1, 4)
        q, k, v = qkv[0], qkv[1], qkv[2]
        phi = lambda t: torch.where(t > 0, t + 1, torch.exp(t)) + 1e-6
        pq, pk = phi(q), phi(k)
        kv = torch.einsum("bhsd,bhse->bhde", pk, v)
        z = torch.einsum("bhsd->bhd", pk)
        num = torch.einsum("bhqd,bhde->bhqe", pq, kv)
        den = torch.einsum("bhqd,bhd->bhq", pq, z)[..., None] + 1e-6
        o = num / den
        return (lambda x, *d: x.permute(*d))(o, 0, 2, 1, 3).reshape(B, S, D) @ wo

    x = A_x
    g = _sigmoid((x * gate_w).sum(-1, keepdims=True))
    a = _A_ref(x, A_Lambda_re, A_Lambda_im, A_B_re, A_B_im, A_C_re, A_C_im, A_log_dt, A_Dskip)
    b = _B_ref(x, B_wqkv, B_wo)
    return g * a + (1 - g) * b
```

```python
NAME = "gated_mix__ssm_conv_s5__linear_attn_block__prompt"
IN_BYTES = [2621440, 1280, 1280, 819200, 819200, 819200, 819200, 1280, 1280, 2621440, 2457600, 819200, 1280]
OUT_BYTES = 5242880
WS_BYTES = 268435456
STAMP_OFF = 200 << 20

class Asm:
    def __init__(self):
        self.lines = []
        self.nlabel = 0
    def __call__(self, s):
        for l in s.split("\n"):
            l = l.strip()
            if l:
                self.lines.append(("" if l.endswith(":") else "    ") + l)
    def label(self, base="L"):
        self.nlabel += 1
        return "%s_%d" % (base, self.nlabel)
    def text(self):
        return "\n".join(self.lines) + "\n"

def header(launches):
    out = []
    if len(launches) == 1 and launches[0][0] == NAME + "_kernel":
        k, g, b, lds = launches[0]
        out.append("; @launch grid=(%d,1,1) block=(%d,1,1) lds=%d" % (g, b, lds))
    else:
        for k, g, b, lds in launches:
            out.append("; @launch kernel=%s grid=(%d,1,1) block=(%d,1,1) lds=%d" % (k, g, b, lds))
    out.append('.amdgcn_target "amdgcn-amd-amdhsa--gfx950"')
    out.append(".text")
    return "\n".join(out) + "\n"

def kernel_begin(name):
    return ".globl %s\n.p2align 8\n.type %s,@function\n%s:\n" % (name, name, name)

def descriptor(name, vgpr, sgpr=102, accum=None):
    if accum is None:
        accum = min(256, (vgpr + 3) // 4 * 4)
    return """.p2align 6
.amdhsa_kernel %s
  .amdhsa_next_free_vgpr %d
  .amdhsa_next_free_sgpr %d
  .amdhsa_accum_offset %d
  .amdhsa_group_segment_fixed_size 0
  .amdhsa_kernarg_size 128
  .amdhsa_user_sgpr_count 2
  .amdhsa_user_sgpr_kernarg_segment_ptr 1
  .amdhsa_system_sgpr_workgroup_id_x 1
  .amdhsa_float_denorm_mode_32 3
  .amdhsa_float_denorm_mode_16_64 3
.end_amdhsa_kernel
""" % (name, vgpr, sgpr, accum)

def rodata():
    return '.section .rodata,"a"\n'
```

```python
import re

TRANS = ("v_exp_f32", "v_log_f32", "v_rcp_f32", "v_rsq_f32", "v_sqrt_f32", "v_sin_f32", "v_cos_f32")

class I:
    __slots__ = ("text", "kind", "tag", "raw")
    def __init__(self, text, kind=None, tag=None, raw=False):
        self.text = text.strip()
        self.tag = tag
        self.raw = raw
        self.kind = kind or classify(self.text)
    def __repr__(self):
        return self.text

def classify(t):
    if t.endswith(":"): return "label"
    if t.startswith("."): return "dir"
    if t.startswith(";"): return "dir"
    m = t.split()[0]
    if m.startswith("v_mfma"): return "mfma"
    if m.startswith("v_"): return "valu"
    if m.startswith("ds_"): return "ds"
    if m.startswith("buffer_") or m.startswith("global_"): return "vmem"
    if m.startswith("s_load") or m.startswith("s_buffer_load") or m.startswith("s_memrealtime") or m.startswith("s_memtime"): return "smem"
    if m == "s_waitcnt": return "wait"
    if m == "s_nop": return "nop"
    if m == "s_barrier": return "barrier"
    if m.startswith("s_cbranch") or m == "s_branch" or m == "s_endpgm" or m == "s_setpc_b64": return "branch"
    if m.startswith("s_"): return "salu"
    raise ValueError("cannot classify " + t)

def WV(tag): return I("WAITVM", "waitvm", tag)
def WL(tag): return I("WAITLGKM", "waitlgkm", tag)

class L(list):
    def __call__(self, s, tag=None, raw=False):
        for l in s.split("\n"):
            l = l.strip()
            if l:
                self.append(I(l, tag=tag, raw=raw))
        return self
    def wv(self, tag): self.append(WV(tag)); return self
    def wl(self, tag): self.append(WL(tag)); return self

def resolve_waits(ins):
    out = []
    vm = []; lg = []
    vm_done = 0; lg_done = 0
    smem_pending = False
    for i in ins:
        if i.raw:
            out.append(i); continue
        if i.kind == "vmem": vm.append(i.tag)
        elif i.kind == "ds": lg.append(i.tag)
        elif i.kind == "smem": smem_pending = True
        elif i.kind == "wait":
            m = re.search(r"vmcnt\((\d+)\)", i.text)
            if m: vm_done = max(vm_done, len(vm) - int(m.group(1)))
            m = re.search(r"lgkmcnt\((\d+)\)", i.text)
            if m:
                if int(m.group(1)) == 0: smem_pending = False
                if not smem_pending: lg_done = max(lg_done, len(lg) - int(m.group(1)))
        if i.kind in ("waitvm", "waitlgkm"):
            lst = vm if i.kind == "waitvm" else lg
            idx = [k for k, t in enumerate(lst) if t == i.tag]
            assert idx, "wait on unknown tag %s" % i.tag
            need = idx[-1] + 1
            if i.kind == "waitvm":
                if need <= vm_done: continue
                n = min(63, len(vm) - need); vm_done = len(vm) - n
                txt = "vmcnt(%d)" % n
            else:
                if need <= lg_done: continue
                n = min(15, len(lg) - need)
                if smem_pending: n = 0; smem_pending = False
                lg_done = len(lg) - n
                txt = "lgkmcnt(%d)" % n
            if out and out[-1].kind == "wait" and not out[-1].raw and txt.split("(")[0] not in out[-1].text:
                out[-1] = I(out[-1].text + " " + txt)
            else:
                out.append(I("s_waitcnt " + txt))
            continue
        out.append(i)
    return out

_reg = re.compile(r"^-?(?:\|)?(?:abs\()?([vas])(?:(\d+)|\[(\d+):(\d+)\])\)?(?:\|)?$")
def regs(op):
    op = op.strip()
    if op in ("vcc", "exec", "m0", "scc"): return {op}
    if op in ("vcc_lo", "vcc_hi"): return {"vcc"}
    m = _reg.match(op)
    if not m: return set()
    c = m.group(1)
    if m.group(2) is not None: return {c + m.group(2)}
    return {c + str(k) for k in range(int(m.group(3)), int(m.group(4)) + 1)}

def operands(t):
    parts = t.split(None, 1)
    if len(parts) < 2: return []
    rest = parts[1].split(";")[0]
    ops = [o.strip() for o in rest.split(",")]
    res = []
    for o in ops:
        res.append(o.split()[0] if o else o)
    return res

def rw(i):
    t = i.text; m = t.split()[0]; ops = operands(t)
    W = set(); R = set(); info = {}
    if i.kind == "mfma":
        W = regs(ops[0]); info["A"] = regs(ops[1]); info["B"] = regs(ops[2]); info["C"] = regs(ops[3])
        R = info["A"] | info["B"] | info["C"]
        info["passes"] = 8 if "32x32" in m else 4
    elif i.kind == "valu":
        W = regs(ops[0])
        for o in ops[1:]: R |= regs(o)
        if m.startswith(("v_fmac", "v_mac", "v_dot2c", "v_pk_fmac", "v_writelane")): R |= W
        if "permlane" in m and "swap" in m:
            W = regs(ops[0]) | regs(ops[1]); R = set(W); info["permlane"] = True
        if m.startswith(("v_add_co", "v_sub_co", "v_addc_co", "v_subb_co")):
            W |= regs(ops[1]); R = set()
            for o in ops[2:]: R |= regs(o)
        if m.startswith("v_cndmask") and len(ops) == 3: R.add("vcc")
        if m.startswith("v_cmpx"): W.add("exec")
        if "row_" in t or "quad_perm" in t or "_dpp" in m:
            info["dpp"] = regs(ops[1])
            if "bound_ctrl" not in t: R |= regs(ops[0])
        if m.split("_e")[0] in TRANS or m in TRANS: info["trans"] = True
        if m.startswith(("v_readfirstlane", "v_readlane")): info["readlane"] = True
    elif i.kind == "ds":
        if m.startswith(("ds_read", "ds_bpermute", "ds_swizzle", "ds_permute")):
            W = regs(ops[0])
            for o in ops[1:]: R |= regs(o)
        else:
            for o in ops: R |= regs(o)
    elif i.kind == "vmem":
        lds = re.search(r"\blds\b", t) is not None
        if "load" in m and not lds:
            W = regs(ops[0])
            for o in ops[1:]: R |= regs(o)
            if "d16" in m: R |= W
        else:
            for o in ops: R |= regs(o)
            if lds: R.add("m0"); info["ldsdma"] = True
            if "store" in m and ("x3" in m or "x4" in m):
                info["widestore"] = regs(ops[0]) if m.startswith("buffer") else regs(ops[1])
    elif i.kind in ("salu", "smem"):
        if m.startswith(("s_cmp", "s_bitcmp", "s_setprio", "s_sleep")):
            for o in ops: R |= regs(o)
        else:
            if ops: W = regs(ops[0])
            for o in ops[1:]: R |= regs(o)
            if "saveexec" in m: W.add("exec")
    return W, R, info

def isv(s): return {r for r in s if r[0] in "va" and r not in ("vcc",)}
def iss(s): return {r for r in s if r[0] == "s" or r in ("vcc",)}

def hazards(ins, verbose=False):
    out = []
    hist = []
    nins = 0
    for i in ins:
        if i.kind in ("label", "dir"):
            out.append(i); continue
        W, R, info = rw(i)
        need = 0
        dist = 0
        for (p, pW, pR, pinfo, st) in reversed(hist):
            if dist >= 20: break
            req = 0
            if p.kind == "valu":
                vW = isv(pW); sW = iss(pW)
                if i.kind == "mfma" and vW & R: req = max(req, 2)
                if i.kind == "valu":
                    if info.get("dpp") and vW & info["dpp"]: req = max(req, 2)
                    if info.get("permlane") and vW & R: req = max(req, 2)
                    if info.get("readlane") and vW & R: req = max(req, 1)
                    if pinfo.get("trans") and vW & R: req = max(req, 1)
                    if sW & R: req = max(req, 4 if info.get("readlane") else 2)
                    if "exec" in pW and (info.get("dpp")): req = max(req, 5)
                    if "exec" in pW and (info.get("readlane") or info.get("permlane")): req = max(req, 4)
                if i.kind == "mfma" and "exec" in pW: req = max(req, 4)
                if i.kind == "vmem" and sW & R: req = max(req, 5)
                if i.kind in ("salu", "branch") and sW & R: req = max(req, 1)
                if i.kind == "branch" and "vcc" in pW and "vcc" in i.text: req = max(req, 1)
            elif p.kind == "mfma":
                n = pinfo["passes"]
                full = {4: 8, 8: 12}[n]; ovl = {4: 6, 8: 10}[n]; war = {4: 3, 8: 7}[n]
                if i.kind == "mfma":
                    if pW & (info["A"] | info["B"]): req = max(req, full)
                    if pW & info["C"] and not (pW == info["C"] and info["passes"] == n): req = max(req, ovl)
                    if pW & W and not (pW == info["C"]): req = max(req, ovl)
                elif i.kind == "valu":
                    if pW & (R | W): req = max(req, full)
                    if pinfo["C"] & W: req = max(req, war)
                elif i.kind in ("ds", "vmem"):
                    if pW & (R | W): req = max(req, full)
            elif p.kind == "salu":
                if "m0" in pW and info.get("ldsdma"): req = max(req, 1)
            elif p.kind == "vmem":
                if pinfo.get("widestore") and pinfo["widestore"] & W: req = max(req, 2 if i.kind == "valu" else 1)
            elif p.kind == "ds":
                if p.text.startswith(("ds_write_b128", "ds_write_b96")) and (pR & W) and i.kind == "valu": req = max(req, 1)
            need = max(need, req - dist)
            dist += st
        if need > 0:
            nop = I("s_nop %d" % (need - 1), raw=i.raw)
            out.append(nop); hist.append((nop, set(), set(), {}, need)); nins += 1
        out.append(i)
        st = 1
        if i.kind == "nop": st = int(i.text.split()[1]) + 1
        hist.append((i, W, R, info, st))
        if len(hist) > 40: hist = hist[-30:]
    if verbose: print("hazard nops inserted:", nins)
    return out

def interleave(main, side, every=1, per=1, start=0):
    out = L(); k = 0; c = 0
    for i in main:
        out.append(i)
        if i.kind == "mfma":
            c += 1
            if c > start and (c - start) % every == 0:
                n = 0
                while k < len(side) and n < per:
                    out.append(side[k])
                    if side[k].kind not in ("waitvm", "waitlgkm", "label", "dir"): n += 1
                    k += 1
    out.extend(side[k:])
    return out

def render(ins):
    return "\n".join((i.text if i.kind in ("label",) else "    " + i.text) for i in ins) + "\n"
```

```python
import sys
from asmgen import NAME, header, kernel_begin, descriptor, rodata, STAMP_OFF
from ir import *

SLOT = 20480
PRIV = 81920; PRIV_SZ = 18432
P_HT = 10240; P_KVX = 16640
MISC = 155648
M_G = MISC; M_S = MISC + 512; M_GATE = MISC + 512; M_PARAM = MISC + 2560
W_CNTS = 0; W_CNTK = 4096; W_CNTH = 8192; W_CNTO = 12288
W_AGG = 0x10000; W_KVP = 0x40000; W_A2 = 0x200000
TSTR = 61440
LOG2E = 0x3fb8aa3b
EPS = 0x358637bd
NEG_EPS_LOG2E = 0xb5c1a2d5
import struct
def f2u(x): return struct.unpack("<I", struct.pack("<f", x))[0]
NEG_EPS_LOG2E = f2u(-1e-6 * 1.4426950408889634)

sX, sB, sW, sC, sWO, sWS, sOUT, sDBG, sT, sAG = 48, 52, 56, 60, 64, 68, 72, 76, 80, 84
def srd(b): return "s[%d:%d]" % (b, b + 3)
s_w, s_i, s_j, s_ct, s_rb = 3, 4, 5, 6, 7
s_priv, s_wm0, s_bm0 = 8, 9, 10
s_t0, s_t1, s_t2, s_t3 = 11, 12, 13, 14
s_so = 15
s_a2p = 88
s_am = 90
s_log2e, s_eps, s_nel = 94, 95, 96
s_mask = 98
s_spin = 97
v_lane, v_n, v_q = 1, 2, 3
vXA = [4, 5]
vBA = [6, 7, 8, 9]
vGA = 10
vDX = [11, 12, 13, 14]
vDW = [15, 16, 17, 18, 19]
v_l16 = 20
v_col4 = 21
vA8, vB8, vA128, vB128 = 22, 23, 24, 25
v_poll = 26
v_one = 27
vt = [28, 29, 30, 31]
U0 = 32; GA0 = 72; KV0 = 80; Q0 = 120; FB0 = 144; PR0 = 192; S0 = 212; T0 = 228

def vr(b, n=4): return "v[%d:%d]" % (b, b + n - 1)
def ar(b, n=4): return "a[%d:%d]" % (b, b + n - 1)
DPP = "row_ror:8 row_mask:0xf bank_mask:0xf"

class Gen:
    def __init__(self, stamps=False):
        self.stamps = stamps
        self.slow = L()
        self.nst = 0
        self.nl = 0
    def label(self, b):
        self.nl += 1
        return "L_%s_%d" % (b, self.nl)
    def stamp(self, a):
        if self.stamps:
            k = self.nst; self.nst += 1
            a("s_memrealtime s[%d:%d]" % (16 + 2 * k, 17 + 2 * k))
            a("s_waitcnt lgkmcnt(0)")

    def poll_issue(self, a, srdb, soff_expr_reg, tag):
        a("buffer_load_dword v%d, off, %s, s%d sc1" % (v_poll, srd(srdb), soff_expr_reg), tag=tag)
    def poll_check(self, a, srdb, soff_reg, tag, target):
        slow = self.label("slow"); back = self.label("back")
        a.wv(tag)
        a("v_readfirstlane_b32 s%d, v%d" % (s_t3, v_poll))
        a("s_cmp_ge_u32 s%d, %d" % (s_t3, target))
        a("s_cbranch_scc0 %s" % slow)
        a(back + ":")
        s = self.slow
        s(slow + ":", raw=True)
        s("s_sub_u32 s%d, s%d, 1\ns_cmp_eq_u32 s%d, 0\ns_cbranch_scc1 L_end" % (s_spin, s_spin, s_spin), raw=True)
        s("buffer_load_dword v%d, off, %s, s%d sc1" % (v_poll, srd(srdb), soff_reg), raw=True)
        s("s_waitcnt vmcnt(0)\nv_readfirstlane_b32 s%d, v%d\ns_nop 1\ns_cmp_ge_u32 s%d, %d" % (s_t3, v_poll, s_t3, target), raw=True)
        s("s_cbranch_scc0 %s\ns_branch %s" % (slow, back), raw=True)

    def dma_x(self, sg):
        a = L()
        a("s_add_u32 m0, s%d, %d" % (s_priv, 4096 * (sg & 3)))
        a("s_mov_b32 s%d, %d" % (s_so, 128 * sg))
        for ph in range(4):
            a("buffer_load_dwordx4 v%d, %s, s%d offen offset:%d lds" % (vDX[ph], srd(sX), s_so, 1024 * ph), tag="x%d" % sg)
        return a
    def dma_w(self, st):
        a = L()
        slot = st % 4
        if st < 5: base, sr, so = s_bm0, sB, 256 * st
        elif st < 10: base, sr, so = s_wm0, sW, (st - 5) * 128 * 3840
        else: base, sr, so = s_wm0, sW, (st - 10) * 256 * 3840
        a("s_add_u32 m0, s%d, %d" % (base, slot * SLOT))
        a("s_mov_b32 s%d, %d" % (s_so, so))
        for ph in range(4):
            a("buffer_load_dwordx4 v%d, %s, s%d offen offset:%d lds" % (vDW[ph], srd(sr), s_so, 1024 * ph), tag="w%d" % st)
        a("s_add_u32 m0, s%d, %d" % (base, slot * SLOT + 4096))
        a("buffer_load_dwordx4 v%d, %s, s%d offen lds" % (vDW[4], srd(sr), s_so), tag="w%d" % st)
        return a
    def calc_dw(self, kind):
        a = L()
        t0, t1, t2, t3 = vt
        for ph in range(5):
            imm = 1024 * ph if ph < 4 else 0
            d = vDW[ph]
            a("v_add_u32 v%d, %d, v%d" % (t0, 64 * ph, v_lane))
            a("v_mul_u32_u24 v%d, 6554, v%d" % (t1, t0))
            a("v_lshrrev_b32 v%d, 16, v%d" % (t1, t1))
            a("v_mul_u32_u24 v%d, 10, v%d" % (t2, t1))
            a("v_sub_u32 v%d, v%d, v%d" % (t0, t0, t2))
            if kind == "wo":
                a("v_mul_u32_u24 v%d, 1280, v%d" % (t1, t1))
                a("v_lshl_add_u32 v%d, v%d, 4, v%d" % (d, t0, t1))
                if imm: a("v_subrev_u32 v%d, %d, v%d" % (d, imm, d))
                continue
            a("v_lshrrev_b32 v%d, 1, v%d" % (t2, t1))
            a("v_xor_b32 v%d, v%d, v%d" % (t2, t2, t1))
            a("v_and_b32 v%d, 4, v%d" % (t2, t2))
            a("v_mul_u32_u24 v%d, 3, v%d" % (t2, t2))
            a("v_xor_b32 v%d, v%d, v%d" % (t1, t1, t2))
            a("v_mul_u32_u24 v%d, 3840, v%d" % (t1, t1))
            a("v_lshl_add_u32 v%d, v%d, 4, v%d" % (t1, t0, t1))
            a("v_cmp_lt_u32 vcc, 4, v%d" % t0)
            hi_add = (1280 - 80) if kind == "kv" else (32 * 3840 - 80)
            a("v_mov_b32 v%d, %d" % (t2, hi_add))
            a("v_cndmask_b32 v%d, 0, v%d, vcc" % (t2, t2))
            a("v_add_u32 v%d, v%d, v%d" % (t1, t1, t2))
            const = (1280 if kind == "kv" else 0) - imm
            a("s_mul_i32 s%d, s%d, %d" % (s_t0, s_w, (32 if kind == "kv" else 64) * 3840))
            a("s_add_i32 s%d, s%d, %d" % (s_t0, s_t0, const))
            a("v_add_u32 v%d, s%d, v%d" % (d, s_t0, t1))
        return a

    def stage_of(self, g):
        if g < 40: return g // 4, g % 4
        return 10 + (g - 40) // 8, (g - 40) % 8
    def frag_reads(self, g):
        a = L()
        st, kk = self.stage_of(g)
        slot = st % 4; hi = slot >= 2; off = (slot - 2 * hi) * SLOT
        fb = FB0 + 24 * (g & 1)
        tag = "f%d" % g
        if g < 20:
            adr = vBA[(kk & 1) + 2 * hi]
            for t in range(5):
                a("ds_read_b128 %s, v%d offset:%d" % (vr(fb + 4 * t), adr, off + 10240 * (kk >> 1) + 1024 * t), tag=tag)
            a("ds_read_b128 %s, v%d offset:%d" % (vr(fb + 20), vGA, 64 * g), tag=tag)
        elif g < 40:
            o = off + 5120 * kk
            for t, (adr, to) in enumerate([(0, 0), (0, 48), (1, 0), (0, 80), (0, 128)]):
                for e in range(2):
                    a("ds_read_b64_tr_b16 %s, v%d offset:%d" % (vr(fb + 4 * t + 2 * e, 2), vBA[adr + 2 * hi], o + to + 1280 * e), tag=tag)
        else:
            o = off + 5120 * (kk >> 1) + 80 * (kk & 1)
            for t, (adr, to) in enumerate([(0, 0), (1, 0), (0, 48)]):
                for e in range(2):
                    a("ds_read_b64_tr_b16 %s, v%d offset:%d" % (vr(fb + 4 * t + 2 * e, 2), vBA[adr + 2 * hi], o + to + 1280 * e), tag=tag)
        return a
    def x_reads(self, sg, tag):
        a = L()
        for e in range(2):
            for i in range(2):
                a("ds_read_b128 %s, v%d offset:%d" % (ar(8 * (2 * sg + e) + 4 * i), vXA[e], 4096 * (sg & 3) + 2048 * i), tag=tag)
        return a
    def mfmas(self, g):
        a = L()
        ks = g % 20
        fb = FB0 + 24 * (g & 1)
        M = "v_mfma_f32_16x16x32_bf16"
        EPSQ = T0; EPSX = T0 + 4
        if g < 20:
            for t in range(6):
                for i in range(2):
                    d = (U0 + 8 * t if t < 5 else GA0) + 4 * i
                    a("%s %s, %s, %s, %s" % (M, vr(d), ar(8 * ks + 4 * i), vr(fb + 4 * t), vr(d) if ks else "0"))
        elif g < 40:
            for t in range(5):
                for i in range(2):
                    d = KV0 + 8 * t + 4 * i
                    c0 = [vr(EPSQ), vr(EPSQ), vr(EPSX), "0", "0"][t]
                    a("%s %s, %s, %s, %s" % (M, vr(d), ar(8 * ks + 4 * i), vr(fb + 4 * t), vr(d) if ks else c0))
        else:
            for t in range(3):
                for i in range(2):
                    d = Q0 + 8 * t + 4 * i
                    a("%s %s, %s, %s, %s" % (M, vr(d), vr(fb + 4 * t), ar(8 * ks + 4 * i), vr(d) if ks else vr(EPSQ)))
        return a

    def phi(self, a, r, tmp):
        a("v_fma_f32 v%d, v%d, s%d, v%d" % (tmp, r, s_log2e, self.v_nel))
        a("v_exp_f32 v%d, v%d clamp" % (tmp, tmp))
        a("v_max_f32 v%d, s%d, v%d" % (r, s_eps, r))
        a("v_add_f32 v%d, v%d, v%d" % (r, r, tmp))

    def build(self):
        a = L()
        t0, t1, t2, t3 = vt
        a("s_cmp_ge_u32 s2, 256\ns_cbranch_scc1 L_end")
        a("s_load_dwordx16 s[16:31], s[0:1], 0\ns_load_dwordx16 s[32:47], s[0:1], 64")
        if self.stamps: a("s_memrealtime s[100:101]")
        a("v_lshrrev_b32 v%d, 6, v0\nv_and_b32 v%d, 63, v0" % (t0, v_lane))
        a("v_readfirstlane_b32 s%d, v%d" % (s_w, t0))
        a("s_getpc_b64 s[%d:%d]" % (sT, sT + 1))
        a("L_pc0:")
        a("s_mov_b32 s%d, L_codeend-L_pc0\ns_mov_b32 s%d, 0x20000" % (sT + 2, sT + 3))
        a("v_lshlrev_b32 v%d, 7, v0" % t1)
        a("buffer_load_dword v%d, v%d, %s, 0 offen" % (255, t1, srd(sT)), tag="pf")
        a("s_mov_b32 s%d, 32768" % s_t0)
        a("buffer_load_dword v%d, v%d, %s, s%d offen" % (255, t1, srd(sT), s_t0), tag="pf")
        a("s_and_b32 s%d, s2, 7\ns_lshr_b32 s%d, s2, 3" % (s_t0, s_t1))
        a("s_and_b32 s%d, s%d, 1\ns_lshl_b32 s%d, s%d, 3\ns_and_b32 s%d, s%d, 7\ns_add_u32 s%d, s%d, s%d" % (s_i, s_t0, s_i, s_i, s_t2, s_t1, s_i, s_i, s_t2))
        a("s_lshr_b32 s%d, s%d, 1\ns_lshl_b32 s%d, s%d, 2\ns_lshr_b32 s%d, s%d, 3\ns_add_u32 s%d, s%d, s%d" % (s_j, s_t0, s_j, s_j, s_t2, s_t1, s_j, s_j, s_t2))
        a("s_and_b32 s%d, s%d, 7\ns_lshr_b32 s%d, s%d, 3" % (s_ct, s_j, s_rb, s_j))
        a("s_mul_i32 s%d, s%d, %d\ns_add_u32 s%d, s%d, %d" % (s_priv, s_w, PRIV_SZ, s_priv, s_priv, PRIV))
        a("s_mul_i32 s%d, s%d, 5120" % (s_wm0, s_w))
        a("s_and_b32 s%d, s%d, 1\ns_mul_i32 s%d, s%d, 10240\ns_lshr_b32 s%d, s%d, 1\ns_mul_i32 s%d, s%d, 5120\ns_add_u32 s%d, s%d, s%d"
          % (s_t0, s_w, s_bm0, s_t0, s_t1, s_w, s_t2, s_t1, s_bm0, s_bm0, s_t2))
        a("s_mov_b32 s%d, 0x%x\ns_mov_b32 s%d, 0x%x\ns_mov_b32 s%d, 0x40000" % (s_log2e, LOG2E, s_eps, EPS, s_spin))
        a("v_and_b32 v%d, 15, v%d\nv_lshrrev_b32 v%d, 4, v%d\nv_lshlrev_b32 v%d, 4, v%d" % (v_n, v_lane, v_q, v_lane, v_l16, v_lane))
        a("v_lshrrev_b32 v%d, 3, v%d" % (t0, v_lane))
        a("v_and_b32 v%d, 7, v%d\nv_xor_b32 v%d, v%d, v%d\nv_lshlrev_b32 v%d, 4, v%d" % (t1, v_lane, t1, t1, v_q, t1, t1))
        a("v_and_b32 v%d, 4, v%d\nv_add_u32 v%d, v%d, v%d" % (t2, t0, t2, t2, t0))
        a("s_lshl_b32 s%d, s%d, 5" % (s_t2, s_w))
        a("v_add_u32 v%d, s%d, v%d\nv_mul_u32_u24 v%d, 1280, v%d" % (t2, s_t2, t2, t2, t2))
        a("v_add_u32 v%d, v%d, v%d" % (vDX[0], t2, t1))
        a("v_xor_b32 v%d, 64, v%d\nv_add_u32 v%d, v%d, v%d\nv_add_u32 v%d, %d, v%d" % (t3, t1, vDX[1], t2, t3, vDX[1], 16 * 1280 - 1024, vDX[1]))
        a("v_add_u32 v%d, %d, v%d\nv_add_u32 v%d, %d, v%d" % (vDX[2], 4 * 1280 - 2048, vDX[0], vDX[3], 4 * 1280 - 2048, vDX[1]))
        a("s_lshl_b32 s%d, s%d, 6\ns_lshl_b32 s%d, s%d, 7" % (s_t1, s_t1, s_t0, s_t0))
        a("v_xor_b32 v%d, s%d, v%d\nv_add_u32 v%d, s%d, v%d" % (t3, s_t1, t1, t3, s_t0, t3))
        a("v_mul_u32_u24 v%d, 1280, v%d\nv_add_u32 v%d, v%d, v%d" % (t0, t0, vDW[0], t0, t3))
        for t in range(1, 5):
            a("v_add_u32 v%d, %d, v%d" % (vDW[t], 10240 * t - (1024 * t if t < 4 else 0), vDW[0]))
        a("s_and_b32 s%d, s%d, 1\ns_lshl_b32 s%d, s%d, 6" % (s_t0, s_w, s_t0, s_t0))
        a("v_add_u32 v%d, s%d, v%d\nv_add_u32 v%d, 64, v%d\nv_min_u32 v%d, v%d, v%d" % (t0, s_t0, v_lane, t1, v_n, t0, t0, t1))
        a("v_lshlrev_b32 v%d, 2, v%d" % (v_col4, t0))
        a("v_lshrrev_b32 v%d, 4, v%d\nv_and_b32 v%d, 7, v%d\nv_lshl_add_u32 v%d, v%d, 3, v%d" % (t1, t0, t2, t0, t1, t1, t2))
        a("s_mul_i32 s%d, s%d, 40" % (s_t1, s_j))
        a("v_add_lshl_u32 v%d, v%d, s%d, 1" % (t1, t1, s_t1))
        a("s_waitcnt lgkmcnt(0)")
        a("global_load_ushort v%d, v%d, s[18:19]" % (T0, t1), tag="par")
        a("global_load_ushort v%d, v%d, s[20:21]" % (T0 + 1, t1), tag="par")
        a("global_load_ushort v%d, v%d, s[30:31]" % (T0 + 2, t1), tag="par")
        def mk(b, lo, add_reg, nrec):
            a("s_add_u32 s%d, s%d, s%d\ns_addc_u32 s%d, s%d, 0" % (b, lo, add_reg, b + 1, lo + 1))
            if isinstance(nrec, int): a("s_mov_b32 s%d, %d" % (b + 2, nrec))
            else: a(nrec)
            a("s_mov_b32 s%d, 0x20000" % (b + 3))
        a("s_mul_i32 s%d, s%d, 163840" % (s_t1, s_i)); mk(sX, 16, s_t1, 163840)
        a("s_cmp_lt_u32 s%d, 2\ns_cselect_b32 s22, s22, s24\ns_cselect_b32 s23, s23, s25\ns_cselect_b32 s26, s26, s28\ns_cselect_b32 s27, s27, s29" % s_w)
        a("s_mul_i32 s%d, s%d, 51200" % (s_t1, s_j)); mk(sB, 22, s_t1, 51200)
        a.extend(self.dma_x(0)); a.extend(self.dma_x(1))
        a("s_mov_b32 s%d, s40\ns_mov_b32 s%d, s41\ns_mov_b32 s%d, 1280\ns_mov_b32 s%d, 0x20000" % (sT, sT + 1, sT + 2, sT + 3))
        a("s_lshl_b32 s%d, s%d, 4\ns_add_u32 m0, s%d, %d" % (s_t0, s_t0, s_t0, M_GATE))
        a("buffer_load_dwordx4 v%d, %s, s%d offen lds" % (v_l16, srd(sT), s_t0), tag="gate")
        a.extend(self.dma_w(0)); a.extend(self.dma_x(2)); a.extend(self.dma_x(3)); a.extend(self.dma_w(1))
        a("s_mul_i32 s%d, s%d, 80" % (s_t1, s_j)); mk(sW, 36, s_t1, "s_sub_u32 s%d, 2457600, s%d" % (sW + 2, s_t1))
        a("s_and_b32 s%d, s%d, 1\ns_mul_i32 s%d, s%d, 640\ns_mul_i32 s%d, s%d, 102400\ns_add_u32 s%d, s%d, s%d" % (s_t0, s_w, s_t0, s_t0, s_t1, s_ct, s_t1, s_t1, s_t0))
        mk(sC, 26, s_t1, "s_sub_u32 s%d, 102400, s%d" % (sC + 2, s_t0))
        a("s_mul_i32 s%d, s%d, 160\ns_mul_i32 s%d, s%d, 204800\ns_add_u32 s%d, s%d, s%d" % (s_t0, s_ct, s_t1, s_w, s_t1, s_t1, s_t0))
        mk(sWO, 38, s_t1, "s_sub_u32 s%d, 204800, s%d" % (sWO + 2, s_t0))
        a("s_mov_b32 s%d, s46\ns_mov_b32 s%d, s47\ns_mov_b32 s%d, 0x%x\ns_mov_b32 s%d, 0x20000" % (sWS, sWS + 1, sWS + 2, 0x10000000 if self.stamps else 0x1000000, sWS + 3))
        a("s_lshl_b32 s%d, s%d, 1\ns_add_u32 s%d, s%d, s%d\ns_mul_i32 s%d, s%d, 163840\ns_mul_i32 s%d, s%d, 320\ns_add_u32 s%d, s%d, s%d"
          % (s_t1, s_i, s_t1, s_t1, s_rb, s_t1, s_t1, s_t0, s_ct, s_t1, s_t1, s_t0))
        mk(sOUT, 42, s_t1, "s_sub_u32 s%d, 163840, s%d" % (sOUT + 2, s_t0))
        a("s_mov_b32 s%d, s44\ns_mov_b32 s%d, s45\ns_mov_b32 s%d, 256\ns_mov_b32 s%d, 0x20000" % (sDBG, sDBG + 1, sDBG + 2, sDBG + 3))
        a("s_lshl_b32 s%d, s%d, 13\ns_add_u32 s%d, s%d, %d" % (s_t1, s_j, s_t1, s_t1, W_AGG)); mk(sAG, 46, s_t1, 8192)
        a("v_mov_b32 v%d, 1" % v_one)
        a("s_mul_i32 s%d, s%d, 160" % (s_t1, s_ct)); mk(sT, 32, s_t1, 160)
        lsk = self.label("noclear")
        a("s_or_b32 s%d, s2, s%d\ns_cmp_lg_u32 s%d, 0\ns_cbranch_scc1 %s" % (s_t0, s_w, s_t0, lsk))
        a("v_lshlrev_b32 v%d, 8, v%d\nv_mov_b32 v%d, 0" % (t0, v_lane, t1), raw=True)
        a("buffer_store_dword v%d, v%d, %s, 0 offen sc1" % (t1, t0, srd(sWS)), raw=True)
        a("s_waitcnt vmcnt(0)", raw=True)
        a("buffer_store_dword v%d, off, %s, 0 sc1" % (v_one, srd(sDBG)), raw=True)
        a("s_waitcnt vmcnt(0)", raw=True)
        a(lsk + ":")
        a("v_lshrrev_b32 v%d, 1, v%d\nv_xor_b32 v%d, v%d, v%d\nv_lshlrev_b32 v%d, 4, v%d" % (t0, v_n, t0, t0, v_q, t0, t0))
        a("v_lshl_add_u32 v%d, v%d, 7, v%d" % (t1, v_n, t0))
        a("v_add_u32 v%d, s%d, v%d\nv_xor_b32 v%d, 64, v%d" % (vXA[0], s_priv, t1, vXA[1], vXA[0]))
        a("v_lshrrev_b32 v%d, 3, v%d\nv_mul_u32_u24 v%d, %d, v%d" % (t2, v_n, t2, 5120 - 1024, t2))
        a("v_add_u32 v%d, v%d, v%d\nv_xor_b32 v%d, 64, v%d" % (vBA[0], t1, t2, vBA[1], vBA[0]))
        a("v_add_u32 v%d, %d, v%d\nv_add_u32 v%d, %d, v%d" % (vBA[2], 2 * SLOT, vBA[0], vBA[3], 2 * SLOT, vBA[1]))
        a("v_lshlrev_b32 v%d, 4, v%d\nv_add_u32 v%d, %d, v%d" % (vGA, v_q, vGA, M_GATE, vGA))
        a.wv("par")
        Lr, Li, dt, zr, rv, e1, c1, s1, x0, x1, sg = [T0 + k for k in range(11)]
        a("v_lshlrev_b32 v%d, 16, v%d\nv_lshlrev_b32 v%d, 16, v%d\nv_lshlrev_b32 v%d, 16, v%d" % (Lr, Lr, Li, Li, dt, dt))
        a("v_mul_f32 v%d, s%d, v%d\nv_exp_f32 v%d, v%d" % (dt, s_log2e, dt, dt, dt))
        a("v_cvt_pk_bf16_f32 v%d, v%d, v%d\nv_lshlrev_b32 v%d, 16, v%d" % (dt, dt, dt, dt, dt))
        a("v_mul_f32 v%d, v%d, v%d\nv_mul_f32 v%d, s%d, v%d" % (zr, dt, Lr, zr, s_log2e, zr))
        a("v_mul_f32 v%d, v%d, v%d\nv_mul_f32 v%d, 0.15915494, v%d" % (rv, dt, Li, rv, rv))
        a("v_and_b32 v%d, 8, v%d\nv_lshlrev_b32 v%d, 28, v%d\nv_or_b32 v%d, 1.0, v%d" % (sg, v_n, sg, sg, sg, sg))
        def power(k, da, db, signed=True):
            if k == 1:
                a("v_exp_f32 v%d, v%d\nv_fract_f32 v%d, v%d" % (e1, zr, x0, rv))
            else:
                a("v_mul_f32 v%d, 0x%x, v%d\nv_exp_f32 v%d, v%d" % (e1, f2u(float(k)), zr, e1, e1))
                a("v_mul_f32 v%d, 0x%x, v%d\nv_fract_f32 v%d, v%d" % (x0, f2u(float(k)), rv, x0, x0))
            a("v_cos_f32 v%d, v%d\nv_sin_f32 v%d, v%d" % (c1, x0, s1, x0))
            a("v_mul_f32 v%d, v%d, v%d\nv_mul_f32 v%d, v%d, v%d" % (da, e1, c1, db, e1, s1))
            if signed: a("v_mul_f32 v%d, v%d, v%d" % (db, db, sg))
        power(8, vA8, vB8); power(128, vA128, vB128)
        pa, pb, pc1, pc2 = T0 + 12, T0 + 13, T0 + 14, T0 + 15
        power(1, pa, pb, signed=False)
        a("v_add_f32 v%d, -1.0, v%d" % (x0, pa))
        a("v_mul_f32 v%d, v%d, v%d\nv_fmac_f32 v%d, v%d, v%d\nv_rcp_f32 v%d, v%d" % (x1, Lr, Lr, x1, Li, Li, x1, x1))
        a("v_mul_f32 v%d, v%d, v%d\nv_fmac_f32 v%d, v%d, v%d" % (pc1, x0, Lr, pc1, pb, Li))
        a("v_mul_f32 v%d, v%d, v%d\nv_fma_f32 v%d, -v%d, v%d, v%d" % (pc2, x0, Li, pc2, pb, Lr, pc2))
        a("v_add_f32 v%d, v%d, v%d" % (x1, x1, x1))
        a("v_mul_f32 v%d, v%d, v%d\nv_mul_f32 v%d, v%d, v%d" % (pc1, pc1, x1, pc2, pc2, x1))
        a("v_mul_f32 v%d, v%d, v%d\nv_mul_f32 v%d, v%d, v%d" % (pc1, pc1, sg, pb, pb, sg))
        a("v_lshlrev_b32 v%d, 2, v%d\nv_add_u32 v%d, %d, v%d" % (t0, v_col4, t0, M_PARAM, t0))
        a("ds_write_b128 v%d, %s" % (t0, vr(pa)), tag="pw")
        a.wl("pw")
        self.v_nel = T0 + 8
        for k in range(4): a("v_mov_b32 v%d, s%d" % (T0 + k, s_eps))
        a("v_cmp_gt_u32 vcc, 8, v%d" % v_n)
        for k in range(4): a("v_cndmask_b32 v%d, 0, v%d, vcc" % (T0 + 4 + k, T0))
        a("v_mov_b32 v%d, 0x%x" % (self.v_nel, NEG_EPS_LOG2E))
        self.stamp(a)
        a.wv("w0"); a("s_barrier")
        a.extend(self.x_reads(0, "f0")); a.extend(self.x_reads(1, "f0")); a.extend(self.frag_reads(0))
        a.wl("f0")
        a("v_lshlrev_b32 v%d, 4, v%d\nv_add_u32 v%d, %d, v%d" % (t0, v_n, t0, M_PARAM, t0))
        for t in range(5):
            a("ds_read_b128 %s, v%d offset:%d" % (vr(PR0 + 4 * t), t0, 256 * t), tag="pr")
        a.wl("pr")
        for g in range(60):
            st, kk = self.stage_of(g)
            side = L()
            pre = L()
            pre.wl("f%d" % g)
            if g + 1 < 60:
                st1, kk1 = self.stage_of(g + 1)
                if kk1 == 0:
                    pre.wv("w%d" % st1); pre("s_barrier")
                    if st1 < 5:
                        side.extend(self.x_reads(2 * st1, "f%d" % (g + 1))); side.extend(self.x_reads(2 * st1 + 1, "f%d" % (g + 1)))
                    if st1 == 5:
                        pre.extend(self.calc_tr("kv"))
                    if st1 == 10:
                        pre.extend(self.calc_tr("q"))
                side.extend(self.frag_reads(g + 1))
            if kk == 0:
                if st <= 2:
                    side.extend(self.dma_x(2 * st + 4))
                if st == 2: self.poll_issue(side, sDBG, self.zero_s(side), "clr")
                if st == 3: side.extend(self.calc_dw("kv")); side.extend(self.dma_w(5))
                if 4 <= st <= 6: side.extend(self.dma_w(st + 3))
                if st == 7: side.extend(self.calc_dw("q"))
                if 7 <= st <= 9: side.extend(self.dma_w(st + 3))
            if kk == 1:
                if st <= 2:
                    side.extend(self.dma_x(2 * st + 5)); side.extend(self.dma_w(st + 2))
                if st == 3: side.extend(self.dma_w(6))
            a.extend(pre)
            a.extend(interleave(self.mfmas(g), side, 1, 2))
            if g == 19:
                self.stamp(a)
                a.extend(self.scan1())
                self.stamp(a)
            if g == 39:
                self.stamp(a)
                a.extend(self.kv1())
                self.stamp(a)
        self.stamp(a)
        a.extend(self.scan2())
        self.stamp(a)
        a.extend(self.w2_load())
        self.stamp(a)
        a.extend(self.attn2())
        self.stamp(a)
        a.extend(self.gemm2())
        self.stamp(a)
        if self.stamps:
            a("s_waitcnt vmcnt(0)")
            self.stamp(a)
            a("s_cmp_lg_u32 s%d, 0\ns_cbranch_scc1 L_end" % s_w)
            a("s_lshl_b32 s%d, s2, 7\ns_add_u32 s%d, s%d, %d" % (s_t0, s_t0, s_t0, STAMP_OFF))
            a("v_mov_b32 v2, s100\nv_mov_b32 v3, s101\nbuffer_store_dwordx2 v[2:3], off, %s, s%d" % (srd(sWS), s_t0))
            for k in range(self.nst):
                a("s_waitcnt vmcnt(0)\nv_mov_b32 v2, s%d\nv_mov_b32 v3, s%d\nbuffer_store_dwordx2 v[2:3], off, %s, s%d offset:%d" % (16 + 2 * k, 17 + 2 * k, srd(sWS), s_t0, 8 * k + 8))
        a("L_end:\ns_endpgm")
        a.extend(self.slow)
        return a

    def zero_s(self, a):
        a("s_mov_b32 s%d, 0" % s_a2p)
        return s_a2p

    def calc_tr(self, kind):
        a = L()
        t0, t1, t2, t3 = vt
        if kind == "kv":
            a("v_lshrrev_b32 v%d, 2, v%d\nv_and_b32 v%d, 8, v%d\nv_add_u32 v%d, v%d, v%d" % (t0, v_lane, t1, t0, t0, t0, t1))
            a("v_mul_u32_u24 v%d, 160, v%d" % (t0, t0))
            a("v_and_b32 v%d, 3, v%d\nv_lshl_add_u32 v%d, v%d, 3, v%d" % (t1, v_lane, vBA[0], t1, t0))
            a("v_and_b32 v%d, 2, v%d\nv_lshlrev_b32 v%d, 5, v%d" % (t1, v_lane, t1, t1))
            a("v_add3_u32 v%d, v%d, v%d, 32" % (vBA[1], vBA[0], t1))
            a("v_add_u32 v%d, %d, v%d\nv_add_u32 v%d, %d, v%d" % (vBA[2], 2 * SLOT, vBA[0], vBA[3], 2 * SLOT, vBA[1]))
        else:
            a("v_and_b32 v%d, 2, v%d\nv_mul_u32_u24 v%d, 40, v%d" % (t1, v_lane, t1, t1))
            a("v_sub_u32 v%d, v%d, v%d\nv_sub_u32 v%d, v%d, v%d" % (vBA[1], vBA[1], t1, vBA[3], vBA[3], t1))
        return a

    def scan1(self):
        a = L()
        t0, t1, t2, t3 = vt
        TT = T0 + 10
        for k in range(8):
            a("v_mul_f32 v%d, s%d, v%d" % (GA0 + k, s_log2e, GA0 + k))
        for k in range(8):
            a("v_exp_f32 v%d, -v%d" % (GA0 + k, GA0 + k))
        for k in range(8):
            a("v_add_f32 v%d, 1.0, v%d" % (GA0 + k, GA0 + k))
        for k in range(8):
            a("v_rcp_f32 v%d, v%d" % (GA0 + k, GA0 + k))
        a("s_lshl_b32 s%d, s%d, 7\ns_add_u32 s%d, s%d, %d" % (s_t0, s_w, s_t0, s_t0, M_G))
        a("v_lshl_add_u32 v%d, v%d, 5, s%d" % (t0, v_q, s_t0))
        a("ds_write_b128 v%d, %s\nds_write_b128 v%d, %s offset:16" % (t0, vr(GA0), t0, vr(GA0 + 4)), tag="gw")
        for j8 in range(8):
            for t in range(5):
                a("v_mul_f32_dpp v%d, v%d, v%d %s" % (TT + t, U0 + 8 * t + j8, PR0 + 4 * t + 3, DPP))
            for t in range(5):
                u = U0 + 8 * t + j8
                a("v_fma_f32 v%d, v%d, v%d, v%d" % (u, u, PR0 + 4 * t + 2, TT + t))
        prev = [U0 + 8 * t for t in range(5)]
        for j8 in range(1, 8):
            cur = [TT + 5 * (j8 & 1) + t for t in range(5)]
            for t in range(5):
                a("v_fma_f32 v%d, v%d, v%d, v%d" % (cur[t], PR0 + 4 * t, prev[t], U0 + 8 * t + j8))
            for t in range(5):
                a("v_fmac_f32_dpp v%d, v%d, v%d %s" % (cur[t], prev[t], PR0 + 4 * t + 1, DPP))
            prev = cur
        a("s_lshl_b32 s%d, s%d, 4\ns_add_u32 s%d, s%d, %d" % (s_t0, s_w, s_t0, s_t0, M_S + 16))
        a("v_mul_u32_u24 v%d, 80, v%d\nv_lshl_add_u32 v%d, v%d, 2, v%d\nv_add_u32 v%d, s%d, v%d" % (t0, v_n, t0, v_q, t0, t0, s_t0, t0))
        a("v_mov_b32 v%d, v%d" % (vGA, t0))
        for t in range(5):
            a("ds_write_b32 v%d, v%d offset:%d" % (t0, prev[t], 1280 * t), tag="sw")
        a.wl("sw"); a("s_barrier")
        a("v_mul_u32_u24 v%d, 20, v%d\nv_add_u32 v%d, %d, v%d" % (t1, v_col4, t1, M_S, t1))
        for k in range(4):
            a("ds_read_b128 %s, v%d offset:%d" % (vr(S0 + 4 * k), t1, 16 + 16 * k), tag="sr")
        a.wl("sr")
        p = S0
        for k in range(1, 16):
            c = TT + (k & 1)
            a("v_fma_f32 v%d, v%d, v%d, v%d" % (c, vA8, p, S0 + k))
            a("v_fmac_f32_dpp v%d, v%d, v%d %s" % (c, p, vB8, DPP))
            p = c
        a("s_sub_u32 s%d, 15, s%d\ns_lshl_b32 s%d, s%d, 9" % (s_t0, s_i, s_t0, s_t0))
        a("s_lshl_b32 s%d, s%d, 8\ns_add_u32 s%d, s%d, %d" % (s_t1, s_j, s_t1, s_t1, W_CNTS))
        a("s_cmp_lt_u32 s%d, 2\ns_cselect_b32 s%d, s%d, 0x7ffffff0\ns_cselect_b32 s%d, s%d, 0x7ffffff0" % (s_w, s_t0, s_t0, s_t1, s_t1))
        a("buffer_store_dword v%d, v%d, %s, s%d offen sc1" % (p, v_col4, srd(sAG), s_t0), tag="aggst")
        self.poll_check(a, sDBG, s_a2p, "clr", 1)
        a("s_waitcnt vmcnt(0)")
        a("s_mov_b64 exec, 1")
        a("buffer_atomic_add v%d, off, %s, s%d sc1" % (v_one, srd(sWS), s_t1), tag="at")
        a("s_mov_b64 exec, -1")
        return a

    def kv1(self):
        a = L()
        t0, t1, t2, t3 = vt
        M = "v_mfma_f32_16x16x32_bf16"
        kA, kB, X, vA, vB = [KV0 + 8 * t for t in range(5)]
        TT = T0 + 10
        fbusy = FB0
        P = FB0 + 24
        PA, PB, PX, VA, VB, VX = [P + 4 * k for k in range(6)]
        for (src, dst) in ((vA, VA), (vB, VB), (X, VX)):
            for k in range(4):
                a("v_cvt_pk_bf16_f32 v%d, v%d, v%d" % (dst + k, src + 2 * k, src + 2 * k + 1))
        a("v_cmp_gt_u32 vcc, 8, v%d\nv_mov_b32 v%d, 0x3f803f80" % (v_n, t0))
        for k in range(4):
            a("v_cndmask_b32 v%d, v%d, v%d, vcc" % (VX + k, VX + k, t0))
        for (src, dst) in ((kA, PA), (kB, PB), (X, PX)):
            for k in range(8): self.phi(a, src + k, TT + k)
            for k in range(4):
                a("v_cvt_pk_bf16_f32 v%d, v%d, v%d" % (dst + k, src + 2 * k, src + 2 * k + 1))
        T1, T2, T3a, T3b, T4a, T4b, T5 = [KV0 + 4 * k for k in range(7)]
        for d, x, y in ((T1, PA, VA), (T2, PB, VB), (T3a, PA, VX), (T3b, PB, VX), (T4a, PX, VA), (T4b, PX, VB), (T5, PX, VX)):
            a("%s %s, %s, %s, 0" % (M, vr(d), vr(x), vr(y)))
        a("s_mov_b32 s%d, 0x0f550f55\ns_mov_b32 s%d, 0x0f550f55" % (s_mask, s_mask + 1))
        for k in range(4):
            a("v_cndmask_b32 v%d, v%d, v%d, s[%d:%d]" % (T3a + k, T3b + k, T3a + k, s_mask, s_mask + 1))
        a("v_cmp_gt_u32 vcc, 16, v%d" % v_lane)
        for k in range(4):
            a("v_cndmask_b32 v%d, v%d, v%d, vcc" % (T4a + k, T4b + k, T4a + k))
        for k in range(4):
            a("v_permlane32_swap_b32 v%d, v%d" % (T4a + k, T5 + k))
        a("s_lshl_b32 s%d, s%d, 12\ns_add_u32 s%d, s%d, %d" % (s_t0, s_w, s_t0, s_t0, SLOT))
        a("v_add_u32 v%d, s%d, v%d" % (t0, s_t0, v_l16))
        for k, r in enumerate((T1, T2, T3a, T4a)):
            a("ds_write_b128 v%d, %s offset:%d" % (t0, vr(r), 1024 * k), tag="kw")
        a.wl("kw"); a("s_barrier")
        a("s_lshl_b32 s%d, s%d, 10\ns_add_u32 s%d, s%d, %d" % (s_t0, s_w, s_t0, s_t0, SLOT))
        a("v_add_u32 v%d, s%d, v%d" % (t0, s_t0, v_l16))
        for k in range(4):
            a("ds_read_b128 %s, v%d offset:%d" % (vr(KV0 + 4 * k), t0, 4096 * k), tag="kr")
        a.wl("kr")
        for k in range(4):
            a("v_add_f32 v%d, v%d, v%d\nv_add_f32 v%d, v%d, v%d" % (KV0 + k, KV0 + k, KV0 + 4 + k, KV0 + 8 + k, KV0 + 8 + k, KV0 + 12 + k))
        for k in range(4):
            a("v_add_f32 v%d, v%d, v%d" % (KV0 + k, KV0 + k, KV0 + 8 + k))
        a("s_lshl_b32 s%d, s%d, 2\ns_add_u32 s%d, s%d, s%d\ns_lshl_b32 s%d, s%d, 4\ns_add_u32 s%d, s%d, s%d\ns_lshl_b32 s%d, s%d, 10\ns_add_u32 s%d, s%d, %d"
          % (s_t0, s_j, s_t0, s_t0, s_w, s_t0, s_t0, s_t0, s_t0, s_i, s_t0, s_t0, s_t0, s_t0, W_KVP))
        a("buffer_store_dwordx4 %s, v%d, %s, s%d offen sc1" % (vr(KV0), v_l16, srd(sWS), s_t0), tag="kvst")
        a("s_waitcnt vmcnt(0)\ns_barrier")
        self.signal(a, s_j, W_CNTK)
        return a

    def signal(self, a, idx, base):
        a("s_lshl_b32 s%d, s%d, 8\ns_add_u32 s%d, s%d, %d" % (s_t1, idx, s_t1, s_t1, base))
        a("s_cmp_eq_u32 s%d, 0\ns_cselect_b32 s%d, s%d, 0x7ffffff0" % (s_w, s_t1, s_t1))
        a("s_mov_b64 exec, 1")
        a("buffer_atomic_add v%d, off, %s, s%d sc1" % (v_one, srd(sWS), s_t1), tag="at")
        a("s_mov_b64 exec, -1")

    def wait_cnt(self, a, idx, base, target, tag):
        a("s_lshl_b32 s%d, s%d, 8\ns_add_u32 s%d, s%d, %d" % (s_t2, idx, s_t2, s_t2, base))
        self.poll_issue(a, sWS, s_t2, tag)
        self.poll_check(a, sWS, s_t2, tag, target)

    def scan2(self):
        a = L()
        t0, t1, t2, t3 = vt
        AG = FB0
        self.wait_cnt(a, s_j, W_CNTS, 32, "pS")
        a("s_sub_u32 s%d, 16, s%d\ns_lshl_b32 s%d, s%d, 9\ns_add_u32 s%d, s%d, 4096" % (s_t0, s_i, s_t0, s_t0, s_t1, s_t0))
        for m in range(14, -1, -1):
            a("buffer_load_dword v%d, v%d, %s, s%d offen offset:%d sc1" % (AG + m, v_col4, srd(sAG), s_t0 if m < 8 else s_t1, 512 * (m & 7)), tag="ag%d" % m)
        for m in range(13, -1, -1):
            a.wv("ag%d" % m)
            a("v_fmac_f32 v%d, v%d, v%d" % (AG + m, vA128, AG + m + 1))
            a("v_fmac_f32_dpp v%d, v%d, v%d %s" % (AG + m, AG + m + 1, vB128, DPP))
        p = AG
        for k in range(15):
            a("v_fmac_f32 v%d, v%d, v%d" % (S0 + k, vA8, p))
            a("v_fmac_f32_dpp v%d, v%d, v%d %s" % (S0 + k, p, vB8, DPP))
            p = S0 + k
        a("v_mul_u32_u24 v%d, 20, v%d\nv_add_u32 v%d, %d, v%d" % (t1, v_col4, t1, M_S, t1))
        a("ds_write_b32 v%d, v%d offset:12" % (t1, AG), tag="iw")
        for k in range(4):
            a("ds_write_b128 v%d, %s offset:%d" % (t1, vr(S0 + 4 * k), 16 + 16 * k), tag="iw")
        a.wl("iw"); a("s_barrier")
        IN = T0 + 10
        a("v_subrev_u32 v%d, 4, v%d" % (t0, vGA))
        for t in range(5):
            a("ds_read_b32 v%d, v%d offset:%d" % (IN + t, t0, 1280 * t), tag="ir")
        a.wl("ir")
        prev = [IN + t for t in range(5)]
        for j8 in range(8):
            cur = [U0 + 8 * t + j8 for t in range(5)]
            for t in range(5):
                a("v_fmac_f32 v%d, v%d, v%d" % (cur[t], PR0 + 4 * t, prev[t]))
            for t in range(5):
                a("v_fmac_f32_dpp v%d, v%d, v%d %s" % (cur[t], prev[t], PR0 + 4 * t + 1, DPP))
            prev = cur
        for t in range(5):
            for k in range(4):
                u = U0 + 8 * t + 2 * k
                a("v_pk_mul_f32 %s, %s, %s" % (vr(u, 2), vr(u, 2), vr(GA0 + 2 * k, 2)))
        H = FB0
        for t in range(5):
            for k in range(4):
                u = U0 + 8 * t + 2 * k
                a("v_cvt_pk_bf16_f32 v%d, v%d, v%d" % (H + 4 * t + k, u, u + 1))
        a("s_add_u32 s%d, s%d, %d" % (s_t0, s_priv, P_HT))
        a("v_mul_u32_u24 v%d, 320, v%d\nv_lshl_add_u32 v%d, v%d, 4, v%d\nv_add_u32 v%d, s%d, v%d" % (t0, v_q, t0, v_n, t0, t0, s_t0, t0))
        for t in range(5):
            a("ds_write_b128 v%d, %s offset:%d" % (t0, vr(H + 4 * t), 1280 * t), tag="hw")
        a("v_and_b32 v%d, 3, v%d\nv_mul_u32_u24 v%d, 320, v%d" % (t1, v_lane, t1, t1))
        a("v_and_b32 v%d, 12, v%d\nv_lshl_add_u32 v%d, v%d, 2, v%d" % (t2, v_lane, t1, t2, t1))
        a("v_and_b32 v%d, 32, v%d\nv_lshl_add_u32 v%d, v%d, 2, v%d" % (t2, v_lane, t1, t2, t1))
        a("v_and_b32 v%d, 16, v%d\nv_lshrrev_b32 v%d, 1, v%d\nv_add3_u32 v%d, v%d, v%d, s%d" % (t2, v_lane, t2, t2, t1, t1, t2, s_t0))
        a.wl("hw")
        H2 = FB0 + 24
        for t in range(5):
            for e in range(2):
                a("ds_read_b64_tr_b16 %s, v%d offset:%d" % (vr(H2 + 4 * t + 2 * e, 2), t1, 1280 * t + 64 * e), tag="hr%d" % t)
        a("v_and_b32 v%d, 1, v%d\nv_mul_u32_u24 v%d, %d, v%d" % (t2, v_q, t2, TSTR, t2))
        a("v_lshrrev_b32 v%d, 1, v%d\nv_mul_u32_u24 v%d, 20480, v%d" % (t3, v_q, t3, t3))
        a("v_lshlrev_b32 v%d, 4, v%d\nv_add3_u32 v%d, v%d, v%d, v%d" % (t0, v_n, t2, t2, t3, t0))
        a("s_lshl_b32 s%d, s%d, 2\ns_add_u32 s%d, s%d, s%d\ns_mul_i32 s%d, s%d, %d\ns_mul_i32 s%d, s%d, 1280\ns_add_u32 s%d, s%d, s%d\ns_add_u32 s%d, s%d, %d"
          % (s_t0, s_i, s_t0, s_t0, s_w, s_t0, s_t0, 2 * TSTR, s_t1, s_j, s_t0, s_t0, s_t1, s_a2p, s_t0, W_A2))
        for t in range(5):
            a.wl("hr%d" % t)
            a("buffer_store_dwordx4 %s, v%d, %s, s%d offen offset:%d sc1" % (vr(H2 + 4 * t), t2, srd(sWS), s_a2p, 256 * t), tag="hst")
        a("s_waitcnt vmcnt(0)\ns_barrier")
        self.signal(a, s_i, W_CNTH)
        return a

    def w2reg(self, kap, nt):
        f = kap * 5 + nt
        return 4 * f if f < 50 else None

    def w2_load(self):
        a = L()
        t0, t1, t2, t3 = vt
        a("v_lshrrev_b32 v%d, 3, v%d\nv_mul_u32_u24 v%d, 1280, v%d" % (t0, v_lane, t0, t0))
        a("v_and_b32 v%d, 7, v%d\nv_xor_b32 v%d, v%d, v%d\nv_lshl_add_u32 v%d, v%d, 4, v%d" % (t1, v_lane, t1, t1, v_q, vDX[0], t1, t0))
        a("v_xor_b32 v%d, 64, v%d\nv_add_u32 v%d, %d, v%d" % (vDX[1], vDX[0], vDX[1], 8 * 1280 - 1024, vDX[1]))
        units = [(sg, nt) for sg in range(5) for nt in range(5)]
        NU = 5
        def issue(u):
            sg, nt = units[u]
            a("s_add_u32 m0, s%d, %d" % (s_priv, 2048 * (u % NU)))
            a("s_mov_b32 s%d, %d" % (s_so, nt * 20480 + 128 * sg))
            for h in range(2):
                a("buffer_load_dwordx4 v%d, %s, s%d offen offset:%d lds" % (vDX[h], srd(sC), s_so, 1024 * h), tag="c%d" % u)
        a.extend(self.calc_dw("wo"))
        def wo_issue(blk):
            if blk < 4: a("s_mul_i32 s%d, s%d, %d\ns_add_u32 s%d, s%d, %d" % (s_t0, s_w, SLOT, s_t0, s_t0, 5120 * blk))
            else: a("s_mov_b32 s%d, s%d" % (s_t0, s_priv))
            a("s_mov_b32 m0, s%d" % s_t0)
            a("s_mov_b32 s%d, %d" % (s_so, blk * 32 * 1280))
            for ph in range(4):
                a("buffer_load_dwordx4 v%d, %s, s%d offen offset:%d lds" % (vDW[ph], srd(sWO), s_so, 1024 * ph), tag="wo")
            a("s_add_u32 m0, s%d, 4096" % s_t0)
            a("buffer_load_dwordx4 v%d, %s, s%d offen lds" % (vDW[4], srd(sWO), s_so), tag="wo")
        for u in range(NU): issue(u)
        for blk in range(4): wo_issue(blk)
        for u in range(25):
            sg, nt = units[u]
            a.wv("c%d" % u)
            for e in range(2):
                a("ds_read_b128 %s, v%d offset:%d" % (ar(self.w2reg(2 * sg + e, nt)), vXA[e], 2048 * (u % NU)), tag="cr%d" % u)
            if u >= 1 and u - 1 + NU < 25:
                a.wl("cr%d" % (u - 1)); issue(u - 1 + NU)
        a.wl("cr24")
        wo_issue(4)
        return a

    def attn2(self):
        a = L()
        t0, t1, t2, t3 = vt
        M = "v_mfma_f32_16x16x32_bf16"
        TT = T0 + 10
        PQ = S0
        for t in range(3):
            for k in range(8): self.phi(a, Q0 + 8 * t + k, TT + k)
            for i in range(2):
                for k in range(2):
                    a("v_cvt_pk_bf16_f32 v%d, v%d, v%d" % (PQ + 6 * i + 2 * t + k, Q0 + 8 * t + 4 * i + 2 * k, Q0 + 8 * t + 4 * i + 2 * k + 1))
        OMG = S0 + 12
        a("s_lshl_b32 s%d, s%d, 7\ns_add_u32 s%d, s%d, %d" % (s_t0, s_w, s_t0, s_t0, M_G))
        a("v_and_b32 v%d, 12, v%d\nv_add_u32 v%d, v%d, v%d\nv_lshl_add_u32 v%d, v%d, 2, s%d" % (t0, v_n, t0, t0, v_n, t0, t0, s_t0))
        a("ds_read_b32 v%d, v%d\nds_read_b32 v%d, v%d offset:16" % (OMG, t0, OMG + 1, t0), tag="og")
        self.wait_cnt(a, s_j, W_CNTK, 16, "pK")
        G = 32
        a("s_lshl_b32 s%d, s%d, 2\ns_add_u32 s%d, s%d, s%d\ns_lshl_b32 s%d, s%d, 14\ns_add_u32 s%d, s%d, %d" % (s_t0, s_j, s_t0, s_t0, s_w, s_t0, s_t0, s_t0, s_t0, W_KVP))
        for c in range(16):
            if c and c % 4 == 0: a("s_add_u32 s%d, s%d, 4096" % (s_t0, s_t0))
            a("buffer_load_dwordx4 %s, v%d, %s, s%d offen offset:%d sc1" % (vr(G + 4 * c), v_l16, srd(sWS), s_t0, 1024 * (c % 4)), tag="g%d" % c)
        a.wl("og")
        a("v_sub_f32 v%d, 1.0, v%d\nv_sub_f32 v%d, 1.0, v%d" % (OMG, OMG, OMG + 1, OMG + 1))
        for c in range(2, 16):
            a.wv("g%d" % c)
            d = G + 4 * (c & 1)
            a("v_pk_add_f32 %s, %s, %s\nv_pk_add_f32 %s, %s, %s" % (vr(d, 2), vr(d, 2), vr(G + 4 * c, 2), vr(d + 2, 2), vr(d + 2, 2), vr(G + 4 * c + 2, 2)))
        a("v_pk_add_f32 %s, %s, %s\nv_pk_add_f32 %s, %s, %s" % (vr(G, 2), vr(G, 2), vr(G + 4, 2), vr(G + 2, 2), vr(G + 2, 2), vr(G + 6, 2)))
        a("v_cvt_pk_bf16_f32 v%d, v%d, v%d\nv_cvt_pk_bf16_f32 v%d, v%d, v%d" % (G + 8, G, G + 1, G + 9, G + 2, G + 3))
        a("v_lshlrev_b32 v%d, 3, v%d\ns_add_u32 s%d, s%d, %d\nv_add_u32 v%d, s%d, v%d" % (t0, v_lane, s_t0, s_priv, P_KVX, t1, s_t0, t0))
        a("ds_write_b64 v%d, %s" % (t1, vr(G + 8, 2)), tag="xw")
        a.wl("xw"); a("s_barrier")
        FA, FB_, FZA, FZB, R3, R4, R5 = 48, 52, 56, 60, 64, 66, 68
        a("v_add_u32 v%d, %d, v%d\nv_xor_b32 v%d, 256, v%d\nv_add_u32 v%d, %d, v%d" % (t1, PRIV + P_KVX, t0, t0, t0, t0, PRIV + P_KVX, t0))
        a("ds_read_b64 %s, v%d" % (vr(FA, 2), t1), tag="xr")
        a("ds_read_b64 %s, v%d offset:%d" % (vr(FB_ + 2, 2), t1, PRIV_SZ), tag="xr")
        a("ds_read_b64 %s, v%d offset:%d" % (vr(R3, 2), t1, 2 * PRIV_SZ), tag="xr")
        a("ds_read_b64 %s, v%d offset:%d" % (vr(R4, 2), t1, 3 * PRIV_SZ), tag="xr")
        a("ds_read_b64 %s, v%d offset:%d" % (vr(R5, 2), t0, 3 * PRIV_SZ), tag="xr")
        a.wl("xr")
        def masked(dst, src, lo, hi):
            a("s_mov_b32 s%d, 0x%x\ns_mov_b32 s%d, 0x%x" % (s_mask, lo, s_mask + 1, hi))
            for k in range(2):
                a("v_cndmask_b32 v%d, 0, v%d, s[%d:%d]" % (dst + k, src + k, s_mask, s_mask + 1))
        masked(FA + 2, R4, 0x0000ffff, 0)
        masked(FB_, R4, 0xffff0000, 0)
        masked(FZA, R3, 0x0f550f55, 0x0f550f55)
        masked(FZA + 2, R5, 0x00000f55, 0)
        masked(FZB + 2, R3, 0xf0aaf0aa, 0xf0aaf0aa)
        masked(FZB, R5, 0xf0aa0000, 0)
        E = 72
        for i in range(2):
            ba = vr(PQ + 6 * i); bb = vr(PQ + 6 * i + 2)
            a("%s %s, %s, %s, 0" % (M, vr(E + 12 * i + 8), vr(FZA), ba))
            a("%s %s, %s, %s, 0" % (M, vr(E + 12 * i), vr(FA), ba))
            a("%s %s, %s, %s, 0" % (M, vr(E + 12 * i + 4), vr(FB_), bb))
            a("%s %s, %s, %s, %s" % (M, vr(E + 12 * i + 8), vr(FZB), bb, vr(E + 12 * i + 8)))
        SC = 96
        O = 108
        a("s_mov_b32 s%d, 0\ns_mov_b32 s%d, 0x0000ffff" % (s_mask, s_mask + 1))
        for i in range(2):
            ez = E + 12 * i + 8; sc = SC + 6 * i
            for h in range(2):
                a("v_add_f32 v%d, s%d, v%d" % (sc + 2 * h, s_eps, ez + h))
                a("v_rcp_f32 v%d, v%d" % (sc + 2 * h, sc + 2 * h))
                a("v_mul_f32 v%d, v%d, v%d" % (sc + 2 * h, sc + 2 * h, OMG + i))
                a("v_mov_b32 v%d, v%d" % (sc + 2 * h + 1, sc + 2 * h))
                a("v_permlane32_swap_b32 v%d, v%d" % (sc + 2 * h, sc + 2 * h + 1))
            a("v_cndmask_b32 v%d, v%d, v%d, s[%d:%d]" % (sc + 4, sc + 2, sc, s_mask, s_mask + 1))
            for k in range(4):
                a("v_mul_f32 v%d, v%d, v%d" % (E + 12 * i + k, E + 12 * i + k, sc))
                a("v_mul_f32 v%d, v%d, v%d" % (E + 12 * i + 4 + k, E + 12 * i + 4 + k, sc + 2))
                a("v_mul_f32 v%d, v%d, v%d" % (ez + k, ez + k, sc + 4))
            for k in range(4):
                a("v_cvt_pk_bf16_f32 v%d, v%d, v%d" % (O + 4 * i + k, E + 12 * i + 2 * k, E + 12 * i + 2 * k + 1))
            for k in range(2):
                a("v_cvt_pk_bf16_f32 v%d, v%d, v%d" % (O + 8 + 2 * i + k, ez + 2 * k, ez + 2 * k + 1))
        for k in range(2):
            a("v_permlane32_swap_b32 v%d, v%d" % (O + 8 + k, O + 10 + k))
        a("s_add_u32 s%d, s%d, %d\ns_add_u32 s%d, s%d, %d" % (s_t0, s_a2p, 160 * 256, s_t1, s_a2p, 160 * 256 + TSTR))
        a("buffer_store_dwordx4 %s, v%d, %s, s%d offen sc1" % (vr(O), v_l16, srd(sWS), s_t0), tag="ost")
        a("buffer_store_dwordx4 %s, v%d, %s, s%d offen sc1" % (vr(O + 4), v_l16, srd(sWS), s_t1), tag="ost")
        a("v_lshrrev_b32 v%d, 1, v%d\nv_mul_u32_u24 v%d, %d, v%d" % (t0, v_q, t0, TSTR, t0))
        a("v_and_b32 v%d, 1, v%d\nv_lshl_add_u32 v%d, v%d, 3, v%d\nv_lshl_add_u32 v%d, v%d, 4, v%d" % (t1, v_q, t0, t1, t0, t0, v_n, t0))
        a("buffer_store_dwordx2 %s, v%d, %s, s%d offen offset:1024 sc1" % (vr(O + 10, 2), t0, srd(sWS), s_t0), tag="ost")
        a("s_waitcnt vmcnt(0)\ns_barrier")
        self.signal(a, s_i, W_CNTO)
        return a

    def gemm2(self):
        a = L()
        t0, t1, t2, t3 = vt
        M = "v_mfma_f32_16x16x32_bf16"
        ACC = 32
        AF = 112
        NAF = 8
        WOA = 240
        vL = [v_l16, 4, 5]
        WF = 200
        a("s_lshr_b32 s%d, s%d, 1\ns_lshl_b32 s%d, s%d, 5\ns_and_b32 s%d, s%d, 1\ns_lshl_b32 s%d, s%d, 2\ns_add_u32 s%d, s%d, s%d"
          % (s_t0, s_w, s_t0, s_t0, s_t1, s_w, s_t1, s_t1, s_t0, s_t0, s_t1))
        a("v_lshl_add_u32 v%d, v%d, 3, s%d" % (t0, v_q, s_t0))
        a("v_mul_u32_u24 v%d, 2560, v%d\nv_lshl_add_u32 v%d, v%d, 2, v%d\nv_add_u32 v%d, 5120, v%d" % (6, t0, 6, v_n, 6, 7, 6))
        a("s_lshl_b32 s%d, s%d, 6\nv_add_u32 v%d, s%d, v%d" % (s_t1, s_rb, t0, s_t1, t0))
        a("v_lshlrev_b32 v%d, 2, v%d\nv_add_u32 v%d, %d, v%d" % (t1, t0, t1, M_G, t1))
        a("ds_read_b128 %s, v%d" % (vr(8), t1), tag="g2")
        a("v_mul_u32_u24 v%d, 1280, v%d\nv_lshlrev_b32 v%d, 1, v%d\nv_add_u32 v%d, v%d, v%d" % (t0, t0, t2, v_n, t0, t0, t2))
        a("s_mul_i32 s%d, s%d, 160" % (s_t1, s_ct))
        for nt in range(5):
            a("buffer_load_ushort v%d, v%d, %s, 0 offen offset:%d" % (12 + nt, t2, srd(sT), 32 * nt), tag="dsk")
        for nt in range(5):
            for r in range(4):
                a("buffer_load_ushort v%d, v%d, %s, s%d offen offset:%d" % (ACC + 4 * nt + r, t0, srd(sX), s_t1, 1280 * r + 32 * nt), tag="xs")
        a("v_lshrrev_b32 v%d, 2, v%d\nv_and_b32 v%d, 3, v%d\nv_mul_u32_u24 v%d, 160, v%d" % (t0, v_lane, t0, t0, t0, t0))
        a("v_and_b32 v%d, 3, v%d\nv_lshl_add_u32 v%d, v%d, 3, v%d" % (t1, v_lane, t0, t1, t0))
        a("s_mul_i32 s%d, s%d, %d\nv_add_u32 v%d, s%d, v%d" % (s_t0, s_w, SLOT, t0, s_t0, t0))
        a("s_sub_u32 s%d, s%d, s%d\ns_sub_u32 s%d, s%d, %d" % (s_t1, s_priv, s_t0, s_t1, s_t1, SLOT))
        a("v_lshlrev_b32 v%d, 3, v%d\nv_mov_b32 v%d, 640" % (t1, v_q, t3))
        for kap in range(5):
            for e in range(2):
                K = 0; big = False
                for q in range(4):
                    oc = 4 * kap + q; jl, u = divmod(oc, 5)
                    r4 = 10 * jl + (u if e == 0 else (6 + u if u < 4 else 5))
                    K |= r4 << (8 * q); big |= r4 >= 32
                d = WOA + 2 * kap + e
                a("s_mov_b32 s%d, 0x%x\nv_bfe_u32 v%d, s%d, v%d, 8" % (s_t2, K, t2, s_t2, t1))
                a("v_mad_u32_u24 v%d, v%d, v%d, v%d" % (d, t2, t3, t0))
                if big:
                    a("v_lshrrev_b32 v%d, 5, v%d\nv_mad_u32_u24 v%d, v%d, s%d, v%d" % (t2, t2, d, t2, s_t1, d))
        a("v_add_u32 v4, 4096, v%d\nv_add_u32 v5, 8192, v%d" % (v_l16, v_l16))
        for ml in range(4):
            a("s_add_u32 s%d, s%d, %d\ns_and_b32 s%d, s%d, 3" % (s_t0, s_w, ml, s_t0, s_t0))
            a("s_lshl_b32 s%d, s%d, 3\ns_add_u32 s%d, s%d, s%d\ns_lshl_b32 s%d, s%d, 2\ns_add_u32 s%d, s%d, s%d" % (s_t1, s_i, s_t0, s_t0, s_t1, s_t1, s_rb, s_t0, s_t0, s_t1))
            a("s_mul_i32 s%d, s%d, %d\ns_mul_i32 s%d, s%d, 10240\ns_add_u32 s%d, s%d, s%d\ns_add_u32 s%d, s%d, %d" % (s_t0, s_t0, TSTR, s_t1, s_w, s_t0, s_t0, s_t1, s_am + ml, s_t0, W_A2))
        a.wv("xs"); a.wl("g2")
        for nt in range(5):
            a("v_lshlrev_b32 v%d, 16, v%d" % (12 + nt, 12 + nt))
        for nt in range(5):
            for r in range(4):
                c = ACC + 4 * nt + r
                a("v_lshlrev_b32 v%d, 16, v%d\nv_mul_f32 v%d, v%d, v%d\nv_mul_f32 v%d, v%d, v%d" % (c, c, c, c, 12 + nt, c, c, 8 + r))
        def aload(k):
            b = L()
            kk = k if k < 10 else k - 10
            if k == 10:
                self.wait_cnt(b, s_i, W_CNTO, 16, "pO")
                b("s_mul_i32 s%d, s%d, 5120\ns_sub_u32 s%d, 40960, s%d" % (s_t0, s_w, s_t0, s_t0))
                for ml in range(4): b("s_add_u32 s%d, s%d, s%d" % (s_am + ml, s_am + ml, s_t0))
            for ml in range(4):
                b("buffer_load_dwordx4 %s, v%d, %s, s%d offen offset:%d sc1" % (vr(AF + 16 * (k % NAF) + 4 * ml), vL[kk // 4], srd(sWS), s_am + ml, 1024 * (kk % 4)), tag="a%d" % k)
            return b
        def woreads(kap):
            b = L()
            for nt in range(5):
                for e in range(2):
                    b("ds_read_b64_tr_b16 %s, v%d offset:%d" % (ar(WF + 20 * (kap & 1) + 4 * nt + 2 * e, 2), WOA + 2 * kap + e, 32 * nt), tag="wf%d" % kap)
            return b
        self.wait_cnt(a, s_i, W_CNTH, 16, "pH")
        for k in range(NAF): a.extend(aload(k))
        a.wv("wo")
        for k in range(15):
            m = L()
            for ml in range(4):
                for nt in range(5):
                    d = ACC + 20 * ml + 4 * nt
                    w = ar(self.w2reg(k, nt)) if k < 10 else ar(WF + 20 * (k & 1) + 4 * nt)
                    m("%s %s, %s, %s, %s" % (M, vr(d), vr(AF + 16 * (k % NAF) + 4 * ml), w, vr(d) if (k or ml == 0) else "0"))
            side = L()
            if 9 <= k < 14: side.extend(woreads(k - 9))
            a.wv("a%d" % k)
            if k >= 10: a.wl("wf%d" % (k - 10))
            a.extend(interleave(m, side, 1, 1))
            if k + NAF < 15: a.extend(aload(k + NAF))
        a("s_mul_i32 s%d, s%d, %d\nv_add_u32 v%d, s%d, v%d" % (s_t0, s_w, SLOT, t0, s_t0, v_l16))
        for ml in range(1, 4):
            for nt in range(5):
                a("ds_write_b128 v%d, %s offset:%d" % (t0, vr(ACC + 20 * ml + 4 * nt), ((ml - 1) * 5 + nt) * 1024), tag="rw")
        for ml in range(1, 4):
            a("s_sub_u32 s%d, s%d, %d\ns_and_b32 s%d, s%d, 3\ns_mul_i32 s%d, s%d, %d\nv_add_u32 v%d, s%d, v%d" % (s_t0, s_w, ml, s_t0, s_t0, s_t0, s_t0, SLOT, vt[ml], s_t0, v_l16))
        a.wl("rw"); a("s_barrier")
        for nt in range(5):
            for ml in range(1, 4):
                a("ds_read_b128 %s, v%d offset:%d" % (vr(AF + 12 * nt + 4 * (ml - 1)), vt[ml], ((ml - 1) * 5 + nt) * 1024), tag="rr%d" % nt)
        for nt in range(5):
            a.wl("rr%d" % nt)
            b = AF + 12 * nt; c = ACC + 4 * nt
            for h in (0, 2):
                a("v_pk_add_f32 %s, %s, %s" % (vr(b + h, 2), vr(b + h, 2), vr(b + 4 + h, 2)))
                a("v_pk_add_f32 %s, %s, %s" % (vr(c + h, 2), vr(c + h, 2), vr(b + 8 + h, 2)))
            for h in (0, 2):
                a("v_pk_add_f32 %s, %s, %s" % (vr(c + h, 2), vr(c + h, 2), vr(b + h, 2)))
            for r in range(4):
                a("buffer_store_dword v%d, v%d, %s, 0 offen offset:%d" % (c + r, 6 + (r >> 1), srd(sOUT), 2560 * (r & 1) + 64 * nt), tag="out")
        return a

def make(stamps=False):
    g = Gen(stamps)
    ins = g.build()
    ins = resolve_waits(ins)
    ins = hazards(ins, verbose=True)
    K = NAME + "_kernel"
    body = render(ins)
    txt = header([(K, 256, 256, 163840)]) + kernel_begin(K) + body + "L_codeend:\n" + rodata() + descriptor(K, 512, 102, 256)
    return txt, g.nst

if __name__ == "__main__":
    out = sys.argv[1]; stamps = len(sys.argv) > 2 and sys.argv[2] == "1"
    txt, nst = make(stamps)
    open(out, "w").write(txt)
    print("stamps:", nst + 1)
```

```python
import re

TRANS = ("v_exp_f32", "v_log_f32", "v_rcp_f32", "v_rsq_f32", "v_sqrt_f32", "v_sin_f32", "v_cos_f32")

class I:
    __slots__ = ("text", "kind", "tag", "raw", "opt")
    def __init__(self, text, kind=None, tag=None, raw=False, opt=False):
        self.text = text.strip()
        self.tag = tag
        self.opt = opt
        self.raw = raw
        self.kind = kind or classify(self.text)
    def __repr__(self):
        return self.text

def classify(t):
    if t.endswith(":"): return "label"
    if t.startswith("."): return "dir"
    if t.startswith(";"): return "dir"
    m = t.split()[0]
    if m.startswith("v_mfma"): return "mfma"
    if m.startswith("v_"): return "valu"
    if m.startswith("ds_"): return "ds"
    if m.startswith("buffer_") or m.startswith("global_"): return "vmem"
    if m.startswith("s_load") or m.startswith("s_buffer_load") or m.startswith("s_memrealtime") or m.startswith("s_memtime"): return "smem"
    if m == "s_waitcnt": return "wait"
    if m == "s_nop": return "nop"
    if m == "s_barrier": return "barrier"
    if m.startswith("s_cbranch") or m == "s_branch" or m == "s_endpgm" or m == "s_setpc_b64": return "branch"
    if m.startswith("s_"): return "salu"
    raise ValueError("cannot classify " + t)

def WV(tag, opt=False): return I("WAITVM", "waitvm", tag, opt=opt)
def WL(tag, opt=False): return I("WAITLGKM", "waitlgkm", tag, opt=opt)

class L(list):
    def __call__(self, s, tag=None, raw=False, opt=False):
        for l in s.split("\n"):
            l = l.strip()
            if l:
                self.append(I(l, tag=tag, raw=raw, opt=opt))
        return self
    def delay(self, n): self.append(I("DELAY", "delay", n)); return self
    def wv(self, tag, opt=False): self.append(WV(tag, opt)); return self
    def wl(self, tag, opt=False): self.append(WL(tag, opt)); return self

def resolve_waits(ins):
    out = []
    q = {"vm": [], "lg": []}
    done = {"vm": 0, "lg": 0}
    smem_pending = False
    def done_after(lst, n):
        k = len(lst); c = 0
        while k > 0 and c < n:
            k -= 1
            if lst[k][1]: c += 1
        return k if c == n else 0
    for i in ins:
        if i.kind == "delay": continue
        if i.raw:
            out.append(i); continue
        if i.kind == "vmem": q["vm"].append((i.tag, not i.opt))
        elif i.kind == "ds": q["lg"].append((i.tag, not i.opt))
        elif i.kind == "smem": smem_pending = True
        elif i.kind == "wait" and not i.opt:
            m = re.search(r"vmcnt\((\d+)\)", i.text)
            if m: done["vm"] = max(done["vm"], done_after(q["vm"], int(m.group(1))))
            m = re.search(r"lgkmcnt\((\d+)\)", i.text)
            if m:
                if int(m.group(1)) == 0: smem_pending = False
                if not smem_pending: done["lg"] = max(done["lg"], done_after(q["lg"], int(m.group(1))))
        if i.kind in ("waitvm", "waitlgkm"):
            c = "vm" if i.kind == "waitvm" else "lg"
            lst = q[c]
            idx = [k for k, t in enumerate(lst) if t[0] == i.tag]
            assert idx, "wait on unknown tag %s" % i.tag
            need = idx[-1] + 1
            if need <= done[c]: continue
            n = min(63 if c == "vm" else 15, sum(1 for t in lst[need:] if t[1]))
            if c == "lg" and smem_pending:
                n = 0
                if not i.opt: smem_pending = False
            if not i.opt: done[c] = max(done[c], done_after(lst, n), need)
            txt = ("vmcnt(%d)" if c == "vm" else "lgkmcnt(%d)") % n
            if out and out[-1].kind == "wait" and not out[-1].raw and out[-1].opt == i.opt and txt.split("(")[0] not in out[-1].text:
                out[-1] = I(out[-1].text + " " + txt, opt=i.opt)
            else:
                out.append(I("s_waitcnt " + txt, opt=i.opt))
            continue
        out.append(i)
    return out

_reg = re.compile(r"^-?(?:\|)?(?:abs\()?([vas])(?:(\d+)|\[(\d+):(\d+)\])\)?(?:\|)?$")
def regs(op):
    op = op.strip()
    if op in ("vcc", "exec", "m0", "scc"): return {op}
    if op in ("vcc_lo", "vcc_hi"): return {"vcc"}
    m = _reg.match(op)
    if not m: return set()
    c = m.group(1)
    if m.group(2) is not None: return {c + m.group(2)}
    return {c + str(k) for k in range(int(m.group(3)), int(m.group(4)) + 1)}

def operands(t):
    parts = t.split(None, 1)
    if len(parts) < 2: return []
    rest = parts[1].split(";")[0]
    ops = [o.strip() for o in rest.split(",")]
    res = []
    for o in ops:
        res.append(o.split()[0] if o else o)
    return res

def rw(i):
    t = i.text; m = t.split()[0]; ops = operands(t)
    W = set(); R = set(); info = {}
    if i.kind == "mfma":
        W = regs(ops[0]); info["A"] = regs(ops[1]); info["B"] = regs(ops[2]); info["C"] = regs(ops[3])
        R = info["A"] | info["B"] | info["C"]
        info["passes"] = 8 if "32x32" in m else 4
    elif i.kind == "valu":
        W = regs(ops[0])
        for o in ops[1:]: R |= regs(o)
        if m.startswith(("v_fmac", "v_mac", "v_dot2c", "v_pk_fmac", "v_writelane")): R |= W
        if "permlane" in m and "swap" in m:
            W = regs(ops[0]) | regs(ops[1]); R = set(W); info["permlane"] = True
        if m.startswith(("v_add_co", "v_sub_co", "v_addc_co", "v_subb_co")):
            W |= regs(ops[1]); R = set()
            for o in ops[2:]: R |= regs(o)
        if m.startswith("v_cndmask") and len(ops) == 3: R.add("vcc")
        if m.startswith("v_cmpx"): W.add("exec")
        if "row_" in t or "quad_perm" in t or "_dpp" in m:
            info["dpp"] = regs(ops[1])
            if "bound_ctrl" not in t: R |= regs(ops[0])
        if m.split("_e")[0] in TRANS or m in TRANS: info["trans"] = True
        if m.startswith(("v_readfirstlane", "v_readlane")): info["readlane"] = True
    elif i.kind == "ds":
        if m.startswith(("ds_read", "ds_bpermute", "ds_swizzle", "ds_permute")):
            W = regs(ops[0])
            for o in ops[1:]: R |= regs(o)
        else:
            for o in ops: R |= regs(o)
    elif i.kind == "vmem":
        lds = re.search(r"\blds\b", t) is not None
        if "load" in m and not lds:
            W = regs(ops[0])
            for o in ops[1:]: R |= regs(o)
            if "d16" in m: R |= W
        else:
            for o in ops: R |= regs(o)
            if lds: R.add("m0"); info["ldsdma"] = True
            if "store" in m and ("x3" in m or "x4" in m):
                info["widestore"] = regs(ops[0]) if m.startswith("buffer") else regs(ops[1])
    elif i.kind in ("salu", "smem"):
        if m.startswith(("s_cmp", "s_bitcmp", "s_setprio", "s_sleep")):
            for o in ops: R |= regs(o)
        else:
            if ops: W = regs(ops[0])
            for o in ops[1:]: R |= regs(o)
            if "saveexec" in m: W.add("exec")
    return W, R, info

def isv(s): return {r for r in s if r[0] in "va" and r not in ("vcc",)}
def iss(s): return {r for r in s if r[0] == "s" or r in ("vcc",)}

def hazards(ins, verbose=False):
    out = []
    hist = []
    nins = 0
    for i in ins:
        if i.kind in ("label", "dir"):
            out.append(i); continue
        W, R, info = rw(i)
        need = 0
        dist = 0
        for (p, pW, pR, pinfo, st) in reversed(hist):
            if dist >= 20: break
            req = 0
            if p.kind == "valu":
                vW = isv(pW); sW = iss(pW)
                if i.kind == "mfma" and vW & R: req = max(req, 2)
                if i.kind == "valu":
                    if info.get("dpp") and vW & info["dpp"]: req = max(req, 2)
                    if info.get("permlane") and vW & R: req = max(req, 2)
                    if info.get("readlane") and vW & R: req = max(req, 1)
                    if pinfo.get("trans") and vW & R: req = max(req, 1)
                    if sW & R: req = max(req, 4 if info.get("readlane") else 2)
                    if "exec" in pW and (info.get("dpp")): req = max(req, 5)
                    if "exec" in pW and (info.get("readlane") or info.get("permlane")): req = max(req, 4)
                if i.kind == "mfma" and "exec" in pW: req = max(req, 4)
                if i.kind == "vmem" and sW & R: req = max(req, 5)
                if i.kind in ("salu", "branch") and sW & R: req = max(req, 1)
                if i.kind == "branch" and "vcc" in pW and "vcc" in i.text: req = max(req, 1)
            elif p.kind == "mfma":
                n = pinfo["passes"]
                full = {4: 8, 8: 12}[n]; ovl = {4: 6, 8: 10}[n]; war = {4: 3, 8: 7}[n]
                if i.kind == "mfma":
                    if pW & (info["A"] | info["B"]): req = max(req, full)
                    if pW & info["C"] and not (pW == info["C"] and info["passes"] == n): req = max(req, ovl)
                    if pW & W and not (pW == info["C"]): req = max(req, ovl)
                elif i.kind == "valu":
                    if pW & (R | W): req = max(req, full)
                    if pinfo["C"] & W: req = max(req, war)
                elif i.kind in ("ds", "vmem"):
                    if pW & (R | W): req = max(req, full)
            elif p.kind == "salu":
                if "m0" in pW and info.get("ldsdma"): req = max(req, 1)
            elif p.kind == "vmem":
                if pinfo.get("widestore") and pinfo["widestore"] & W: req = max(req, 2 if i.kind == "valu" else 1)
            elif p.kind == "ds":
                if p.text.startswith(("ds_write_b128", "ds_write_b96")) and (pR & W) and i.kind == "valu": req = max(req, 1)
            need = max(need, req - dist)
            if (not p.opt) or p.opt == i.opt: dist += st
        if need > 0:
            nop = I("s_nop %d" % (need - 1), raw=i.raw, opt=i.opt)
            out.append(nop); hist.append((nop, set(), set(), {}, need)); nins += 1
        out.append(i)
        st = 1
        if i.kind == "nop": st = int(i.text.split()[1]) + 1
        hist.append((i, W, R, info, st))
        if len(hist) > 40: hist = hist[-30:]
    if verbose: print("hazard nops inserted:", nins)
    return out

def interleave(main, side, every=1, per=1, start=0):
    out = L(); k = 0; c = 0
    for i in main:
        out.append(i)
        if i.kind == "mfma":
            c += 1
            if c > start and (c - start) % every == 0:
                n = 0
                while k < len(side) and n < per:
                    out.append(side[k])
                    if side[k].kind not in ("waitvm", "waitlgkm", "label", "dir"): n += 1
                    k += 1
    out.extend(side[k:])
    return out

def render(ins):
    return "\n".join((i.text if i.kind in ("label",) else "    " + i.text) for i in ins) + "\n"

class G(list):
    pass

def cost(x):
    if isinstance(x, G): return sum(cost(i) for i in x)
    return 0 if x.kind in ("waitvm", "waitlgkm", "label", "dir", "delay") else 1

def flat(xs):
    out = L()
    for x in xs:
        if isinstance(x, G): out.extend(x)
        else: out.append(x)
    return out

def split(stream, n):
    tot = sum(cost(x) for x in stream)
    pieces = [[] for _ in range(n)]
    acc = 0
    for x in stream:
        k = min(n - 1, int(acc * n / max(tot, 1)))
        pieces[k].append(x)
        acc += cost(x)
    return pieces

def merge(streams):
    streams = [s for s in streams if s]
    tot = [max(1, sum(cost(x) for x in s)) for s in streams]
    pos = [0] * len(streams); done = [0] * len(streams)
    out = []
    while True:
        best = None
        for k, s in enumerate(streams):
            if pos[k] < len(s):
                f = done[k] / tot[k]
                if best is None or f < best[0]: best = (f, k)
        if best is None: break
        k = best[1]
        x = streams[k][pos[k]]; pos[k] += 1; done[k] += cost(x)
        out.append(x)
    return out

def weave(mf, side):
    out = L()
    pieces = split(side, len(mf))
    for m, p in zip(mf, pieces):
        out.append(m); out.extend(flat(p))
    return out


def wcost(x):
    if isinstance(x, G): return sum(wcost(i) for i in x)
    k = x.kind
    if k in ("label", "dir", "delay"): return 0.0
    if k in ("waitvm", "waitlgkm", "wait", "salu", "nop", "branch", "barrier"): return 0.6
    if k == "valu":
        m = x.text.split()[0]
        return 2.0 if m in TRANS else 1.0
    if k == "ds": return 3.0 if x.text.startswith("ds_write_b128") else 1.0
    if k == "vmem": return 1.5
    if k == "mfma": return 2.0
    return 1.0

class Sched:
    def __init__(self, counts):
        self.counts = counts
        self.start = [0]
        for c in counts: self.start.append(self.start[-1] + c)
        n = self.start[-1]
        self.gap = [[] for _ in range(n)]
        self.load = [0.0] * n
    def rng(self, g0, g1):
        def pos(g, end):
            k = int(g); f = g - k
            if f == 0: return self.start[k + 1] if end else self.start[k]
            return self.start[k] + int(round(f * self.counts[k]))
        return pos(g0, False), pos(g1, True)
    def place(self, stream, g0, g1):
        a, b = self.rng(g0, g1)
        stream = list(stream)
        ndelay = sum(x.tag for x in stream if not isinstance(x, G) and x.kind == "delay")
        tot = sum(wcost(x) for x in stream)
        lo, hi = 0.0, tot + max(self.load[a:b]) + 10
        def run(level, commit):
            k = a; cur = self.load[k]
            for x in stream:
                if not isinstance(x, G) and x.kind == "delay":
                    k += x.tag
                    if k >= b:
                        if not commit: return False
                        k = b - 1
                    cur = self.load[k]; continue
                c = wcost(x)
                while cur + c * 0.5 > level:
                    if k + 1 >= b:
                        if not commit: return False
                        break
                    k += 1; cur = self.load[k]
                if commit:
                    self.gap[k].append(x); self.load[k] += c
                cur += c
            return True
        for _ in range(30):
            mid = (lo + hi) / 2
            if run(mid, False): hi = mid
            else: lo = mid
        run(hi, True)
    def spread(self, stream, g0, g1):
        a, b = self.rng(g0, g1)
        units = []; cur = []
        for x in stream:
            cur.append(x)
            if isinstance(x, G) or x.kind in ("vmem", "ds"):
                units.append(cur); cur = []
        if cur:
            if units: units[-1].extend(cur)
            else: units.append(cur)
        n = len(units)
        for z, u in enumerate(units):
            k = a + (z * (b - a)) // n
            self.gap[k].extend(u); self.load[k] += sum(wcost(x) for x in u)
    def at(self, stream, g):
        a, b = self.rng(g, g if g == int(g) else int(g))
        self.gap[a].extend(stream); self.load[a] += sum(wcost(x) for x in stream)
    def emit(self, step, mf):
        out = L()
        for k, m in enumerate(mf):
            out.append(m); out.extend(flat(self.gap[self.start[step] + k]))
        return out


def check_m0(ins, sregs):
    last = {}
    for i in ins:
        if i.raw: continue
        if i.kind == "salu":
            W, R, _ = rw(i)
            for r in W:
                if r == "m0" or r in sregs: last[r] = i.tag
        elif i.kind == "vmem":
            W, R, info = rw(i)
            for r in R:
                if r == "m0" or r in sregs:
                    assert last.get(r) == i.tag, "packet clash on %s: %s (tag %s, set by %s)" % (r, i.text, i.tag, last.get(r))
```

```python
import sys, struct
from asmgen import NAME, header, kernel_begin, descriptor, rodata, STAMP_OFF
from ir import *

def f2u(x): return struct.unpack("<I", struct.pack("<f", x))[0]
SLOT = 20480
PRIV = 81920; PRIV_SZ = 17408; P_HT = 12288
L_KVR = SLOT; L_RP0 = 3 * SLOT
MISC = PRIV + 4 * PRIV_SZ
M_G = MISC; M_GATE = MISC + 512; M_S = MISC + 2560; M_PARAM = M_S; L_KVX = M_S; M_RP = MISC + 8960
C_R, C_W = 0, 256
C_H, C_O = 0, 256
W_AGG = 0x10000; W_KVP = 0x40000; W_A2 = 0x200000
W_KVI = 0xA00000; W_QI = 0xC00000; W_WOI = 0xD00000
TSTR = 61440
LOG2E = 0x3fb8aa3b; EPS = f2u(1e-6); NEL = f2u(-1e-6 * 1.4426950408889634)
OOB = 0x7ffffff0

sX, sB, sRP, sC, sWS, sOUT, sDBG, sAG, sT = 48, 52, 56, 60, 64, 68, 72, 76, 80
sDSK = sB
def srd(b): return "s[%d:%d]" % (b, b + 3)
s_w, s_i, s_j, s_ct, s_rb, s_priv, s_wm0, s_bm0 = 3, 4, 5, 6, 7, 8, 9, 10
s_t0, s_t1, s_t2, s_t3, s_so = 11, 12, 13, 14, 15
s_cj, s_ci, s_rstep, s_rlds, s_w1, s_cct = 84, 85, 86, 87, 88, 89
s_am = 90; s_log2e, s_eps, s_a2p, s_spin, s_mask = 94, 95, 96, 97, 98
s_aggst, s_kvpst = 34, 35
s_kvi, s_aggld, s_aggld2, s_kvpld, s_woi, s_pt = 16, 17, 24, 25, 28, 29
s_qb, s_wob = 36, 37
s_kb = [0, 1, 2, 38, 39]
s_qo = [40, 41, 45]
s_lo2 = 46
so_u = [18, 19, 20, 21, 30]
s_ao, s_ao2 = 22, 23

v_lane, v_n, v_q = 1, 2, 3
vXA = [4, 5]; vBA = [6, 7, 8, 9]; vGA = 10; vDX = [11, 12, 13, 14]; vDW = [15, 16, 17, 18, 19]
v_l16, v_col4 = 20, 21
vA8, vB8, vA128, vB128 = 22, 23, 24, 25
v_poll, v_one = 26, 27
vt = [28, 29, 30, 31]
v_nel = vGA
U0 = 32; KV0 = 80; Q0 = 52; S0 = 120; TE = 136; FB0 = 144; PR0 = 192
v_zero, v_crd, v_cwr = TE + 5, TE + 6, TE + 7
RA, RB, RT, v_ct = 72, 73, 74, 75
vY, vI0, vI1, vI2, vWE = 76, 77, 78, 79, 9
RD1 = 236
EPSQ = 222; EPSX = 226; TT = 232
vC = [184, 185]; v_srow, v_htw, v_htr, v_hst, v_sad, v_kvw = 186, 187, 188, 189, 190, 191
vL4 = [v_l16, vA8, vB8, vA128]
v_o0, v_o1 = vDX[0], vDX[1]
vRX = [vDW[0], vDW[1], vDW[2], vDW[3]]
ACC = 32; AF = 112; NAF = 4; GB = 176; PQ = 240; OMG = 252
AO = 104
WE = list(range(184, 256, 4)) + [0, 4]
WSLOT = [2, 1, 3, 0]
def vr(b, n=4): return "v[%d:%d]" % (b, b + n - 1)
def ar(b, n=4): return "a[%d:%d]" % (b, b + n - 1)
DPP = "row_ror:8 row_mask:0xf bank_mask:0xf"
M = "v_mfma_f32_16x16x32_bf16"
def grp(s, tag=None): return G(L()(s, tag=tag))

class Gen:
    def __init__(self, stamps=0, mapping="4x8", rot="xcd", outflag="sc1", opt=None):
        self.stamps = stamps; self.mapping = mapping; self.rot = rot; self.outflag = outflag
        self.opt = opt or {}
        self.slow = L(); self.nst = 2; self.nl = 0; self.names = ["rt0", "start"]
    def label(self, b):
        self.nl += 1
        return "L_%s_%d" % (b, self.nl)
    def stamp(self, a, name="", level=1, real=False):
        if self.stamps and self.stamps >= level:
            k = self.nst; self.nst += 1
            assert k < 62
            self.names.append(name)
            a.append(grp("%s s[100:101]\ns_waitcnt lgkmcnt(0)\nv_writelane_b32 v0, s100, %d" % ("s_memrealtime" if real else "s_memtime", k)))
    def only(self, cond, body):
        lab = self.label("skip")
        g = L()
        g({"w0": "s_cmp_eq_u32 s%d, 0", "lo": "s_cmp_lt_u32 s%d, 2", "hi": "s_cmp_ge_u32 s%d, 2", "n3": "s_cmp_lt_u32 s%d, 3", "w3": "s_cmp_eq_u32 s%d, 3"}[cond] % s_w)
        g("s_cbranch_scc0 %s" % lab)
        for i in flat(body):
            i.opt = lab; g.append(i)
        g(lab + ":")
        return G(g)
    def spin_head(self, s, slow):
        s(slow + ":", raw=True)
        s("s_sub_u32 s%d, s%d, 1\ns_cmp_eq_u32 s%d, 0\ns_cbranch_scc1 L_end" % (s_spin, s_spin, s_spin), raw=True)
    def poll_issue(self, srdb, soff, imm, tag):
        return L()("buffer_load_dword v%d, off, %s, %s offset:%d sc1" % (v_poll, srd(srdb), soff, imm), tag=tag)
    def poll_check(self, srdb, soff, imm, tag, target):
        slow = self.label("slow"); back = self.label("back")
        g = L()
        g.wv(tag)
        g("v_readfirstlane_b32 s%d, v%d" % (s_pt, v_poll))
        g("s_cmp_ge_u32 s%d, %d\ns_cbranch_scc0 %s" % (s_pt, target, slow))
        g(back + ":")
        s = self.slow
        self.spin_head(s, slow)
        s("buffer_load_dword v%d, off, %s, %s offset:%d sc1" % (v_poll, srd(srdb), soff, imm), raw=True)
        s("s_waitcnt vmcnt(0)\nv_readfirstlane_b32 s%d, v%d\ns_nop 1\ns_cmp_ge_u32 s%d, %d" % (s_pt, v_poll, s_pt, target), raw=True)
        s("s_cbranch_scc0 %s\ns_branch %s" % (slow, back), raw=True)
        return [G(g)]
    def signal(self, pairs, pre=None):
        b = L()
        if pre: b.extend(pre)
        b("s_mov_b64 exec, 1")
        for sreg, imm in pairs: b("buffer_atomic_add v%d, off, %s, s%d offset:%d sc1" % (v_one, srd(sWS), sreg, imm), tag="at")
        b("s_mov_b64 exec, -1")
        return [self.only("w0", b)]

    def dma_x(self, sg):
        a = L(); e = sg & 1; tag = "x%d" % sg
        if sg >= 4: a.wl("xr%d" % (sg - 4))
        a("s_add_u32 m0, s%d, %d" % (s_priv, 4096 * (sg & 3) - 128 * e), tag=tag)
        for ph in range(4):
            a("buffer_load_dwordx4 v%d, %s, s%d offen offset:%d lds" % (vDX[ph], srd(sX), s_kb[sg >> 1], 1024 * ph + 128 * e), tag=tag)
        return a
    def dma_w(self, st):
        a = L()
        slot = st % 4; tag = "w%d" % st
        if st < 5:
            a("s_add_u32 m0, s%d, %d" % (s_bm0, slot * SLOT), tag=tag)
            for ph in range(4):
                a("buffer_load_dwordx4 v%d, %s, s%d offen offset:%d lds" % (vDW[ph], srd(sB), s_kb[st], 1024 * ph), tag=tag)
            a("s_add_u32 m0, s%d, %d" % (s_bm0, slot * SLOT + 4096), tag=tag)
            a("buffer_load_dwordx4 v%d, %s, s%d offen lds" % (vDW[4], srd(sB), s_kb[st]), tag=tag)
            return a
        if st < 10:
            a("s_mul_i32 s%d, s%d, 80\ns_add_u32 s%d, s%d, s%d" % (s_so, s_kb[st - 5], s_so, s_so, s_kvi), tag=tag)
            so = s_so
        else:
            so = s_qo[st - 10]
        a("s_add_u32 m0, s%d, %d" % (s_wm0, slot * SLOT), tag=tag)
        for ph in range(4):
            a("buffer_load_dwordx4 v%d, %s, s%d offen offset:%d sc1 lds" % (v_l16, srd(sWS), so, 1024 * ph), tag=tag)
        a("s_add_u32 m0, s%d, %d\ns_add_u32 s%d, s%d, 4096" % (s_wm0, slot * SLOT + 4096, s_so, so), tag=tag)
        a("buffer_load_dwordx4 v%d, %s, s%d offen sc1 lds" % (v_l16, srd(sWS), s_so), tag=tag)
        if st == 12:
            return [self.only("lo", a[:3]), self.only("lo", a[3:5]), self.only("lo", a[5:])]
        return a
    NCU = 6
    def c_reg(self, kap, nt):
        u = (kap >> 1) * 5 + nt
        return (160 + 8 * u if u < 12 else 8 * (u - 12)) + 4 * (kap & 1)
    def dma_c(self, u):
        a = L(); sg, nt = divmod(u, 5); tag = "c%d" % u
        if u >= self.NCU: a.wl("cr%d" % (u - self.NCU))
        a("s_add_u32 m0, s%d, %d" % (s_priv, 2048 * (u % self.NCU)), tag=tag)
        a("s_mov_b32 s%d, %d" % (s_so, nt * 20480 + 128 * sg), tag=tag)
        for h in range(2):
            a("buffer_load_dwordx4 v%d, %s, s%d offen offset:%d lds" % (vC[h], srd(sC), s_so, 1024 * h), tag=tag)
        return a
    def rd_c(self, u):
        a = L(); sg, nt = divmod(u, 5)
        a.wv("c%d" % u)
        for e in range(2):
            a("ds_read_b128 %s, v%d offset:%d" % (ar(self.c_reg(2 * sg + e, nt)), vXA[e], 2048 * (u % self.NCU)), tag="cr%d" % u)
        return a
    def rp_issue(self, rnd):
        b = L(); tag = "rp%d" % rnd
        b("s_mov_b32 exec_hi, 0xff\ns_mov_b32 m0, s%d\ns_mov_b32 s%d, 0" % (s_rlds, s_so), tag=tag)
        for u in range(5):
            b("buffer_load_dwordx4 v%d, %s, s%d offen offset:%d lds" % (RA if u < 4 else RB, srd(sRP), s_so, 640 * u), tag=tag)
            if u < 4: b("s_add_u32 s%d, s%d, s%d" % (s_so, s_so, s_rstep), tag=tag)
        b("s_mov_b32 exec_hi, -1")
        return [self.only("n3" if rnd == 0 else "w3", b)]
    def rp_read(self, rnd):
        b = L()
        b.wv("rp%d" % rnd)
        for u in range(5):
            for e in range(2):
                b("ds_read_b64_tr_b16 %s, v%d offset:%d" % (vr(KV0 + 4 * u + 2 * e, 2) if rnd == 0 else ar(RD1 + 4 * u + 2 * e, 2), RT, 640 * u + 320 * e), tag="rr%d" % rnd)
        return [self.only("n3" if rnd == 0 else "w3", b)]
    def rp_store(self, rnd, us):
        b = L()
        b.wl("rr%d" % rnd)
        b("s_mov_b32 exec_hi, 0xff")
        for u in us:
            b("buffer_store_dwordx4 %s, v%d, %s, s%d offen sc1" % (vr(KV0 + 4 * u) if rnd == 0 else ar(RD1 + 4 * u), v_l16, srd(sWS), so_u[u]), tag="rs%d" % rnd)
        b("s_mov_b32 exec_hi, -1")
        return [self.only("n3" if rnd == 0 else "w3", b)]

    def stage_of(self, g):
        if g < 40: return g // 4, g % 4
        return 10 + (g - 40) // 8, (g - 40) % 8
    def fb(self, g): return FB0 + (20 if g < 40 else 12) * (g & 1)
    def frag_reads(self, g):
        a = L()
        st, kk = self.stage_of(g)
        slot = st % 4; hi = slot >= 2; off = (slot - 2 * hi) * SLOT
        fb = self.fb(g); tag = "f%d" % g
        if g < 20:
            adr = vBA[(kk & 1) + 2 * hi]
            for t in range(5):
                a("ds_read_b128 %s, v%d offset:%d" % (vr(fb + 4 * t), adr, off + 10240 * (kk >> 1) + 1024 * t), tag=tag + "_%d" % t)
        elif g < 40:
            o = off + 5120 * kk
            for t, (adr, to) in enumerate([(0, 0), (0, 384), (1, 0), (0, 640), (0, 1024)]):
                a("ds_read_b128 %s, v%d offset:%d" % (vr(fb + 4 * t), vBA[adr + 2 * hi], o + to), tag=tag + "_%d" % t)
        else:
            o = off + 5120 * (kk >> 1) + 640 * (kk & 1)
            a("ds_read_b128 %s, v%d offset:%d" % (vr(fb), vBA[2 * hi], o), tag=tag + "_0")
            y = L()("ds_read_b128 %s, v%d" % (vr(fb + 4), vY), tag=tag + "_1")
            if g < 59: y("v_add_u32 v%d, v%d, v%d" % (vY, vY, vI2 if g == 55 else vI1 if g & 1 else vI0))
            a.append(G(y))
            a("ds_read_b128 %s, v%d offset:%d" % (vr(fb + 8), vBA[2 * hi], o + 384), tag=tag + "_2")
        return a
    def x_reads(self, sg):
        a = L(); tag = "xr%d" % sg
        for e in range(2):
            for i in range(2):
                a("ds_read_b128 %s, v%d offset:%d" % (ar(8 * (2 * sg + e) + 4 * i), vXA[e], 4096 * (sg & 3) + 2048 * i), tag=tag)
        return a
    def mfmas(self, g):
        a = L()
        if g >= 60:
            k = g - 60
            for ml in ((0, 1, 2, 3) if k < 9 else (1, 2, 3, 0)):
                for nt in range(5):
                    dd = ACC + 20 * ml + 4 * nt
                    a("%s %s, %s, %s, %s" % (M, vr(dd), vr(AF + 16 * (k % NAF) + 4 * ml), ar(self.c_reg(k, nt)), vr(dd) if k else "0"))
            return a
        ks = g % 20; fb = self.fb(g)
        if g < 20:
            for t in range(5):
                for i in range(2):
                    d = U0 + 8 * t + 4 * i
                    a("%s %s, %s, %s, %s" % (M, vr(d), ar(8 * ks + 4 * i), vr(fb + 4 * t), vr(d) if ks else "0"))
        elif g < 40:
            for t in range(5):
                for i in range(2):
                    d = KV0 + 8 * t + 4 * i
                    c0 = [vr(EPSQ), vr(EPSQ), vr(EPSX), "0", "0"][t]
                    a("%s %s, %s, %s, %s" % (M, vr(d), ar(8 * ks + 4 * i), vr(fb + 4 * t), vr(d) if ks else c0))
        else:
            for t in range(3):
                for i in range(2):
                    d = Q0 + 8 * t + 4 * i
                    a("%s %s, %s, %s, %s" % (M, vr(d), vr(fb + 4 * t), ar(8 * ks + 4 * i), vr(d) if ks else vr(EPSQ)))
        return a
    def phi8(self, a, r, tmp):
        for k in range(8): a("v_fma_f32 v%d, v%d, s%d, v%d" % (tmp + k, r + k, s_log2e, v_nel))
        for k in range(8):
            a("v_exp_f32 v%d, v%d clamp" % (tmp + k, tmp + k))
            a("v_max_f32 v%d, s%d, v%d" % (r + k, s_eps, r + k))
        for k in range(8): a("v_add_f32 v%d, v%d, v%d" % (r + k, r + k, tmp + k))
    def mk(self, b, lo, add_reg, nrec):
        if add_reg is None: t = "s_mov_b32 s%d, s%d\ns_mov_b32 s%d, s%d\n" % (b, lo, b + 1, lo + 1)
        else: t = "s_add_u32 s%d, s%d, s%d\ns_addc_u32 s%d, s%d, 0\n" % (b, lo, add_reg, b + 1, lo + 1)
        if isinstance(nrec, int): t += "s_mov_b32 s%d, 0x%x\n" % (b + 2, nrec)
        elif nrec: t += nrec + "\n"
        return t + "s_mov_b32 s%d, 0x20000\n" % (b + 3)
    def nextkb(self, k):
        return "s_add_u32 s%d, s%d, 256\ns_cmp_eq_u32 s%d, 1280\ns_cselect_b32 s%d, 0, s%d\n" % (s_kb[k], s_kb[k - 1], s_kb[k], s_kb[k], s_kb[k])

    def prologue(self):
        a = L()
        t0, t1, t2, t3 = vt
        a("s_cmp_ge_u32 s2, 256\ns_cbranch_scc1 L_end")
        a("s_load_dwordx16 s[16:31], s[0:1], 0\ns_load_dwordx16 s[32:47], s[0:1], 64")
        if self.stamps: a("s_memrealtime s[98:99]\ns_memtime s[100:101]")
        a("s_getpc_b64 s[%d:%d]\nL_pc0:" % (sT, sT + 1))
        a("s_mov_b32 s%d, L_codeend-L_pc0\ns_mov_b32 s%d, 0x20000" % (sT + 2, sT + 3))
        a("s_lshr_b32 s%d, s2, 3\ns_lshl_b32 s%d, s%d, 10" % (s_t1, s_t2, s_t1))
        a("v_lshrrev_b32 v%d, 5, v0\nv_lshlrev_b32 v%d, 7, v%d" % (t1, t1, t1))
        a("buffer_load_dword v255, v%d, %s, s%d offen" % (t1, srd(sT), s_t2), tag="pf")
        a("v_lshrrev_b32 v%d, 6, v0\nv_and_b32 v%d, 63, v0" % (t0, v_lane))
        a("v_readfirstlane_b32 s%d, v%d" % (s_w, t0))
        a("s_and_b32 s%d, s2, 7" % s_t0)
        if self.mapping == "8x4":
            a("s_and_b32 s%d, s%d, 1\ns_lshl_b32 s%d, s%d, 3\ns_and_b32 s%d, s%d, 7\ns_add_u32 s%d, s%d, s%d" % (s_i, s_t0, s_i, s_i, s_t2, s_t1, s_i, s_i, s_t2))
            a("s_lshr_b32 s%d, s%d, 1\ns_lshl_b32 s%d, s%d, 2\ns_lshr_b32 s%d, s%d, 3\ns_add_u32 s%d, s%d, s%d" % (s_j, s_t0, s_j, s_j, s_t2, s_t1, s_j, s_j, s_t2))
        else:
            a("s_and_b32 s%d, s%d, 3\ns_lshl_b32 s%d, s%d, 2\ns_and_b32 s%d, s%d, 3\ns_add_u32 s%d, s%d, s%d" % (s_i, s_t0, s_i, s_i, s_t2, s_t1, s_i, s_i, s_t2))
            a("s_lshr_b32 s%d, s%d, 2\ns_lshl_b32 s%d, s%d, 3\ns_lshr_b32 s%d, s%d, 2\ns_add_u32 s%d, s%d, s%d" % (s_j, s_t0, s_j, s_j, s_t2, s_t1, s_j, s_j, s_t2))
        if self.rot == "none":
            a("s_mov_b32 s%d, 0" % s_t3)
        elif self.rot == "xcd":
            tab = [0, 1, 2, 3, 2, 3, 4, 0] if self.mapping == "4x8" else [0, 2, 1, 3, 2, 4, 3, 0]
            K = sum(v << (4 * k) for k, v in enumerate(tab))
            a("s_lshl_b32 s%d, s%d, 2\ns_lshr_b32 s%d, 0x%x, s%d\ns_and_b32 s%d, s%d, 7" % (s_t3, s_t0, s_t3, K, s_t3, s_t3, s_t3))
        else:
            a("s_add_u32 s%d, s%d, s%d\ns_mul_i32 s%d, s%d, 52\ns_lshr_b32 s%d, s%d, 8\ns_mul_i32 s%d, s%d, 5\ns_sub_u32 s%d, s%d, s%d"
              % (s_t3, s_i, s_j, s_t2, s_t3, s_t2, s_t2, s_t2, s_t2, s_t3, s_t3, s_t2))
        a("s_and_b32 s%d, s%d, 1\ns_lshl_b32 s%d, s%d, 6\ns_mul_i32 s%d, s%d, 40" % (s_w1, s_w, s_t2, s_w1, s_t1, s_j))
        a("v_and_b32 v%d, 15, v%d\nv_add_u32 v%d, s%d, v%d\nv_add_u32 v%d, 64, v%d\nv_min_u32 v%d, v%d, v%d" % (v_n, v_lane, t2, s_t2, v_lane, t1, v_n, t2, t2, t1))
        a("v_lshlrev_b32 v%d, 2, v%d\nv_lshrrev_b32 v%d, 4, v%d\nv_and_b32 v%d, 7, v%d\nv_lshl_add_u32 v%d, v%d, 3, v%d" % (v_col4, t2, t1, t2, t2, t2, t1, t1, t2))
        a("v_add_lshl_u32 v%d, v%d, s%d, 1" % (t1, t1, s_t1))
        a("v_min_u32 v%d, 19, v%d\nv_lshlrev_b32 v%d, 7, v%d\nv_min_u32 v%d, 1536, v%d" % (t2, v_lane, t2, t2, t3, t2))
        a("s_mul_i32 s%d, s%d, 163840\ns_mov_b32 s%d, 163840\ns_mov_b32 s%d, 0x20000" % (s_t0, s_i, sX + 2, sX + 3))
        a("s_mul_i32 s%d, s%d, 51200\ns_mov_b32 s%d, 51200\ns_mov_b32 s%d, 0x20000" % (s_t1, s_j, sB + 2, sB + 3))
        a("s_lshl_b32 s%d, s%d, 2\ns_add_u32 s%d, s%d, s%d\ns_mul_i32 s%d, s%d, 2560" % (s_t2, s_j, s_t2, s_t2, s_w, s_t2, s_t2))
        a("s_lshl_b32 s%d, s%d, 1\ns_add_u32 s%d, s%d, s%d\ns_mul_i32 s%d, s%d, 1600" % (s_so, s_i, s_so, s_so, s_w1, s_so, s_so), tag="tb")
        a("s_or_b32 s%d, s2, s%d\ns_lshl_b32 s%d, s2, 1" % (s_a2p, s_w, s_spin))
        a("s_cmp_lt_u32 s%d, 2" % s_w)
        a("s_waitcnt lgkmcnt(0)")
        a("global_load_ushort v%d, v%d, s[18:19]" % (TT, t1), tag="par")
        a("global_load_ushort v%d, v%d, s[20:21]" % (TT + 1, t1), tag="par")
        a("global_load_ushort v%d, v%d, s[30:31]" % (TT + 2, t1), tag="par")
        a("s_cselect_b32 s22, s22, s24\ns_cselect_b32 s23, s23, s25\ns_cselect_b32 s26, s26, s28\ns_cselect_b32 s27, s27, s29")
        a("s_add_u32 s%d, s16, s%d\ns_addc_u32 s%d, s17, 0" % (sX, s_t0, sX + 1))
        a("s_add_u32 s%d, s22, s%d\ns_addc_u32 s%d, s23, 0" % (sB, s_t1, sB + 1))
        if self.stamps:
            a("v_writelane_b32 v0, s98, 0\nv_writelane_b32 v0, s100, 1\nv_writelane_b32 v0, s2, 63")
            self.stamp(a, "karg", level=2)
        a(self.mk(sWS, 46, None, 0x10000000 if self.stamps else 0x1000000))
        a(self.mk(sDBG, 44, None, 256))
        a("v_mov_b32 v%d, 1" % v_one)
        lsk = self.label("noclear")
        a("s_cmp_lg_u32 s%d, 0\ns_cbranch_scc1 %s" % (s_a2p, lsk))
        a("v_lshlrev_b32 v%d, 8, v%d\nv_mov_b32 v%d, 0\ns_mov_b32 s%d, 16384" % (t0, v_lane, t1, s_t0), raw=True)
        a("buffer_store_dword v%d, v%d, %s, 0 offen sc1" % (t1, t0, srd(sWS)), raw=True)
        a("buffer_store_dword v%d, v%d, %s, s%d offen sc1" % (t1, t0, srd(sWS), s_t0), raw=True)
        a("s_waitcnt vmcnt(0)", raw=True)
        a("buffer_store_dword v%d, off, %s, 0 sc1" % (v_one, srd(sDBG)), raw=True)
        a("s_waitcnt vmcnt(0)", raw=True)
        a(lsk + ":")
        if self.opt.get("touch", 1):
            a("buffer_load_dword v255, v%d, %s, s%d offen" % (t2, srd(sX), s_t2), tag="tx")
            a("buffer_load_dword v255, v%d, %s, s%d offen" % (t3, srd(sB), s_so), tag="tb")
        a("s_lshl_b32 s%d, s%d, 8" % (s_kb[0], s_t3))
        def xaddr():
            a("v_lshrrev_b32 v%d, 4, v%d\nv_lshrrev_b32 v%d, 3, v%d" % (v_q, v_lane, t0, v_lane))
            a("s_mul_i32 s%d, s%d, %d\ns_add_u32 s%d, s%d, %d" % (s_priv, s_w, PRIV_SZ, s_priv, s_priv, PRIV))
            a("v_and_b32 v%d, 7, v%d\nv_xor_b32 v%d, v%d, v%d\nv_lshlrev_b32 v%d, 4, v%d" % (t1, v_lane, t1, t1, v_q, t1, t1))
            a("v_and_b32 v%d, 4, v%d\ns_lshl_b32 s%d, s%d, 5\nv_add3_u32 v%d, v%d, v%d, s%d" % (t2, t0, s_t2, s_w, t2, t2, t0, s_t2))
            a("v_mul_u32_u24 v%d, 1280, v%d\nv_add_u32 v%d, v%d, v%d" % (t2, t2, vDX[0], t2, t1))
            a("v_xor_b32 v%d, 64, v%d\nv_add_u32 v%d, %d, v%d" % (vDX[1], vDX[0], vDX[1], 16 * 1280 - 1024, vDX[1]))
            a("v_add_u32 v%d, %d, v%d\nv_add_u32 v%d, %d, v%d" % (vDX[2], 4 * 1280 - 2048, vDX[0], vDX[3], 4 * 1280 - 2048, vDX[1]))
            a.extend(self.dma_x(0))
        if not self.opt.get("rpfirst", 1): xaddr()
        a("s_and_b32 s%d, s%d, 7\ns_lshr_b32 s%d, s%d, 3" % (s_ct, s_j, s_rb, s_j))
        a("s_mul_i32 s%d, s%d, 3200\ns_add_u32 s%d, s%d, %d" % (s_rlds, s_w, s_rlds, s_rlds, L_RP0))
        a("s_movk_i32 s%d, 3840\ns_movk_i32 s%d, %d\ns_cmp_eq_u32 s%d, 3\ns_cselect_b32 s%d, 1280, s%d" % (s_cj, s_rstep, 8 * 3840 - 640, s_w, s_cj, s_cj))
        a("s_cselect_b32 s%d, %d, 0\ns_cselect_b32 s%d, %d, s%d\ns_cselect_b32 s%d, %d, s%d" % (s_ci, 20 * 1280, s_rstep, 4 * 1280 - 640, s_rstep, s_rlds, M_RP, s_rlds))
        a("s_cselect_b32 s36, s38, s36\ns_cselect_b32 s37, s39, s37")
        a("v_mul_u32_u24 v%d, 52, v%d\nv_lshrrev_b32 v%d, 8, v%d" % (t3, v_lane, t3, t3))
        a("v_mul_u32_u24 v%d, 5, v%d\nv_sub_u32 v%d, v%d, v%d" % (t2, t3, t2, v_lane, t2))
        a("v_mul_u32_u24 v%d, s%d, v%d\nv_lshl_add_u32 v%d, v%d, 4, v%d" % (RB, s_cj, t3, RB, t2, RB))
        a("v_lshrrev_b32 v%d, 2, v%d\nv_mad_u32_u24 v%d, v%d, s%d, v%d" % (t3, t3, RA, t3, s_ci, RB))
        a("s_mul_i32 s%d, s%d, 80\ns_add_u32 s%d, s%d, 1\ns_mul_i32 s%d, s%d, 1280" % (s_t1, s_j, s_t2, s_w, s_t2, s_t2))
        a("s_cmp_eq_u32 s%d, 2\ns_cselect_b32 s%d, 0, s%d\ns_add_u32 s%d, s%d, s%d" % (s_w, s_t2, s_t2, s_t1, s_t1, s_t2))
        a("s_mul_i32 s%d, s%d, 160\ns_mul_i32 s%d, s%d, 80\ns_add_u32 s%d, s%d, s%d" % (s_t2, s_ct, s_t0, s_rb, s_t2, s_t2, s_t0))
        a("s_cmp_eq_u32 s%d, 3\ns_cselect_b32 s%d, s%d, s%d" % (s_w, s_t1, s_t2, s_t1))
        a("s_mul_i32 s%d, s%d, 40\ns_mul_i32 s%d, s%d, s%d\ns_add_u32 s%d, s%d, s%d" % (sRP + 2, s_cj, s_t2, sRP + 2, s_i, s_t1, s_t1, s_t2))
        a("s_add_u32 s%d, s36, s%d\ns_addc_u32 s%d, s37, 0\ns_mov_b32 s%d, 0x20000" % (sRP, s_t1, sRP + 1, sRP + 3))
        a.extend(self.rp_issue(0))
        if self.opt.get("rpfirst", 1): xaddr()
        self.stamp(a, "iss0", level=2)
        a("s_mul_i32 s%d, s%d, 10240\ns_lshr_b32 s%d, s%d, 1\ns_mul_i32 s%d, s%d, 5120\ns_add_u32 s%d, s%d, s%d"
          % (s_bm0, s_w1, s_t1, s_w, s_t2, s_t1, s_bm0, s_bm0, s_t2))
        a("s_lshl_b32 s%d, s%d, 6\ns_lshl_b32 s%d, s%d, 7" % (s_t1, s_t1, s_t2, s_w1))
        a("v_xor_b32 v%d, s%d, v%d\nv_add_u32 v%d, s%d, v%d" % (t3, s_t1, t1, t3, s_t2, t3))
        a("v_mul_u32_u24 v%d, 1280, v%d\nv_add_u32 v%d, v%d, v%d" % (t0, t0, vDW[0], t0, t3))
        a("v_add_u32 v%d, v%d, v%d\nv_xor_b32 v%d, 64, v%d\nv_add_u32 v%d, %d, v%d" % (vC[0], t0, t1, vC[1], vC[0], vC[1], 8 * 1280 - 1024, vC[1]))
        for t in range(1, 5):
            a("v_add_u32 v%d, %d, v%d" % (vDW[t], 10240 * t - (1024 * t if t < 4 else 0), vDW[0]))
        a("v_lshlrev_b32 v%d, 4, v%d" % (v_l16, v_lane))
        nearly = self.opt.get("early", 0)
        early = L(self.dma_x(1)); early.extend(self.dma_w(0))
        if nearly: a.extend(early)
        for k in (1, 2, 3, 4): a(self.nextkb(k))
        a("s_mov_b32 s%d, 0x%x\ns_mov_b32 s%d, 0x%x\ns_mul_i32 s%d, s%d, 5120" % (s_log2e, LOG2E, s_eps, EPS, s_wm0, s_w))
        c = a
        c("s_mul_i32 s%d, s%d, 51200\ns_add_u32 s%d, s%d, %d\ns_mul_i32 s%d, s%d, 102400\ns_add_u32 s%d, s%d, %d" % (s_qb, s_j, s_qb, s_qb, W_QI, s_wob, s_ct, s_wob, s_wob, W_WOI))
        c("s_mul_i32 s%d, s%d, 102400\ns_add_u32 s%d, s%d, %d\ns_mul_i32 s%d, s%d, 640\ns_add_u32 s%d, s%d, s%d" % (s_kvi, s_j, s_kvi, s_kvi, W_KVI, s_t2, s_w, s_t1, s_kvi, s_t2))
        c("s_cmp_eq_u32 s%d, 2\ns_cselect_b32 s%d, s%d, s%d" % (s_w, s_t1, s_qb, s_t1))
        c("s_mul_i32 s%d, s%d, 640\ns_add_u32 s%d, s%d, s%d\ns_cmp_eq_u32 s%d, 3\ns_cselect_b32 s%d, s%d, s%d" % (s_t2, s_rb, s_t2, s_t2, s_wob, s_w, s_t1, s_t2, s_t1))
        for u in range(5):
            dd = so_u[u]
            c("s_mul_i32 s%d, s%d, 5\ns_add_u32 s%d, s%d, %d" % (s_t2, s_i, s_t2, s_t2, u))
            c("s_lshr_b32 s%d, s%d, 3\ns_mul_i32 s%d, s%d, 5120\ns_and_b32 s%d, s%d, 3\ns_mul_i32 s%d, s%d, 1280\ns_add_u32 s%d, s%d, s%d"
              % (dd, s_t2, dd, dd, s_t0, s_t2, s_t0, s_t0, dd, dd, s_t0))
            c("s_and_b32 s%d, s%d, 4\ns_mul_i32 s%d, s%d, 160\ns_add_u32 s%d, s%d, s%d\ns_mul_i32 s%d, s%d, 1280" % (s_t0, s_t2, s_t0, s_t0, dd, dd, s_t0, s_t2, s_t2))
            c("s_cmp_eq_u32 s%d, 2\ns_cselect_b32 s%d, s%d, s%d\ns_add_u32 s%d, s%d, s%d" % (s_w, dd, dd, s_t2, dd, dd, s_t1))
        c("v_and_b32 v%d, 3, v%d\nv_lshl_add_u32 v%d, v%d, 2, v%d\nv_min_u32 v%d, 9, v%d" % (t0, v_lane, t0, v_q, t0, t0, t0))
        c("v_bfe_u32 v%d, v%d, 2, 2\nv_mul_u32_u24 v%d, 80, v%d\nv_lshl_add_u32 v%d, v%d, 3, v%d" % (t1, v_lane, t1, t1, t0, t0, t1))
        c("v_add_u32 v%d, s%d, v%d" % (RT, s_rlds, t0))
        c("s_lshl_b32 s%d, s%d, 13\ns_add_u32 s%d, s%d, %d" % (s_t1, s_j, s_t1, s_t1, W_AGG)); c(self.mk(sAG, 46, s_t1, 8192))
        c("s_sub_u32 s%d, 15, s%d\ns_lshl_b32 s%d, s%d, 9\ns_add_u32 s%d, s%d, 512\ns_add_u32 s%d, s%d, 4608" % (s_aggst, s_i, s_aggst, s_aggst, s_aggld, s_aggst, s_aggld2, s_aggst))
        c("s_lshl_b32 s%d, s%d, 2\ns_add_u32 s%d, s%d, s%d\ns_lshl_b32 s%d, s%d, 14\ns_add_u32 s%d, s%d, %d" % (s_kvpld, s_j, s_kvpld, s_kvpld, s_w, s_kvpld, s_kvpld, s_kvpld, s_kvpld, W_KVP))
        c("s_lshl_b32 s%d, s%d, 10\ns_add_u32 s%d, s%d, s%d" % (s_kvpst, s_i, s_kvpst, s_kvpst, s_kvpld))
        SN = S0
        for k in range(4): c("v_mov_b32 v%d, -1" % (SN + k))
        c("v_lshrrev_b32 v%d, 1, v%d\nv_xor_b32 v%d, v%d, v%d\nv_lshlrev_b32 v%d, 4, v%d" % (t0, v_n, t0, t0, v_q, t0, t0))
        c("v_lshl_add_u32 v%d, v%d, 7, v%d" % (t1, v_n, t0))
        c("v_add_u32 v%d, s%d, v%d\nv_xor_b32 v%d, 64, v%d" % (vXA[0], s_priv, t1, vXA[1], vXA[0]))
        c("v_lshrrev_b32 v%d, 3, v%d\nv_mul_u32_u24 v%d, %d, v%d" % (t3, v_n, t3, 5120 - 1024, t3))
        c("v_add_u32 v%d, v%d, v%d\nv_xor_b32 v%d, 64, v%d" % (vBA[0], t1, t3, vBA[1], vBA[0]))
        c("v_add_u32 v%d, %d, v%d\nv_add_u32 v%d, %d, v%d" % (vBA[2], 2 * SLOT, vBA[0], vBA[3], 2 * SLOT, vBA[1]))
        c("s_lshl_b32 s%d, s%d, 10\ns_lshl_b32 s%d, s%d, 10\ns_add_u32 s%d, s%d, 16384\ns_lshl_b32 s%d, s%d, 10" % (s_cj, s_j, s_ci, s_i, s_ci, s_ci, s_cct, s_ct))
        c("s_add_u32 s%d, s%d, s%d\ns_mul_i32 s%d, s%d, 1600\ns_mov_b32 s%d, 0x40000" % (s_t2, s_spin, s_w1, s_t2, s_t2, s_spin))
        c("v_min_u32 v%d, 12, v%d\nv_lshl_add_u32 v%d, v%d, 7, s%d" % (t0, v_lane, v_ct, t0, s_t2))
        c(self.mk(sT, 40, None, 1280))
        c("s_lshl_b32 s%d, s%d, 10\ns_add_u32 s%d, s%d, s%d\nv_add_u32 v%d, s%d, v%d" % (s_t2, s_w1, s_t1, s_t2, s_kb[0], S0 + 4, s_t1, v_l16))
        c("v_subrev_u32 v%d, 1280, v%d\nv_min_u32 v%d, v%d, v%d" % (t0, S0 + 4, S0 + 4, S0 + 4, t0))
        a.extend(flat(self.setup2()))
        a.extend(flat(self.late_addr()))
        a.wl("pw"); a("s_barrier")
        a.extend(flat(self.setup3()))
        self.stamp(a, "setup", level=2)
        if not nearly: a.extend(early)
        a.append(self.only("hi", L()("s_lshl_b32 s%d, s%d, 10\ns_add_u32 m0, s%d, %d\nbuffer_load_dwordx4 v%d, %s, 0 offen lds" % (s_so, s_w1, s_so, M_GATE, S0 + 4, srd(sT)), tag="gate")))
        a(self.mk(sT, 26, None, 819200))
        self.stamp(a, "iss1", level=2)
        a.extend(self.rp_read(0)); a.extend(self.rp_store(0, range(5)))
        a.append(self.only("hi", L()("buffer_store_dword v%d, v%d, %s, s%d offen sc1" % (SN, v_col4, srd(sAG), s_aggst), tag="rs0")))
        a("buffer_store_dwordx4 %s, v%d, %s, s%d offen sc1" % (vr(SN), v_l16, srd(sWS), s_kvpst), tag="rs0")
        a.append(self.only("w0", self.poll_issue(sDBG, "0", 0, "clr")))
        self.stamp(a, "rpst", level=2)
        self.second = L(self.dma_x(2)); self.second.extend(self.dma_x(3)); self.second.extend(self.dma_w(1))
        return a

    def setup2(self):
        a = L()
        t0 = vt[0]
        a.append(grp("s_mul_i32 s%d, s%d, 640\ns_mul_i32 s%d, s%d, 102400\ns_add_u32 s%d, s%d, s%d\n" % (s_t2, s_w1, s_t1, s_ct, s_t1, s_t1, s_t2)
                     + self.mk(sC, 26, s_t1, "s_sub_u32 s%d, 102400, s%d" % (sC + 2, s_t2))))
        a("s_lshl_b32 s%d, s%d, 1\ns_add_u32 s%d, s%d, s%d\ns_mul_i32 s%d, s%d, 163840\ns_mul_i32 s%d, s%d, 320\ns_add_u32 s%d, s%d, s%d\n"
          % (s_t1, s_i, s_t1, s_t1, s_rb, s_t1, s_t1, s_t2, s_ct, s_t1, s_t1, s_t2))
        a.append(grp(self.mk(sOUT, 42, s_t1, "s_sub_u32 s%d, 163840, s%d" % (sOUT + 2, s_t2))))
        a("s_mul_i32 s%d, s%d, 5120\ns_add_u32 s%d, s%d, s%d" % (s_t2, s_w1, s_qb, s_qb, s_t2))
        for st in range(3):
            if st < 2: a.append(grp("s_cmp_lt_u32 s%d, 2\ns_cselect_b32 s%d, s%d, s%d" % (s_w, s_t2, s_kb[2 * st], s_kb[2 * st + 1])))
            a("s_mul_i32 s%d, s%d, 40\ns_add_u32 s%d, s%d, s%d" % (s_t2, s_t2 if st < 2 else s_kb[4], s_qo[st], s_t2, s_qb))
        a("s_add_u32 s%d, s%d, s%d" % (s_woi, s_wob, s_wm0))
        a("s_add_u32 s%d, s%d, s%d" % (s_kvi, s_kvi, s_wm0))
        a("s_lshl_b32 s%d, s%d, 2\ns_add_u32 s%d, s%d, s%d\ns_mul_i32 s%d, s%d, %d\ns_mul_i32 s%d, s%d, 1280\ns_add_u32 s%d, s%d, s%d\ns_add_u32 s%d, s%d, %d"
          % (s_t2, s_i, s_t2, s_t2, s_w, s_t2, s_t2, 2 * TSTR, s_t1, s_j, s_t2, s_t2, s_t1, s_a2p, s_t2, W_A2))
        a.append(grp("s_cmp_lt_u32 s%d, 2\ns_cselect_b64 s[%d:%d], -1, 0" % (s_w, s_lo2, s_lo2 + 1)))
        a.wv("par")
        Lr, Li, dt, e1, c1, s1, x0, x1, sg = [TT + k for k in range(9)]
        pa, pb, pc1, pc2, zr, rv = [TT + 10 + k for k in range(6)]
        a("v_lshlrev_b32 v%d, 16, v%d\nv_lshlrev_b32 v%d, 16, v%d\nv_lshlrev_b32 v%d, 16, v%d" % (Lr, Lr, Li, Li, dt, dt))
        a("v_mul_f32 v%d, s%d, v%d\nv_exp_f32 v%d, v%d" % (dt, s_log2e, dt, dt, dt))
        a("v_and_b32 v%d, 8, v%d\nv_lshlrev_b32 v%d, 28, v%d\nv_or_b32 v%d, 1.0, v%d" % (sg, v_n, sg, sg, sg, sg))
        a("v_cvt_pk_bf16_f32 v%d, v%d, v%d\nv_lshlrev_b32 v%d, 16, v%d" % (dt, dt, dt, dt, dt))
        a("v_mul_f32 v%d, v%d, v%d\nv_mul_f32 v%d, s%d, v%d" % (zr, dt, Lr, zr, s_log2e, zr))
        a("v_mul_f32 v%d, v%d, v%d\nv_mul_f32 v%d, 0.15915494, v%d" % (rv, dt, Li, rv, rv))
        def power(k, da, db):
            if k == 1:
                a("v_exp_f32 v%d, v%d\nv_fract_f32 v%d, v%d" % (e1, zr, x0, rv))
            else:
                a("v_mul_f32 v%d, 0x%x, v%d\nv_exp_f32 v%d, v%d" % (e1, f2u(float(k)), zr, e1, e1))
                a("v_mul_f32 v%d, 0x%x, v%d\nv_fract_f32 v%d, v%d" % (x0, f2u(float(k)), rv, x0, x0))
            a("v_cos_f32 v%d, v%d\nv_sin_f32 v%d, v%d" % (c1, x0, s1, x0))
            a("v_mul_f32 v%d, v%d, v%d\nv_mul_f32 v%d, v%d, v%d" % (da, e1, c1, db, e1, s1))
            if k != 1: a("v_mul_f32 v%d, v%d, -v%d" % (db, db, sg))
        power(8, vA8, vB8); power(128, vA128, vB128); power(1, pa, pb)
        a("v_add_f32 v%d, -1.0, v%d" % (x0, pa))
        a("v_mul_f32 v%d, v%d, v%d\nv_fmac_f32 v%d, v%d, v%d\nv_rcp_f32 v%d, v%d" % (x1, Lr, Lr, x1, Li, Li, x1, x1))
        a("v_mul_f32 v%d, v%d, v%d\nv_fmac_f32 v%d, v%d, v%d" % (pc1, x0, Lr, pc1, pb, Li))
        a("v_mul_f32 v%d, v%d, v%d\nv_fma_f32 v%d, -v%d, v%d, v%d" % (pc2, x0, Li, pc2, pb, Lr, pc2))
        a("v_add_f32 v%d, v%d, v%d" % (x1, x1, x1))
        a("v_mul_f32 v%d, v%d, v%d\nv_mul_f32 v%d, v%d, v%d" % (pc1, pc1, x1, pc2, pc2, x1))
        a("v_mul_f32 v%d, v%d, v%d\nv_mul_f32 v%d, v%d, v%d\nv_mul_f32 v%d, v%d, v%d" % (pc1, pc1, sg, pb, pb, sg, rv, rv, sg))
        a("v_lshlrev_b32 v%d, 3, v%d\nv_add_u32 v%d, %d, v%d" % (t0, v_col4, t0, M_PARAM, t0))
        a("ds_write_b128 v%d, %s\nds_write_b64 v%d, %s offset:16" % (t0, vr(pa), t0, vr(zr, 2)), tag="pw")
        return a
    def setup3(self):
        a = L()
        t0, kf = vt[0], vt[1]
        a("v_lshlrev_b32 v%d, 5, v%d\nv_add_u32 v%d, %d, v%d" % (t0, v_n, t0, M_PARAM, t0))
        for t in range(5):
            a("ds_read_b128 %s, v%d offset:%d" % (vr(PR0 + 6 * t), t0, 512 * t), tag="pr")
            a("ds_read_b64 %s, v%d offset:%d" % (vr(PR0 + 6 * t + 4, 2), t0, 512 * t + 16), tag="pr")
        a.append(grp("s_lshl_b32 s%d, s%d, 5\nv_lshl_add_u32 v%d, v%d, 3, s%d" % (s_t0, s_w, kf, v_q, s_t0)))
        a("v_cvt_f32_u32 v%d, v%d" % (kf, kf))
        for k in range(4): a("v_mov_b32 v%d, s%d" % (EPSQ + k, s_eps))
        a("v_cmp_gt_u32 vcc, 8, v%d" % v_n)
        for k in range(4): a("v_cndmask_b32 v%d, 0, v%d, vcc" % (EPSX + k, EPSQ))
        a.wl("pr")
        R = range(5)
        z = lambda t: PR0 + 6 * t + 4
        for t in R: a("v_mul_f32 v%d, v%d, v%d\nv_mul_f32 v%d, v%d, v%d" % (z(t), z(t), kf, z(t) + 1, z(t) + 1, kf))
        for t in R: a("v_exp_f32 v%d, v%d\nv_fract_f32 v%d, v%d" % (z(t), z(t), z(t) + 1, z(t) + 1))
        for t in R: a("v_cos_f32 v%d, v%d\nv_sin_f32 v%d, v%d" % (TT + 2 * t, z(t) + 1, TT + 2 * t + 1, z(t) + 1))
        for t in R: a("v_mul_f32 v%d, v%d, v%d\nv_mul_f32 v%d, v%d, v%d" % (TT + 2 * t, TT + 2 * t, z(t), TT + 2 * t + 1, TT + 2 * t + 1, z(t)))
        for t in R: a("v_mul_f32 v%d, v%d, v%d\nv_mul_f32 v%d, v%d, v%d" % (z(t), z(t) - 2, TT + 2 * t, z(t) + 1, z(t) - 1, TT + 2 * t))
        for t in R: a("v_fmac_f32 v%d, v%d, v%d\nv_fma_f32 v%d, -v%d, v%d, v%d" % (z(t), z(t) - 1, TT + 2 * t + 1, z(t) + 1, z(t) - 2, TT + 2 * t + 1, z(t) + 1))
        return a
    def calc_kvaddr(self):
        a = L(); t0 = vt[0]
        a("v_mul_u32_u24 v%d, 1280, v%d\nv_lshl_add_u32 v%d, v%d, 4, v%d" % (vBA[0], v_q, vBA[0], v_n, vBA[0]))
        a("v_and_b32 v%d, 8, v%d\nv_lshl_add_u32 v%d, v%d, 6, v%d\nv_add_u32 v%d, 256, v%d" % (t0, v_n, vBA[1], t0, vBA[0], vBA[1], vBA[1]))
        a("v_add_u32 v%d, %d, v%d\nv_add_u32 v%d, %d, v%d" % (vBA[2], 2 * SLOT, vBA[0], vBA[3], 2 * SLOT, vBA[1]))
        return a
    def late_addr(self):
        a = L()
        t0, t1, t2, t3 = vt
        a("v_mul_u32_u24 v%d, 80, v%d\nv_add_u32 v%d, %d, v%d" % (t0, v_n, v_crd, M_S + 8, t0))
        a("v_lshl_add_u32 v%d, v%d, 2, v%d" % (t0, v_q, t0))
        a("s_lshl_b32 s%d, s%d, 4\ns_add_u32 s%d, s%d, %d\nv_add_u32 v%d, s%d, v%d" % (s_t0, s_w, s_t0, s_t0, M_S + 12, v_sad, s_t0, t0))
        a("v_mul_u32_u24 v%d, 20, v%d\nv_add_u32 v%d, %d, v%d" % (v_srow, v_col4, v_srow, M_S, v_srow))
        a("s_cmp_lt_u32 s%d, 2\ns_cselect_b32 s%d, 8, 4\nv_add_u32 v%d, s%d, v%d" % (s_w, s_t0, v_cwr, s_t0, v_srow))
        a("v_and_b32 v%d, 3, v%d\nv_lshlrev_b32 v%d, 8, v%d" % (t1, v_lane, t1, t1))
        a("v_and_b32 v%d, 44, v%d\nv_lshl_add_u32 v%d, v%d, 2, v%d" % (t2, v_lane, t1, t2, t1))
        a("v_and_b32 v%d, 16, v%d\nv_lshrrev_b32 v%d, 1, v%d" % (t2, v_lane, t2, t2))
        a("s_add_u32 s%d, s%d, %d\nv_add_u32 v%d, s%d, v%d\nv_add3_u32 v%d, v%d, v%d, s%d" % (s_t0, s_priv, P_HT, v_htw, s_t0, v_l16, v_htr, t1, t2, s_t0))
        a("v_and_b32 v%d, 1, v%d\nv_mul_u32_u24 v%d, %d, v%d" % (t2, v_q, t2, TSTR, t2))
        a("v_lshrrev_b32 v%d, 1, v%d\nv_mul_u32_u24 v%d, 20480, v%d" % (t3, v_q, t3, t3))
        a("v_lshlrev_b32 v%d, 4, v%d\nv_add3_u32 v%d, v%d, v%d, v%d" % (t0, v_n, v_hst, t2, t3, t0))
        a("s_lshl_b32 s%d, s%d, 12\ns_add_u32 s%d, s%d, %d\nv_add_u32 v%d, s%d, v%d" % (s_t0, s_w, s_t0, s_t0, L_KVR, v_kvw, s_t0, v_l16))
        a("v_mov_b32 v%d, 0\nv_mov_b32 v%d, 0x%x" % (v_zero, v_nel, NEL))
        a("s_lshl_b32 s%d, s%d, 1\ns_add_u32 s%d, s%d, s%d\ns_mul_i32 s%d, s%d, %d\ns_add_u32 s%d, s%d, %d" % (s_t1, s_i, s_t1, s_t1, s_rb, s_t1, s_t1, 4 * TSTR, s_t1, s_t1, W_A2))
        a("s_mul_i32 s%d, s%d, %d\ns_add_u32 s%d, s%d, s%d\ns_add_u32 s%d, s%d, 40960\ns_add_u32 s%d, s%d, 16384" % (s_t2, s_w, TSTR, s_ao, s_t1, s_t2, s_ao, s_ao, s_ao2, s_ao))
        a("s_mul_i32 s%d, s%d, 10240\ns_add_u32 s%d, s%d, s%d" % (s_t2, s_w, s_t1, s_t1, s_t2))
        for ml in range(4):
            a("s_add_u32 s%d, s%d, %d\ns_and_b32 s%d, s%d, 3\ns_mul_i32 s%d, s%d, %d\ns_add_u32 s%d, s%d, s%d" % (s_t2, s_w, ml, s_t2, s_t2, s_t2, s_t2, TSTR, s_am + ml, s_t2, s_t1))
        a("v_cmp_gt_u32 vcc, 8, v%d" % v_n)
        a("v_mul_u32_u24 v%d, 1280, v%d\nv_add3_u32 v%d, v%d, v%d, v%d" % (t1, v_q, t1, t1, t0, v_zero))
        a("v_add_u32 v%d, %d, v%d\nv_lshlrev_b32 v%d, 4, v%d\nv_add_u32 v%d, %d, v%d" % (t1, 2 * SLOT + 256, t1, t2, v_q, t2, M_GATE, t2))
        a("v_cndmask_b32 v%d, v%d, v%d, vcc" % (vY, t2, t1))
        for r, val in ((vI0, 640), (vI1, 4480), (vI2, (4480 - 4 * SLOT) & 0xffffffff)):
            a("v_mov_b32 v%d, 0x%x\nv_cndmask_b32 v%d, 64, v%d, vcc" % (t1, val, r, t1))
        return a

    def pass1(self):
        a = L()
        prev = [U0 + 8 * t for t in range(5)]
        for j8 in range(1, 8):
            cur = [TT + 5 * (j8 & 1) + t for t in range(5)]
            for t in range(5): a("v_fma_f32 v%d, v%d, v%d, v%d" % (cur[t], PR0 + 6 * t, prev[t], U0 + 8 * t + j8))
            for t in range(5): a("v_fmac_f32_dpp v%d, -v%d, v%d %s" % (cur[t], prev[t], PR0 + 6 * t + 1, DPP))
            prev = cur
        for t in range(5): a("ds_write_b32 v%d, v%d offset:%d" % (v_sad, prev[t], 4 + 1280 * t), tag="sw")
        return a
    def sread(self):
        a = L()
        for k in range(4): a("ds_read_b128 %s, v%d offset:%d" % (vr(S0 + 4 * k), v_srow, 16 + 16 * k), tag="sr")
        return a
    def horner1(self):
        a = L()
        a.wl("sr")
        for k in range(1, 16):
            a.append(grp("v_fmac_f32 v%d, v%d, v%d\nv_fmac_f32_dpp v%d, v%d, v%d %s" % (S0 + k, vA8, S0 + k - 1, S0 + k, S0 + k - 1, vB8, DPP)))
        a("v_min_u32 v%d, -2, v%d" % (S0 + 15, S0 + 15))
        a.append(self.only("lo", L()("buffer_store_dword v%d, v%d, %s, s%d offen sc1" % (S0 + 15, v_col4, srd(sAG), s_aggst), tag="aggst")))
        return a
    def eback(self):
        b = L()
        b("ds_write_b32 v%d, v%d offset:12" % (v_srow, v_zero), tag="ew")
        for k in range(4): b("ds_write_b128 v%d, %s offset:%d" % (v_srow, vr(S0 + 4 * k), 16 + 16 * k), tag="ew")
        return [self.only("hi", b[:3]), self.only("hi", b[3:])]
    def coef(self):
        a = L()
        for j8 in range(8):
            for t in range(5): a("v_mul_f32_dpp v%d, v%d, v%d %s" % (TT + 16 + t, U0 + 8 * t + j8, PR0 + 6 * t + 3, DPP))
            for t in range(5):
                u = U0 + 8 * t + j8
                a("v_fma_f32 v%d, v%d, v%d, v%d" % (u, u, PR0 + 6 * t + 2, TT + 16 + t))
        return a
    def te_rd(self):
        a = L()
        for t in range(5): a("ds_read_b32 v%d, v%d offset:%d" % (TE + t, v_sad, 1280 * t), tag="er")
        return a
    def te(self):
        a = L()
        a.wl("er")
        for t in range(5): a("v_mul_f32_dpp v%d, v%d, v%d %s" % (TT + 16 + t, TE + t, PR0 + 6 * t + 3, DPP))
        for t in range(5): a("v_fma_f32 v%d, v%d, v%d, v%d" % (TE + t, TE + t, PR0 + 6 * t + 2, TT + 16 + t))
        return a
    def agg_loads(self, raw=False):
        a = L()
        for m in range(14, -1, -1):
            a("buffer_load_dword v%d, v%d, %s, s%d offen offset:%d sc1" % (TT + m, v_col4, srd(sAG), s_aggld if m < 8 else s_aggld2, 512 * (m & 7)), tag="ag", raw=raw)
        if raw: return a
        return [self.only("lo", a[k:k + 3]) for k in range(0, 15, 3)]
    def agg_chk(self, raw=False):
        a = L(); c = TT + 15
        a("v_max3_u32 v%d, v%d, v%d, v%d" % (c, TT, TT + 1, TT + 2), raw=raw)
        for m in range(3, 15, 2): a("v_max3_u32 v%d, v%d, v%d, v%d" % (c, c, TT + m, TT + m + 1), raw=raw)
        return a
    def horner2(self):
        a = L()
        slow = self.label("slow"); back = self.label("back")
        a.wv("ag")
        a.extend(self.agg_chk())
        a.append(grp("v_cmp_eq_u32 vcc, -1, v%d\ns_and_b64 vcc, vcc, s[%d:%d]\ns_cbranch_scc1 %s\n%s:" % (TT + 15, s_lo2, s_lo2 + 1, slow, back)))
        s = self.slow
        self.spin_head(s, slow)
        s.extend(self.agg_loads(raw=True)); s("s_waitcnt vmcnt(0)", raw=True); s.extend(self.agg_chk(raw=True))
        s("v_cmp_eq_u32 vcc, -1, v%d\ns_cbranch_vccnz %s\ns_branch %s" % (TT + 15, slow, back), raw=True)
        for m in range(13, -1, -1):
            a.append(grp("v_fmac_f32 v%d, v%d, v%d\nv_fmac_f32_dpp v%d, v%d, v%d %s" % (TT + m, vA128, TT + m + 1, TT + m, TT + m + 1, vB128, DPP)))
        a("ds_write_b32 v%d, v%d" % (v_cwr, TT), tag="cw")
        return a
    def pass2(self):
        a = L()
        for t in range(5): a("ds_read_b32 v%d, v%d offset:%d" % (TT + t, v_crd, 1280 * t), tag="ir")
        for k in range(1, 4): a("v_add_u32 v%d, %d, v%d" % (vL4[k], 4096 * k, v_l16))
        a.delay(3)
        a.wl("ir")
        for t in range(5): a("v_fmac_f32 v%d, v%d, v%d" % (TE + t, PR0 + 6 * t + 4, TT + t))
        for t in range(5): a("v_fmac_f32_dpp v%d, v%d, v%d %s" % (TE + t, TT + t, PR0 + 6 * t + 5, DPP))
        def chain(t):
            c = []
            prev = TE + t
            for j8 in range(8):
                cur = U0 + 8 * t + j8
                c.append("v_fmac_f32 v%d, v%d, v%d\nv_fmac_f32_dpp v%d, v%d, v%d %s" % (cur, PR0 + 6 * t, prev, cur, prev, PR0 + 6 * t + 1, DPP))
                prev = cur
            return c
        def fin(t):
            u0 = U0 + 8 * t; f = L()
            for k in range(4): f("v_cvt_pk_bf16_f32 v%d, v%d, v%d" % (u0 + k, u0 + 2 * k, u0 + 2 * k + 1))
            f("ds_write_b128 v%d, %s offset:%d" % (v_htw, vr(u0), 1024 * t), tag="hw")
            for e in range(2):
                f("ds_read_b64_tr_b16 %s, v%d offset:%d" % (vr(u0 + 4 + 2 * e, 2), v_htr, 1024 * t + 64 * e), tag="hr%d" % t)
            return f
        def st(t):
            f = L(); f.wl("hr%d" % t)
            f("buffer_store_dwordx4 %s, v%d, %s, s%d offen offset:%d sc1" % (vr(U0 + 8 * t + 4), v_hst, srd(sWS), s_a2p, 256 * t), tag="hst")
            return f
        for t in range(6):
            ch = [grp(x) for x in chain(t)] if t < 5 else []
            fi = list(fin(t - 1)) if t >= 1 else []
            if t >= 2: fi = fi[:4] + list(st(t - 2)) + fi[4:]
            a.extend(merge([ch, fi]))
        a.delay(4)
        a.extend(st(4))
        return a

    def kv1a(self):
        a = L()
        kA, kB, X, vA, vB = [KV0 + 8 * t for t in range(5)]
        PA, PB, PX, VA, VB, VX = [S0 + 4 * k for k in range(6)]
        t0 = vt[0]
        a("v_cmp_gt_u32 vcc, 8, v%d\nv_mov_b32 v%d, 0x3f803f80" % (v_n, t0))
        for (src, dst) in ((X, VX), (vA, VA), (vB, VB)):
            for k in range(4): a("v_cvt_pk_bf16_f32 v%d, v%d, v%d" % (dst + k, src + 2 * k, src + 2 * k + 1))
        for k in range(4): a("v_cndmask_b32 v%d, v%d, v%d, vcc" % (VX + k, VX + k, t0))
        T4a, T4b, T5, T1, T3a, T2, T3b = vA, vA + 4, vB, vB + 4, X, X + 4, kA
        a("s_mov_b32 s%d, 0x0f550f55\ns_mov_b32 s%d, 0x0f550f55" % (s_mask, s_mask + 1))
        a("v_cmp_gt_u32 vcc, 16, v%d" % v_lane)
        def part(src, dst, mm):
            self.phi8(a, src, TT)
            for k in range(4): a("v_cvt_pk_bf16_f32 v%d, v%d, v%d" % (dst + k, src + 2 * k, src + 2 * k + 1))
            for d, x, y in mm: a("%s %s, %s, %s, 0" % (M, vr(d), vr(x), vr(y)))
        part(X, PX, ((T4a, PX, VA), (T4b, PX, VB), (T5, PX, VX)))
        part(kA, PA, ((T1, PA, VA), (T3a, PA, VX)))
        for k in range(4): a("v_cndmask_b32 v%d, v%d, v%d, vcc" % (T4a + k, T4b + k, T4a + k))
        for k in range(4): a("v_permlane32_swap_b32 v%d, v%d" % (T4a + k, T5 + k))
        a("ds_write_b128 v%d, %s offset:3072" % (v_kvw, vr(T4a)), tag="kw")
        a("ds_write_b128 v%d, %s" % (v_kvw, vr(T1)), tag="kw")
        part(kB, PB, ((T3b, PB, VX), (T2, PB, VB)))
        a.delay(2)
        for k in range(4): a("v_cndmask_b32 v%d, v%d, v%d, s[%d:%d]" % (T3a + k, T3b + k, T3a + k, s_mask, s_mask + 1))
        a("ds_write_b128 v%d, %s offset:1024" % (v_kvw, vr(T2)), tag="kw")
        a("ds_write_b128 v%d, %s offset:2048" % (v_kvw, vr(T3a)), tag="kw")
        a.append(grp("s_lshl_b32 s%d, s%d, 10\ns_add_u32 s%d, s%d, %d\nv_add_u32 v%d, s%d, v%d" % (s_t0, s_w, s_t0, s_t0, L_KVR, v_kvw, s_t0, v_l16)))
        return a
    def kv1b(self):
        a = L(); K = KV0 + 20
        for k in range(4): a("ds_read_b128 %s, v%d offset:%d" % (vr(K + 4 * k), v_kvw, 4096 * k), tag="kr")
        a.delay(4)
        a.wl("kr")
        for k in range(4): a("v_add_f32 v%d, v%d, v%d\nv_add_f32 v%d, v%d, v%d" % (K + k, K + k, K + 4 + k, K + 8 + k, K + 8 + k, K + 12 + k))
        for k in range(4): a("v_add_f32 v%d, v%d, v%d" % (K + k, K + k, K + 8 + k))
        for k in range(4): a("v_min_u32 v%d, -2, v%d" % (K + k, K + k))
        a("buffer_store_dwordx4 %s, v%d, %s, s%d offen sc1" % (vr(K), v_l16, srd(sWS), s_kvpst), tag="kvst")
        return a
    def phiq(self):
        a = L(); t0, t1 = vt[0], vt[1]
        Z = KV0 + 8
        a("v_and_b32 v%d, 12, v%d\nv_add_u32 v%d, v%d, v%d" % (t0, v_n, t0, t0, v_n))
        a.append(grp("s_lshl_b32 s%d, s%d, 7\ns_add_u32 s%d, s%d, %d\nv_lshl_add_u32 v%d, v%d, 2, s%d" % (s_t0, s_w, s_t0, s_t0, M_G, t0, t0, s_t0)))
        for i in range(2): a("v_fma_f32 v%d, v%d, s%d, v%d" % (Z + i, Q0 + 8 + 4 * i, s_log2e, v_nel))
        for i in range(2): a("v_exp_f32 v%d, -v%d" % (Z + i, Z + i))
        for i in range(2): a("v_add_f32 v%d, 1.0, v%d" % (Z + i, Z + i))
        for i in range(2): a("v_rcp_f32 v%d, v%d" % (Z + i, Z + i))
        for i in range(2): a("v_sub_f32 v%d, 1.0, v%d" % (Z + 2 + i, Z + i))
        a.append(grp("s_mov_b32 exec_lo, 0\nds_write_b32 v%d, v%d\nds_write_b32 v%d, v%d offset:16\ns_mov_b32 exec_lo, -1" % (t0, Z, t0, Z + 1), tag="gw"))
        for i in range(2): a("v_permlane32_swap_b32 v%d, v%d" % (Z + 2 + i, OMG + i))
        for t in range(3):
            self.phi8(a, Q0 + 8 * t, KV0)
            for i in range(2):
                for k in range(2):
                    a("v_cvt_pk_bf16_f32 v%d, v%d, v%d" % (PQ + 6 * i + 2 * t + k, Q0 + 8 * t + 4 * i + 2 * k, Q0 + 8 * t + 4 * i + 2 * k + 1))
        return a
    def gather_loads(self, raw=False):
        a = L()
        for c in range(16):
            a("buffer_load_dwordx4 %s, v%d, %s, s%d offen offset:%d sc1" % (vr(GB + 4 * c), vL4[c // 4], srd(sWS), s_kvpld, 1024 * (c % 4)), tag="g%d" % c, raw=raw)
        return a
    def gsum(self, raw=False, pk=True):
        a = L()
        def add(d, s):
            if pk: a("v_pk_add_f32 %s, %s, %s\nv_pk_add_f32 %s, %s, %s" % (vr(d, 2), vr(d, 2), vr(s, 2), vr(d + 2, 2), vr(d + 2, 2), vr(s + 2, 2)), raw=raw)
            else:
                for k in range(4): a("v_add_f32 v%d, v%d, v%d" % (d + k, d + k, s + k), raw=raw)
        for c in range(2, 16):
            if not raw: a.wv("g%d" % c)
            add(GB + 4 * (c & 1), GB + 4 * c)
        add(GB, GB + 4)
        return a
    def gather_sum(self, pk):
        a = L()
        t0, t1 = vt[0], vt[1]
        slow = self.label("slow"); back = self.label("back")
        a("v_lshlrev_b32 v%d, 3, v%d" % (t0, v_lane))
        a.append(grp("s_lshl_b32 s%d, s%d, 9\ns_add_u32 s%d, s%d, %d\nv_add_u32 v%d, s%d, v%d" % (s_t0, s_w, s_t0, s_t0, L_KVX, t1, s_t0, t0)))
        a.extend(self.gsum(pk=pk))
        a.append(grp("v_cmp_u_f32 vcc, v%d, v%d\nv_cmp_u_f32 s[%d:%d], v%d, v%d\ns_or_b64 vcc, vcc, s[%d:%d]\ns_cbranch_scc1 %s\n%s:"
                     % (GB, GB + 1, s_mask, s_mask + 1, GB + 2, GB + 3, s_mask, s_mask + 1, slow, back)))
        s = self.slow
        self.spin_head(s, slow)
        s.extend(self.gather_loads(raw=True)); s("s_waitcnt vmcnt(0)", raw=True)
        s("v_max_u32 v%d, v%d, v%d" % (vt[2], GB, GB + 1), raw=True)
        for m in range(2, 64, 2): s("v_max3_u32 v%d, v%d, v%d, v%d" % (vt[2], vt[2], GB + m, GB + m + 1), raw=True)
        s("v_cmp_eq_u32 vcc, -1, v%d\ns_cbranch_vccnz %s" % (vt[2], slow), raw=True)
        s.extend(self.gsum(raw=True)); s("s_branch %s" % back, raw=True)
        a("v_cvt_pk_bf16_f32 v%d, v%d, v%d\nv_cvt_pk_bf16_f32 v%d, v%d, v%d" % (GB + 8, GB, GB + 1, GB + 9, GB + 2, GB + 3))
        a("ds_write_b64 v%d, %s" % (t1, vr(GB + 8, 2)), tag="xw")
        a("v_xor_b32 v%d, 256, v%d\nv_add_u32 v%d, %d, v%d\nv_add_u32 v%d, %d, v%d" % (t1, t0, t1, L_KVX, t1, t0, L_KVX, t0))
        a.delay(2)
        a.wl("xw"); a.wv("woE"); a("s_barrier")
        return a
    def attn2(self):
        a = L()
        t0, t1, t2, t3 = vt
        FA, FB_, FZA, FZB, R3, R4, R5 = [GB + k for k in (0, 4, 8, 12, 16, 18, 20)]
        E = GB + 22; SC = GB + 46; O = GB
        a("ds_read_b64 %s, v%d offset:%d" % (vr(R3, 2), t0, 1024), tag="xr")
        a("ds_read_b64 %s, v%d offset:%d" % (vr(R5, 2), t1, 1536), tag="xr")
        a("ds_read_b64 %s, v%d offset:%d" % (vr(R4, 2), t0, 1536), tag="xr")
        a("ds_read_b64 %s, v%d offset:%d" % (vr(FA, 2), t0, 0), tag="xr")
        a("ds_read_b64 %s, v%d offset:%d" % (vr(FB_ + 2, 2), t0, 512), tag="xr")
        a("v_lshrrev_b32 v%d, 1, v%d\nv_mul_u32_u24 v%d, %d, v%d" % (t2, v_q, t2, TSTR, t2))
        a("v_and_b32 v%d, 1, v%d\nv_lshl_add_u32 v%d, v%d, 3, v%d\nv_lshl_add_u32 v%d, v%d, 4, v%d" % (t3, v_q, t2, t3, t2, t2, v_n, t2))
        a("s_add_u32 s%d, s%d, %d\ns_add_u32 s%d, s%d, %d" % (s_t1, s_a2p, 160 * 256, s_t2, s_a2p, 160 * 256 + TSTR))
        a.delay(2)
        a.wl("xr")
        def masked(dst, src, lo, hi):
            a("s_mov_b32 s%d, 0x%x\ns_mov_b32 s%d, 0x%x" % (s_mask, lo, s_mask + 1, hi))
            for k in range(2): a("v_cndmask_b32 v%d, 0, v%d, s[%d:%d]" % (dst + k, src + k, s_mask, s_mask + 1))
        masked(FZA, R3, 0x0f550f55, 0x0f550f55); masked(FZA + 2, R5, 0x00000f55, 0)
        masked(FZB + 2, R3, 0xf0aaf0aa, 0xf0aaf0aa); masked(FZB, R5, 0xf0aa0000, 0)
        for i in range(2): a("%s %s, %s, %s, 0" % (M, vr(E + 12 * i + 8), vr(FZA), vr(PQ + 6 * i)))
        for i in range(2): a("%s %s, %s, %s, %s" % (M, vr(E + 12 * i + 8), vr(FZB), vr(PQ + 6 * i + 2), vr(E + 12 * i + 8)))
        masked(FA + 2, R4, 0x0000ffff, 0); masked(FB_, R4, 0xffff0000, 0)
        for i in range(2):
            a("%s %s, %s, %s, 0" % (M, vr(E + 12 * i), vr(FA), vr(PQ + 6 * i)))
            a("%s %s, %s, %s, 0" % (M, vr(E + 12 * i + 4), vr(FB_), vr(PQ + 6 * i + 2)))
        a("s_mov_b32 s%d, 0\ns_mov_b32 s%d, 0x0000ffff" % (s_mask, s_mask + 1))
        ih = [(i, h) for i in range(2) for h in range(2)]
        for i, h in ih: a("v_add_f32 v%d, s%d, v%d" % (SC + 6 * i + 2 * h, s_eps, E + 12 * i + 8 + h))
        for i, h in ih: a("v_rcp_f32 v%d, v%d" % (SC + 6 * i + 2 * h, SC + 6 * i + 2 * h))
        for i, h in ih: a("v_mul_f32 v%d, v%d, v%d" % (SC + 6 * i + 2 * h, SC + 6 * i + 2 * h, OMG + i))
        for i, h in ih: a("v_mov_b32 v%d, v%d" % (SC + 6 * i + 2 * h + 1, SC + 6 * i + 2 * h))
        for i, h in ih: a("v_permlane32_swap_b32 v%d, v%d" % (SC + 6 * i + 2 * h, SC + 6 * i + 2 * h + 1))
        for i in range(2):
            sc = SC + 6 * i
            a("v_cndmask_b32 v%d, v%d, v%d, s[%d:%d]" % (sc + 4, sc + 2, sc, s_mask, s_mask + 1))
            for k in range(4):
                a("v_mul_f32 v%d, v%d, v%d" % (E + 12 * i + k, E + 12 * i + k, sc))
                a("v_mul_f32 v%d, v%d, v%d" % (E + 12 * i + 4 + k, E + 12 * i + 4 + k, sc + 2))
            for k in range(4): a("v_cvt_pk_bf16_f32 v%d, v%d, v%d" % (O + 4 * i + k, E + 12 * i + 2 * k, E + 12 * i + 2 * k + 1))
            a("buffer_store_dwordx4 %s, v%d, %s, s%d offen sc1" % (vr(O + 4 * i), v_l16, srd(sWS), (s_t1, s_t2)[i]), tag="ost")
        for i in range(2):
            ez = E + 12 * i + 8; sc = SC + 6 * i
            for k in range(4): a("v_mul_f32 v%d, v%d, v%d" % (ez + k, ez + k, sc + 4))
            for k in range(2): a("v_cvt_pk_bf16_f32 v%d, v%d, v%d" % (O + 8 + 2 * i + k, ez + 2 * k, ez + 2 * k + 1))
        for k in range(2): a("v_permlane32_swap_b32 v%d, v%d" % (O + 8 + k, O + 10 + k))
        a("buffer_store_dwordx2 %s, v%d, %s, s%d offen offset:1024 sc1" % (vr(O + 10, 2), t2, srd(sWS), s_t1), tag="ost")
        return a

    def dma_wo(self, blk):
        a = L(); tag = "wo%d" % blk if blk < 4 else "woE"
        base, off = (s_wm0, WSLOT[blk] * SLOT) if blk < 4 else (s_priv, P_HT)
        a("s_add_u32 s%d, s%d, %d\ns_add_u32 m0, s%d, %d" % (s_so, s_woi, blk * SLOT, base, off), tag=tag)
        for ph in range(4):
            a("buffer_load_dwordx4 v%d, %s, s%d offen offset:%d sc1 lds" % (v_l16, srd(sWS), s_so, 1024 * ph), tag=tag)
        a("s_add_u32 m0, s%d, %d" % (base, off + 4096), tag=tag)
        a("buffer_load_dwordx4 v%d, %s, s%d offen sc1 lds" % (vL4[1], srd(sWS), s_so), tag=tag)
        return a
    def rd_we(self):
        a = L()
        a("v_add_u32 v%d, %d, v%d" % (vWE, PRIV + P_HT, vBA[0]))
        for f in range(20):
            kk, nt = divmod(f, 5)
            a("ds_read_b128 %s, v%d offset:%d" % (ar(WE[f]), vWE, kk * PRIV_SZ + 256 * nt), tag="we")
        return a
    def ao_loads(self):
        a = L()
        for kk in range(20):
            a("buffer_load_dwordx4 %s, v%d, %s, s%d offen offset:%d sc1" % (ar(AO + 4 * kk), vL4[(kk // 4) % 4], srd(sWS), s_ao if kk < 16 else s_ao2, 1024 * (kk % 4)), tag="ao%d" % kk)
        return a
    SKX = GB; GG = GB + 20; DS = GB + 24; SKA = GB + 30
    def skip_addr(self):
        a = L()
        t0, t1, t2 = vt[1], vt[2], vt[3]
        SK = self.SKA
        a("s_lshr_b32 s%d, s%d, 1\ns_lshl_b32 s%d, s%d, 5\ns_lshl_b32 s%d, s%d, 2\ns_add_u32 s%d, s%d, s%d" % (s_t1, s_w, s_t1, s_t1, s_t2, s_w1, s_t1, s_t1, s_t2))
        a("v_lshl_add_u32 v%d, v%d, 3, s%d" % (t0, v_q, s_t1))
        a("v_mul_u32_u24 v%d, 2560, v%d\nv_lshl_add_u32 v%d, v%d, 2, v%d\nv_add_u32 v%d, 5120, v%d" % (v_o0, t0, v_o0, v_n, v_o0, v_o1, v_o0))
        a("s_lshl_b32 s%d, s%d, 8\ns_add_u32 s%d, s%d, %d\nv_lshl_add_u32 v%d, v%d, 2, s%d" % (s_t2, s_rb, s_t2, s_t2, M_G, SK + 3, t0, s_t2))
        a("s_lshl_b32 s%d, s%d, 6\ns_add_u32 s%d, s%d, s%d\ns_mul_i32 s%d, s%d, 1280\ns_mul_i32 s%d, s%d, 160\ns_add_u32 s%d, s%d, s%d"
          % (s_t2, s_rb, s_t1, s_t1, s_t2, s_t1, s_t1, s_t2, s_ct, s_t1, s_t1, s_t2))
        for ph in range(3):
            a("v_add_u32 v%d, %d, v%d\nv_mul_u32_u24 v%d, 6554, v%d\nv_lshrrev_b32 v%d, 16, v%d" % (t0, 64 * ph, v_lane, t1, t0, t1, t1))
            a("v_mul_u32_u24 v%d, 10, v%d\nv_sub_u32 v%d, v%d, v%d" % (t2, t1, t0, t0, t2))
            a("v_and_b32 v%d, 28, v%d\nv_add_u32 v%d, v%d, v%d\nv_mul_u32_u24 v%d, 1280, v%d" % (t2, t1, t1, t1, t2, t1, t1))
            a("v_lshl_add_u32 v%d, v%d, 4, v%d\nv_add_u32 v%d, s%d, v%d" % (t1, t0, t1, SK + ph, s_t1, t1))
            if ph < 2: a("s_sub_u32 s%d, s%d, 1024" % (s_t1, s_t1))
        a("v_lshrrev_b32 v%d, 2, v%d\nv_mul_u32_u24 v%d, 160, v%d\nv_and_b32 v%d, 3, v%d\nv_lshl_add_u32 v%d, v%d, 3, v%d" % (t0, v_lane, t0, t0, t1, v_lane, t0, t1, t0))
        a("v_add_u32 v%d, s%d, v%d\nv_lshl_add_u32 v%d, v%d, 1, s%d" % (SK + 4, s_priv, t0, SK + 5, v_n, s_priv))
        a.append(grp("s_mul_i32 s%d, s%d, 160\n" % (s_t1, s_ct) + self.mk(sDSK, 32, s_t1, 160)))
        a("v_add_u32 v%d, s%d, v%d" % (vRX[0], s_priv, v_l16))
        for ml in range(1, 4):
            a("s_sub_u32 s%d, s%d, %d\ns_and_b32 s%d, s%d, 3\ns_mul_i32 s%d, s%d, %d\ns_add_u32 s%d, s%d, %d\nv_add_u32 v%d, s%d, v%d"
              % (s_t1, s_w, ml, s_t1, s_t1, s_t1, s_t1, PRIV_SZ, s_t1, s_t1, PRIV, vRX[ml], s_t1, v_l16))
        return a
    def skip_dma(self):
        a = L()
        a.wl("cr24")
        a("s_mov_b32 m0, s%d" % s_priv, tag="sk")
        for ph in range(3):
            a("buffer_load_dwordx4 v%d, %s, 0 offen offset:%d lds" % (self.SKA + ph, srd(sX), 1024 * ph), tag="sk")
        a("s_add_u32 m0, s%d, %d" % (s_priv, 3072), tag="sk")
        a("buffer_load_dwordx4 v%d, %s, 0 offen lds" % (v_l16, srd(sDSK)), tag="sk")
        return a
    def skip_calc(self):
        a = L()
        SK = self.SKA; X = self.SKX
        a("ds_read_b128 %s, v%d" % (vr(self.GG), SK + 3), tag="g2")
        a.wv("sk")
        for nt in range(5): a("ds_read_u16 v%d, v%d offset:%d" % (self.DS + nt, SK + 5, 3072 + 32 * nt), tag="g2")
        for nt in range(5): a("ds_read_b64_tr_b16 %s, v%d offset:%d" % (vr(X + 4 * nt + 2, 2), SK + 4, 32 * nt), tag="g2")
        a.delay(6)
        a.wl("g2")
        for nt in range(5): a("v_lshlrev_b32 v%d, 16, v%d" % (self.DS + nt, self.DS + nt))
        for nt in range(5):
            c = X + 4 * nt
            a("v_lshlrev_b32 v%d, 16, v%d\nv_and_b32 v%d, 0xffff0000, v%d\nv_lshlrev_b32 v%d, 16, v%d\nv_and_b32 v%d, 0xffff0000, v%d" % (c, c + 2, c + 1, c + 2, c + 2, c + 3, c + 3, c + 3))
            for r in range(4): a("v_mul_f32 v%d, v%d, v%d" % (c + r, c + r, self.DS + nt))
        return a
    def aload(self, k):
        b = L(); kk = k
        for ml in range(4):
            b("buffer_load_dwordx4 %s, v%d, %s, s%d offen offset:%d sc1" % (vr(AF + 16 * (k % NAF) + 4 * ml), vL4[kk // 4], srd(sWS), s_am + ml, 1024 * (kk % 4)), tag="a%d" % k)
        return b

    def build(self):
        o = self.opt
        a = L()
        t0, t1, t2, t3 = vt
        a.extend(self.prologue())
        NS = 70
        S = Sched([10] * 40 + [6] * 20 + [20] * 10)
        pre = [L() for _ in range(NS)]; post = [L() for _ in range(NS)]
        cj, ci_, cct = "s%d" % s_cj, "s%d" % s_ci, "s%d" % s_cct
        sigR = self.signal([(s_cj, C_R)], pre=self.poll_check(sDBG, "0", 0, "clr", 1))
        sigb = o.get("sigr", 1)
        n2 = o.get("n2", 5)
        a.extend(self.second[:n2])
        self.stamp(a, "prol")
        a.wv("w0")
        if sigb == 0: a.wv("rs0")
        self.stamp(a, "st0", level=2); a("s_barrier")
        a.extend(self.x_reads(0)); a.extend(self.frag_reads(0))
        if sigb == 0: a.extend(sigR)
        else: S.at(sigR, 3)
        for g in range(59):
            st1, kk1 = self.stage_of(g + 1)
            rd = list(self.frag_reads(g + 1))
            if g + 1 < 20 and kk1 == 0: rd = list(self.x_reads(2 * st1)) + rd
            if g + 1 < 20 and kk1 == 1: rd = rd + list(self.x_reads(2 * st1 + 1))
            for k, x in enumerate(rd):
                S.gap[S.start[g] + k].append(x); S.load[S.start[g] + k] += wcost(x)
        rest2 = self.second[n2:]
        if rest2: S.spread(rest2, 0, 1)
        for st in range(3):
            d = L(self.dma_x(2 * st + 4)); d.extend(self.dma_x(2 * st + 5)); d.extend(self.dma_w(st + 2))
            S.spread(d, (2 if rest2 else 1) if st == 0 else 4 * st + 1, 4 * st + 4)
        gr = o.get("pr", 13)
        S.at(self.poll_issue(sWS, cj, C_R, "pR"), gr - 2)
        d = L(self.poll_check(sWS, cj, C_R, "pR", 16)); d.extend(self.dma_w(5)); d.extend(self.dma_w(6)); S.spread(d, gr, 15)
        cu = [0]; crd = [0]
        def cstep(g_first, issue=True):
            d = L()
            r = crd[0]
            can_read = r < 25 and (r < 12 or g_first > 40 + (r - 12)) and (cu[0] - r >= o.get("clag", 4) or cu[0] >= 25)
            if r >= 9 and g_first < r1 + 4: can_read = False
            if cu[0] < 25 and cu[0] - self.NCU < crd[0] and issue:
                d.extend(self.dma_c(cu[0])); cu[0] += 1
            if can_read:
                d.extend(self.rd_c(r)); crd[0] += 1
            return d
        r1 = o.get("r1", 24)
        ncs = o.get("ncs", 4)
        for st in range(4, 10):
            d = L(self.dma_w(st + 3))
            if st == 4:
                d("buffer_load_dword v255, v%d, %s, 0 offen" % (v_ct, srd(sT)), tag="ct")
                d.extend(self.rp_issue(1))
            else:
                for _ in range(ncs): d.extend(cstep(4 * st))
            S.spread(d, 4 * st, 4 * st + 3)
        S.at(self.rp_read(1), r1); S.at(self.rp_store(1, range(5)), r1 + 1)
        pre[r1 + 7].wv("rs1"); S.at(self.signal([(s_cct, C_W)]), r1 + 7)
        S.at(self.poll_issue(sWS, cct, C_W, "pW"), 44)
        for g in range(41, 60):
            d = cstep(g)
            if d: S.spread(d, g, g)
        assert crd[0] == 25, crd
        d = L(self.poll_check(sWS, cct, C_W, "pW", 32)); d.extend(self.dma_wo(4)); d.extend(self.dma_wo(0))
        S.spread(d, o.get("w0", 50), 55)
        S.spread(self.dma_wo(1), 56, 59)
        S.place(self.pass1(), 20, 21); post[21].wl("sw"); post[21]("s_barrier")
        S.place(self.sread(), 22, 22.4); pre[23].wl("sr")
        co = self.coef()
        S.place(co[:20], 22, 22)
        S.place(self.horner1(), 23, 24.6)
        S.place(self.eback(), 24.6, 25); pre[27].wl("ew")
        ga = o.get("ga", 29)
        S.place(co[20:], 24.6, 28)
        S.spread(self.agg_loads(), ga, ga + 1)
        S.place(self.te_rd(), 28.5, 28); S.place(self.te(), 29.5, ga + 2)
        S.place(self.horner2(), ga + 3.5, 34); pre[35].wl("cw")
        S.place(self.pass2(), 35, 39)
        S.place(self.kv1a(), 40, 46); pre[47].wl("kw"); pre[47].wv("hst")
        S.place(list(self.signal([(s_ci, C_H)])) + list(self.kv1b()), 47, 49)
        pre[55].wl("kr")
        S.at(self.poll_issue(sWS, ci_, C_H, "pH"), o.get("ph", 57))
        gl = self.gather_loads()
        B = 60
        gw = o.get("gw", -1)
        if gw >= 0:
            S.place(list(self.gather_sum(pk=False)) + list(self.attn2()), B + gw, B + gw + 2)
            gs = gw + 1
        else:
            gs = 0
            S.place(self.attn2(), B, B + 1)
        so = L(); so.wv("ost"); so("s_barrier"); so.extend(self.signal([(s_ci, C_O)]))
        post[B + gs + 1 + o.get("olag", 2)].extend(so)
        ng = o.get("ng", 8) if gw >= 0 else 16
        pieces = split(gl[ng:], 2) + [[]]
        po = o.get("po", 8)
        aol = self.ao_loads()
        for k in range(10):
            d = L()
            if k == po - 1: d.extend(self.poll_issue(sWS, ci_, C_O, "pO"))
            if k == 0: d.extend(self.aload(2))
            if k < 3: d.extend(pieces[k])
            if k < 7: d.extend(self.aload(k + 3))
            if k == gs + 2: d.extend(self.dma_wo(2))
            if k == gs + 3: d.extend(self.dma_wo(3))
            if k == 6: d.extend(self.skip_dma())
            if k == po: d.extend(self.poll_check(sWS, ci_, C_O, "pO", 16))
            if po <= k: d.extend(aol[5 * (k - po):5 * (k - po) + 5])
            if d: S.spread(d, B + k, B + k if k < 9 else B + 9.25)
        aorest = aol[5 * (10 - po):] if po < 10 else list(self.poll_check(sWS, ci_, C_O, "pO", 16)) + list(aol)
        S.place(self.skip_addr(), B + max(gs + 2, 3), B + 5)
        S.spread(self.rd_we(), B + 6, B + 7)
        S.place(self.skip_calc(), B + 8, B + 9)
        post[B + 8].wl("g2"); post[B + 8]("s_barrier")
        for z in range(15):
            k = S.start[B + 9] + 5 + z
            S.gap[k].append(I("ds_write_b128 v%d, %s offset:%d" % (vRX[0], vr(ACC + 20 * (1 + z // 5) + 4 * (z % 5)), z * 1024), tag="rw"))
        for g in range(60):
            p = L()
            nt_ = 5 if g < 40 else 3
            p.wl("f%d_0" % g)
            for t in range(1, nt_):
                S.gap[S.start[g] + 2 * t - 1].append(WL("f%d_%d" % (g, t)))
            if g + 1 < 60:
                st1, kk1 = self.stage_of(g + 1)
                if kk1 == 0:
                    p.wl("f%d_%d" % (g, nt_ - 1))
                    fine = o.get("f0", 99) <= g <= o.get("f1", -1)
                    p.extend(pre[g]); p.wv("w%d" % st1)
                    if fine: self.stamp(p, "wv%d" % g)
                    p("s_barrier")
                    if fine: self.stamp(p, "bar%d" % g)
                    if st1 == 5: p.extend(self.calc_kvaddr())
                else:
                    assert not pre[g], g
            a.extend(flat(p))
            a.extend(S.emit(g, self.mfmas(g)))
            a.extend(post[g])
            if g in (19, 39, 59) or o.get("f0", 99) <= g <= o.get("f1", -1): self.stamp(a, "g%d" % g)
            elif g % 4 == 3: self.stamp(a, "g%d" % g, level=2)
        ph_ = list(self.poll_check(sWS, ci_, C_H, "pH", 16)) + list(self.aload(0)) + list(self.aload(1))
        d = ph_ + list(gl[:ng]) if gw >= 0 else list(gl) + ph_
        a.extend(flat(merge([d, self.phiq()])))
        self.stamp(a, "phiq")
        if gw < 0:
            a.extend(flat(self.gather_sum(pk=True)))
            self.stamp(a, "gsum")
        for k in range(10):
            a.wv("a%d" % k)
            a.wl("cr%d" % ((k >> 1) * 5 + 4))
            a.extend(S.emit(B + k, self.mfmas(B + k)))
            a.extend(post[B + k])
            self.stamp(a, "k%d" % k, level=2 if k != 9 else 1)
        h1 = len(aorest) // 2
        a.extend(flat(aorest[:h1]))
        a.wl("rw"); a.wv("wo3"); a("s_barrier")
        x = L()
        P = ACC + 20
        for nt in range(5):
            for ml in range(1, 4):
                x("ds_read_b128 %s, v%d offset:%d" % (vr(P + 12 * nt + 4 * (ml - 1)), vRX[ml], ((ml - 1) * 5 + nt) * 1024), tag="rr%d" % nt)
        for nt in range(5):
            for h in (0, 2): x("v_pk_add_f32 %s, %s, %s" % (vr(ACC + 4 * nt + h, 2), vr(ACC + 4 * nt + h, 2), vr(self.SKX + 4 * nt + h, 2)))
        for nt in range(5):
            x.wl("rr%d" % nt)
            b = P + 12 * nt; c = ACC + 4 * nt
            for h in (0, 2):
                x("v_pk_add_f32 %s, %s, %s" % (vr(b + h, 2), vr(b + h, 2), vr(b + 4 + h, 2)))
                x("v_pk_add_f32 %s, %s, %s" % (vr(c + h, 2), vr(c + h, 2), vr(b + 8 + h, 2)))
            for h in (0, 2): x("v_pk_add_f32 %s, %s, %s" % (vr(c + h, 2), vr(c + h, 2), vr(b + h, 2)))
            for h in (0, 2): x("v_pk_mul_f32 %s, %s, %s" % (vr(c + h, 2), vr(c + h, 2), vr(self.GG + h, 2)))
        ksw = o.get("ksw", 8)
        order = [(kk, nt) for kk in range(ksw) for nt in range(5)] + [(kk, nt) for nt in range(5) for kk in range(ksw, 20)]
        NB = 16; LA = o.get("la", 12)
        stream = [f for f in order if f[0] < 16]
        def rd(z):
            kk, nt = stream[z]
            slot = WSLOT[kk // 4]; hi = slot >= 2
            return I("ds_read_b128 %s, v%d offset:%d" % (vr(AF + 4 * (z % NB)), vBA[2 * hi], (slot - 2 * hi) * SLOT + 5120 * (kk % 4) + 256 * nt), tag="wf%d" % z)
        x2 = L(x[:25]); x3 = L(x[25:])
        a.extend(flat(merge([x2, aorest[h1:]])))
        a.extend(flat(merge([x3, [rd(z) for z in range(LA)]])))
        self.stamp(a, "xchg")
        nr = LA; pend = []
        for idx, (kk, nt) in enumerate(order):
            a.wv("ao%d" % kk)
            if kk < 16:
                z = stream.index((kk, nt)); a.wl("wf%d" % z); w = vr(AF + 4 * (z % NB))
            else:
                w = ar(WE[(kk - 16) * 5 + nt])
            c = ACC + 4 * nt
            a("%s %s, %s, %s, %s" % (M, vr(c), ar(AO + 4 * kk), w, vr(c)))
            used = sum(1 for f in order[:idx + 1] if f[0] < 16)
            if nr < len(stream) and nr - used < LA + 3 and nr - NB < used - 1:
                a.append(rd(nr)); nr += 1
            if pend and idx >= pend[0][0]:
                a.append(pend.pop(0)[1])
            if kk == 19:
                for r in range(4):
                    pend.append((idx + 3 + 2 * r, I("buffer_store_dword v%d, v%d, %s, 0 offen offset:%d %s" % (c + r, (v_o0, v_o1)[r >> 1], srd(sOUT), 2560 * (r & 1) + 64 * nt, self.outflag), tag="out")))
        for _, s_ in pend: a.append(s_)
        self.stamp(a, "end")
        if self.stamps:
            a("s_waitcnt vmcnt(0)")
            self.stamp(a, "drain")
            a("s_sub_u32 s%d, 0x40000, s%d\nv_writelane_b32 v0, s%d, 62" % (s_t0, s_spin, s_t0))
            self.stamp(a, "rt1", real=True)
            a("v_readlane_b32 s%d, v0, 63\ns_nop 3\ns_lshl_b32 s%d, s%d, 2\ns_add_u32 s%d, s%d, s%d\ns_lshl_b32 s%d, s%d, 8\ns_add_u32 s%d, s%d, %d"
              % (s_t0, s_t0, s_t0, s_t0, s_t0, s_w, s_t0, s_t0, s_t0, s_t0, STAMP_OFF))
            a("v_lshlrev_b32 v2, 2, v%d\nbuffer_store_dword v0, v2, %s, s%d offen" % (v_lane, srd(sWS), s_t0))
        a("L_end:\ns_endpgm")
        a.extend(self.slow)
        self.S = S
        return flat(a)

def make(verbose=False, **kw):
    g = Gen(**kw)
    ins = g.build()
    check_m0(ins, {"s%d" % s_so})
    o = g.opt
    if o.get("noc"):
        import re
        ins = [i for i in ins if not (i.tag and re.fullmatch(r"cr?\d+", str(i.tag)))]
    if o.get("now"):
        import re
        ins = [i for i in ins if not (i.tag in ("w8", "w9", "w10", "w11", "w12"))]
    if o.get("noval"):
        nm = 0; out = []
        for i in ins:
            if i.kind == "mfma": nm += 1
            if 240 < nm < 440 and i.kind == "valu" and i.text.startswith(("v_fma", "v_mul_f32", "v_exp", "v_rcp", "v_add_f32", "v_cvt_pk")): continue
            out.append(i)
        ins = out
    if o.get("nofr"):
        import re
        ins = [i for i in ins if not (i.tag and re.fullmatch(r"f(2[1-9]|3\d)_\d", str(i.tag)))]
    ins = resolve_waits(ins)
    ins = hazards(ins, verbose=True)
    if verbose:
        S = g.S
        print("load per gap by step:", " ".join("%d:%.1f" % (k, sum(S.load[S.start[k]:S.start[k + 1]]) / S.counts[k]) for k in range(70)))
    K = NAME + "_kernel"
    txt = header([(K, 256, 256, 163840)]) + kernel_begin(K) + render(ins) + "L_codeend:\n" + rodata() + descriptor(K, 512, 102, 256)
    if g.stamps: txt += "; STAMPS " + " ".join(g.names) + "\n"
    return txt, g.nst

if __name__ == "__main__":
    out = sys.argv[1]
    kw = {}; opt = {}
    for x in sys.argv[2:]:
        k, v = x.split("=")
        if k == "stamps": kw[k] = int(v)
        elif k in ("mapping", "rot", "outflag"): kw[k] = v
        else: opt[k] = int(v)
    txt, nst = make(verbose=True, opt=opt, **kw)
    open(out, "w").write(txt)
```

```python
import sys, struct
from asmgen import NAME, header, kernel_begin, descriptor, rodata, STAMP_OFF
from ir import *

def f2u(x): return struct.unpack("<I", struct.pack("<f", x))[0]
SLOT = 20480
PRIV = 81920; PRIV_SZ = 17408; P_HT = 12288
L_KVR = SLOT; L_RP0 = 3 * SLOT
MISC = PRIV + 4 * PRIV_SZ
M_G = MISC; M_GATE = MISC + 512; M_S = MISC + 2560; M_PARAM = M_S; L_KVX = M_S; M_DSK = MISC + 8960
C_R = 0; C_IMG = 2048
C_H, C_O = 0, 256
W_AGG = 0x10000; W_KVP = 0x40000; W_A2 = 0x200000
W_KVI = 0xA00000; W_QI = 0xC00000; W_WOI = 0xD00000
TSTR = 61440
LOG2E = 0x3fb8aa3b; EPS = f2u(1e-6); NEL = f2u(-1e-6 * 1.4426950408889634)
OOB = 0x7ffffff0

sX, sB, sRP, sC, sWS, sOUT, sDBG, sAG, sT = 48, 52, 56, 60, 64, 68, 72, 76, 80
sDSK = sB
def srd(b): return "s[%d:%d]" % (b, b + 3)
s_w, s_i, s_j, s_ct, s_rb, s_priv, s_wm0, s_bm0 = 3, 4, 5, 6, 7, 8, 9, 10
s_t0, s_t1, s_t2, s_t3, s_so = 11, 12, 13, 14, 15
s_cj, s_ci, s_rstep, s_rlds, s_w1, s_cct = 84, 85, 86, 87, 88, 89
s_am = 90; s_log2e, s_eps, s_a2p, s_spin, s_mask = 94, 95, 96, 97, 98
s_aggst, s_kvpst = 34, 35
s_kvi, s_aggld, s_aggld2, s_kvpld, s_woi, s_pt = 16, 17, 24, 25, 28, 29
s_qb, s_wob = 36, 37
s_rx, s_rbb, s_rk, s_rq = 0, 1, 2, 38
s_hs, s_hp, s_os, s_op = 39, 40, 41, 45
s_so2 = 31
s_lo2 = 46
s_rd = [18, 19, 20, 21]; s_rsig = 30
sR2 = 76
s_ao, s_ao2 = 22, 23

v_lane, v_n, v_q = 1, 2, 3
vXA = [4, 5]; vBA = [6, 7, 8, 9]; vGA = 10; vDX = [11, 12, 13, 14]; vDW = [15, 16, 17, 18, 19]
v_l16, v_col4 = 20, 21
vA8, vB8, vA128, vB128 = 22, 23, 24, 25
v_poll, v_one = 26, 27
vt = [28, 29, 30, 31]
v_nel = vGA
U0 = 32; KV0 = 80; Q0 = 192; S0 = 120; TE = 136; FB0 = 144; PR0 = 192
v_zero, v_crd, v_cwr = TE + 5, TE + 6, TE + 7
RB, RT, v_ct, v_pl = 73, 74, 75, 72
RV = KV0 + 16
vY, vI0, vI1, vI2, vWE = 76, 77, 78, 79, 9
RD1 = 236
EPSQ = 222; EPSX = 226; TT = 232
vC = [184, 185]; v_srow, v_htw, v_htr, v_hst, v_sad, v_kvw = 186, 187, 188, 189, 190, 191
vL4 = [v_l16, vA8, vB8, vA128]
v_o0, v_o1 = vDX[0], vDX[1]
vRX = [vDW[0], vDW[1], vDW[2], vDW[3]]
ACC = 32; AF = 112; NAF = 4; GB = 176; PQ = 240; OMG = 252
GA = 104; SEL = 216; GD = 224; v_l8 = vB128
AO = 104
WE = list(range(184, 256, 4)) + [0, 4]
WSLOT = [2, 1, 3, 0]
def vr(b, n=4): return "v[%d:%d]" % (b, b + n - 1)
def ar(b, n=4): return "a[%d:%d]" % (b, b + n - 1)
DPP = "row_ror:8 row_mask:0xf bank_mask:0xf"
M = "v_mfma_f32_16x16x32_bf16"
def grp(s, tag=None): return G(L()(s, tag=tag))

class Gen:
    def __init__(self, stamps=0, mapping="4x8", rot="ij", outflag="sc1", opt=None):
        self.stamps = stamps; self.mapping = mapping; self.rot = rot; self.outflag = outflag
        self.opt = opt or {}
        self.slow = L(); self.nst = 2; self.nl = 0; self.names = ["rt0", "start"]
    def label(self, b):
        self.nl += 1
        return "L_%s_%d" % (b, self.nl)
    def stamp(self, a, name="", level=1, real=False):
        if self.stamps and self.stamps >= level:
            k = self.nst; self.nst += 1
            assert k < 62
            self.names.append(name)
            a.append(grp("%s s[100:101]\ns_waitcnt lgkmcnt(0)\nv_writelane_b32 v0, s100, %d" % ("s_memrealtime" if real else "s_memtime", k)))
    def only(self, cond, body):
        lab = self.label("skip")
        g = L()
        g({"w0": "s_cmp_eq_u32 s%d, 0", "lo": "s_cmp_lt_u32 s%d, 2", "hi": "s_cmp_ge_u32 s%d, 2", "n3": "s_cmp_lt_u32 s%d, 3", "w3": "s_cmp_eq_u32 s%d, 3", "rp": "s_cmp_lt_u32 s%d, 640"}[cond] % (s_unit if cond == "rp" else s_w))
        g("s_cbranch_scc0 %s" % lab)
        for i in flat(body):
            i.opt = lab; g.append(i)
        g(lab + ":")
        return G(g)
    def spin_head(self, s, slow):
        s(slow + ":", raw=True)
        s("s_sub_u32 s%d, s%d, 1\ns_cmp_eq_u32 s%d, 0\ns_cbranch_scc1 L_end" % (s_spin, s_spin, s_spin), raw=True)
        if self.opt.get("sleep", 0): s("s_sleep %d" % self.opt["sleep"], raw=True)
    def poll_issue(self, srdb, soff, imm, tag):
        return L()("buffer_load_dword v%d, off, %s, %s offset:%d sc1" % (v_poll, srd(srdb), soff, imm), tag=tag)
    def poll_check(self, srdb, soff, imm, tag, target):
        slow = self.label("slow"); back = self.label("back")
        g = L()
        g.wv(tag)
        g("v_readfirstlane_b32 s%d, v%d" % (s_pt, v_poll))
        g("s_cmp_ge_u32 s%d, %d\ns_cbranch_scc0 %s" % (s_pt, target, slow))
        g(back + ":")
        s = self.slow
        self.spin_head(s, slow)
        s("buffer_load_dword v%d, off, %s, %s offset:%d sc1" % (v_poll, srd(srdb), soff, imm), raw=True)
        s("s_waitcnt vmcnt(0)\nv_readfirstlane_b32 s%d, v%d\ns_nop 1\ns_cmp_ge_u32 s%d, %d" % (s_pt, v_poll, s_pt, target), raw=True)
        s("s_cbranch_scc0 %s\ns_branch %s" % (slow, back), raw=True)
        return [G(g)]
    def signal(self, pairs, pre=None):
        b = L()
        if pre: b.extend(pre)
        b("s_mov_b64 exec, 1")
        for sreg, imm in pairs: b("buffer_atomic_add v%d, off, %s, s%d offset:%d sc1" % (v_one, srd(sWS), sreg, imm), tag="at")
        b("s_mov_b64 exec, -1")
        return [self.only("w0", b)]

    def rotso(self, a, base, c, lim, tag, add=None):
        a("s_add_u32 s%d, s%d, %d\ns_sub_u32 s%d, s%d, %d\ns_min_u32 s%d, s%d, s%d" % (s_so, base, c, s_so2, s_so, lim, s_so, s_so, s_so2), tag=tag)
        if add is not None: a("s_add_u32 s%d, s%d, s%d" % (s_so, s_so, add), tag=tag)
    def dma_x(self, sg):
        a = L(); tag = "x%d" % sg
        if sg >= 4: a.wl("xr%d" % (sg - 4))
        a("s_add_u32 m0, s%d, %d" % (s_priv, 4096 * (sg & 3)), tag=tag)
        if sg: self.rotso(a, s_rx, 128 * sg, 1280, tag)
        for ph in range(4):
            a("buffer_load_dwordx4 v%d, %s, s%d offen offset:%d lds" % (vDX[ph], srd(sX), s_so if sg else s_rx, 1024 * ph), tag=tag)
        return a
    def dma_w(self, st):
        a = L()
        slot = st % 4; tag = "w%d" % st
        if st < 5:
            a("s_add_u32 m0, s%d, %d" % (s_bm0, slot * SLOT), tag=tag)
            self.rotso(a, s_rbb, 256 * st, 1280, tag)
            for ph in range(4):
                a("buffer_load_dwordx4 v%d, %s, s%d offen offset:%d lds" % (vDW[ph], srd(sB), s_so, 1024 * ph), tag=tag)
            a("s_add_u32 m0, s%d, %d" % (s_bm0, slot * SLOT + 4096), tag=tag)
            a("buffer_load_dwordx4 v%d, %s, s%d offen lds" % (vDW[4], srd(sB), s_so), tag=tag)
            return a
        a("s_add_u32 m0, s%d, %d" % (s_wm0, slot * SLOT), tag=tag)
        if st < 10: self.rotso(a, s_rk, 20480 * (st - 5), 102400, tag, s_kvi)
        else: self.rotso(a, s_rq, 20480 * (st - 10), 51200, tag, s_qb)
        for ph in range(4):
            a("buffer_load_dwordx4 v%d, %s, s%d offen offset:%d sc1 lds" % (v_l16, srd(sWS), s_so, 1024 * ph), tag=tag)
        a("s_add_u32 m0, s%d, %d\ns_add_u32 s%d, s%d, 4096" % (s_wm0, slot * SLOT + 4096, s_so, s_so), tag=tag)
        a("buffer_load_dwordx4 v%d, %s, s%d offen sc1 lds" % (v_l16, srd(sWS), s_so), tag=tag)
        if st == 12: return [self.only("lo", a)]
        return a
    NCU = 6
    def c_reg(self, kap, nt):
        u = (kap >> 1) * 5 + nt
        return (160 + 8 * u if u < 12 else 8 * (u - 12)) + 4 * (kap & 1)
    def dma_c(self, u):
        a = L(); sg, nt = divmod(u, 5); tag = "c%d" % u
        if u >= self.NCU: a.wl("cr%d" % (u - self.NCU))
        if u == 0: a.wl("xr9")
        a("s_add_u32 m0, s%d, %d" % (s_priv, 2048 * (u % self.NCU)), tag=tag)
        a("s_mov_b32 s%d, %d" % (s_so, nt * 20480 + 128 * sg), tag=tag)
        for h in range(2):
            a("buffer_load_dwordx4 v%d, %s, s%d offen offset:%d lds" % (vC[h], srd(sC), s_so, 1024 * h), tag=tag)
        return a
    def rd_c(self, u):
        a = L(); sg, nt = divmod(u, 5)
        a.wv("c%d" % u)
        for e in range(2):
            a("ds_read_b128 %s, v%d offset:%d" % (ar(self.c_reg(2 * sg + e, nt)), vXA[e], 2048 * (u % self.NCU)), tag="cr%d" % u)
        return a
    def rp_issue(self):
        b = L(); tag = "rp"
        for k in range(3):
            b("s_add_u32 m0, s%d, %d" % (s_rlds, 896 * k), tag=tag)
            b("buffer_load_dwordx4 v%d, %s, 0 offen offset:%d lds" % (RV, srd(sRP), 128 * k), tag=tag)
        b("s_add_u32 m0, s%d, 3072" % s_rlds, tag=tag)
        b("buffer_load_dwordx4 v%d, %s, 0 offen lds" % (RV + 1, srd(sR2)), tag=tag)
        return b
    def rp_read(self):
        b = L()
        b.wv("rp")
        for z in range(4):
            for e in range(2):
                b("ds_read_b64_tr_b16 %s, v%d offset:%d" % (vr(KV0 + 4 * z + 2 * e, 2), RT, 1024 * z + 512 * e), tag="rr")
        return b
    def rp_store(self):
        b = L()
        b.wl("rr")
        for z in range(4):
            b("buffer_store_dwordx4 %s, v%d, %s, s%d offen sc1" % (vr(KV0 + 4 * z), RV + 2 + z, srd(sWS), s_rd[z]), tag="rs")
        return b
    def rp_signal(self):
        b = L(flat(self.poll_check(sDBG, "0", 0, "clr", 1)))
        b("s_mov_b64 exec, 1\nbuffer_atomic_add v%d, off, %s, s%d sc1\ns_mov_b64 exec, -1" % (v_one, srd(sWS), s_rsig), tag="at")
        return [G(b)]
    def clears(self):
        b = L()
        b("buffer_store_dwordx2 %s, v%d, %s, s%d offen sc1" % (vr(S0, 2), S0 + 2, srd(sWS), s_kvpst), tag="cl")
        b("buffer_store_dword v%d, v%d, %s, s%d offen sc1" % (S0, v_col4, srd(sAG), s_aggst), tag="cl")
        return b
    def vpoll_issue(self, tag, raw=False):
        return L()("buffer_load_dword v%d, v%d, %s, 0 offen sc1" % (v_poll, v_pl, srd(sWS)), tag=tag, raw=raw)
    def vpoll_check(self, tag, target):
        slow = self.label("slow"); back = self.label("back")
        chk = "v_cmp_gt_u32 vcc, %d, v%d\n" % (target, v_poll)
        g = L(); g.wv(tag); g(chk + "s_cbranch_vccnz %s\n%s:" % (slow, back))
        s = self.slow
        self.spin_head(s, slow)
        s.extend(self.vpoll_issue(tag, raw=True))
        s("s_waitcnt vmcnt(0)\n" + chk + "s_cbranch_vccnz %s\ns_branch %s" % (slow, back), raw=True)
        return g
    def wsignal(self, tag, sreg):
        g = L(); g.wv(tag)
        g("s_mov_b64 exec, 1\nbuffer_atomic_add v%d, off, %s, s%d sc1\ns_mov_b64 exec, -1" % (v_one, srd(sWS), sreg), tag="at")
        return [G(g)]

    def stage_of(self, g):
        if g < 40: return g // 4, g % 4
        return 10 + (g - 40) // 8, (g - 40) % 8
    def fb(self, g): return FB0 + (20 if g < 40 else 12) * (g & 1)
    def frag_reads(self, g):
        a = L()
        st, kk = self.stage_of(g)
        slot = st % 4; hi = slot >= 2; off = (slot - 2 * hi) * SLOT
        fb = self.fb(g); tag = "f%d" % g
        if g < 20:
            adr = vBA[(kk & 1) + 2 * hi]
            for t in range(5):
                a("ds_read_b128 %s, v%d offset:%d" % (vr(fb + 4 * t), adr, off + 10240 * (kk >> 1) + 1024 * t), tag=tag + "_%d" % t)
        elif g < 40:
            o = off + 5120 * kk
            for t, (adr, to) in enumerate([(0, 0), (0, 384), (1, 0), (0, 640), (0, 1024)]):
                a("ds_read_b128 %s, v%d offset:%d" % (vr(fb + 4 * t), vBA[adr + 2 * hi], o + to), tag=tag + "_%d" % t)
        else:
            o = off + 5120 * (kk >> 1) + 640 * (kk & 1)
            a("ds_read_b128 %s, v%d offset:%d" % (vr(fb), vBA[2 * hi], o), tag=tag + "_0")
            y = L()("ds_read_b128 %s, v%d" % (vr(fb + 4), vY), tag=tag + "_1")
            if g < 59: y("v_add_u32 v%d, v%d, v%d" % (vY, vY, vI2 if g == 55 else vI1 if g & 1 else vI0))
            a.append(G(y))
            a("ds_read_b128 %s, v%d offset:%d" % (vr(fb + 8), vBA[2 * hi], o + 384), tag=tag + "_2")
        return a
    def x_reads(self, sg):
        a = L(); tag = "xr%d" % sg
        for e in range(2):
            for i in range(2):
                a("ds_read_b128 %s, v%d offset:%d" % (ar(8 * (2 * sg + e) + 4 * i), vXA[e], 4096 * (sg & 3) + 2048 * i), tag=tag)
        return a
    def mfmas(self, g):
        a = L()
        if g >= 60:
            k = g - 60
            if k < 8: lst = [(ml, k, nt) for ml in range(4) for nt in range(5)]
            else: lst = [(ml, kk, nt) for ml in (1, 2, 3, 0) for kk in (8, 9) for nt in range(5)][20 * (k - 8):20 * (k - 8) + 20]
            for ml, kk, nt in lst:
                dd = ACC + 20 * ml + 4 * nt
                a("%s %s, %s, %s, %s" % (M, vr(dd), vr(AF + 16 * (kk % NAF) + 4 * ml), ar(self.c_reg(kk, nt)), vr(dd) if (kk or ml == 0) else "0"))
            return a
        ks = g % 20; fb = self.fb(g)
        if g < 20:
            for t in range(5):
                for i in range(2):
                    d = U0 + 8 * t + 4 * i
                    a("%s %s, %s, %s, %s" % (M, vr(d), ar(8 * ks + 4 * i), vr(fb + 4 * t), vr(d) if ks else "0"))
        elif g < 40:
            for t in range(5):
                for i in range(2):
                    d = KV0 + 8 * t + 4 * i
                    c0 = [vr(EPSQ), vr(EPSQ), vr(EPSX), "0", "0"][t]
                    a("%s %s, %s, %s, %s" % (M, vr(d), ar(8 * ks + 4 * i), vr(fb + 4 * t), vr(d) if ks else c0))
        else:
            for t in range(3):
                for i in range(2):
                    d = Q0 + 8 * t + 4 * i
                    a("%s %s, %s, %s, %s" % (M, vr(d), vr(fb + 4 * t), ar(8 * ks + 4 * i), vr(d) if ks else vr(EPSQ)))
        return a
    def phi8(self, a, r, tmp):
        for k in range(8): a("v_fma_f32 v%d, v%d, s%d, v%d" % (tmp + k, r + k, s_log2e, v_nel))
        for k in range(8):
            a("v_exp_f32 v%d, v%d clamp" % (tmp + k, tmp + k))
            a("v_max_f32 v%d, s%d, v%d" % (r + k, s_eps, r + k))
        for k in range(8): a("v_add_f32 v%d, v%d, v%d" % (r + k, r + k, tmp + k))
    def mk(self, b, lo, add_reg, nrec):
        if add_reg is None: t = "s_mov_b32 s%d, s%d\ns_mov_b32 s%d, s%d\n" % (b, lo, b + 1, lo + 1)
        else: t = "s_add_u32 s%d, s%d, s%d\ns_addc_u32 s%d, s%d, 0\n" % (b, lo, add_reg, b + 1, lo + 1)
        if isinstance(nrec, int): t += "s_mov_b32 s%d, 0x%x\n" % (b + 2, nrec)
        elif nrec: t += nrec + "\n"
        return t + "s_mov_b32 s%d, 0x20000\n" % (b + 3)
    def prologue(self):
        a = L()
        t0, t1, t2, t3 = vt
        a("s_cmp_ge_u32 s2, 256\ns_cbranch_scc1 L_end")
        a("s_load_dwordx16 s[16:31], s[0:1], 0\ns_load_dwordx16 s[32:47], s[0:1], 64")
        if self.stamps: a("s_memrealtime s[98:99]\ns_memtime s[100:101]")
        a("s_getpc_b64 s[%d:%d]\nL_pc0:" % (sT, sT + 1))
        a("s_mov_b32 s%d, L_codeend-L_pc0\ns_mov_b32 s%d, 0x20000" % (sT + 2, sT + 3))
        a("s_lshr_b32 s%d, s2, 3\ns_lshl_b32 s%d, s%d, 10" % (s_t1, s_t2, s_t1))
        a("v_lshrrev_b32 v%d, 5, v0\nv_lshlrev_b32 v%d, 7, v%d" % (t1, t1, t1))
        a("buffer_load_dword v255, v%d, %s, s%d offen" % (t1, srd(sT), s_t2), tag="pf")
        a("v_lshrrev_b32 v%d, 6, v0\nv_and_b32 v%d, 63, v0" % (t0, v_lane))
        a("v_readfirstlane_b32 s%d, v%d" % (s_w, t0))
        g_, o_, b_ = s_cj, s_ci, s_cct
        a("s_lshl_b32 s%d, s%d, 8\ns_add_u32 s%d, s%d, s2\ns_mul_i32 s%d, s%d, 6554\ns_lshr_b32 s%d, s%d, 16\ns_mul_i32 s%d, s%d, 10\ns_sub_u32 s%d, s%d, s%d"
          % (g_, s_w, g_, g_, o_, g_, o_, o_, s_t0, o_, b_, g_, s_t0))
        a("s_lshl_b32 s%d, s%d, 12\ns_add_u32 s%d, s%d, %d" % (s_rlds, s_w, s_rlds, s_rlds, L_RP0))
        a("s_mul_i32 s%d, s%d, %d\ns_mul_i32 s%d, s%d, 384\ns_add_u32 s%d, s%d, s%d" % (s_am, o_, 8 * 3840, s_t0, b_, s_am, s_am, s_t0))
        a("s_mul_i32 s%d, s%d, 205\ns_lshr_b32 s%d, s%d, 10\ns_mul_i32 s%d, s%d, 5\ns_sub_u32 s%d, s%d, s%d" % (s_t0, o_, s_t0, s_t0, s_t0, s_t0, s_t2, o_, s_t0))
        a("s_add_u32 s%d, s%d, s%d\ns_mul_i32 s%d, s%d, 5120\ns_lshl_b32 s%d, s%d, 7\ns_add_u32 s%d, s%d, s%d" % (s_t0, s_t0, o_, s_t0, s_t0, s_t3, b_, s_am + 1, s_t0, s_t3))
        a("s_cmp_lt_u32 s%d, 4\ns_cselect_b32 s%d, %d, 0" % (s_t2, s_t2, 20 * 1280))
        a("s_cmp_lt_u32 s%d, 800\ns_cselect_b32 s%d, %d, 0\ns_cselect_b32 s%d, %d, 0" % (g_, sRP + 2, 7 * 3840 + 384, sR2 + 2, 27 * 1280 + 128))
        a("s_mov_b32 s%d, 0x20000\ns_mov_b32 s%d, 0x20000" % (sRP + 3, sR2 + 3))
        a("v_lshrrev_b32 v%d, 3, v%d\nv_and_b32 v%d, 7, v%d\nv_lshlrev_b32 v%d, 4, v%d" % (t0, v_lane, t3, v_lane, t1, t3))
        a("v_mul_u32_u24 v%d, 3840, v%d\nv_add_u32 v%d, v%d, v%d\nv_mul_u32_u24 v%d, 1280, v%d\nv_add_u32 v%d, v%d, v%d" % (RV, t0, RV, RV, t1, vC[0], t0, RV + 1, vC[0], t1))
        a("v_lshrrev_b32 v%d, 2, v%d\nv_mad_u32_u24 v%d, v%d, s%d, v%d" % (t1, t0, RV + 1, t1, s_t2, RV + 1))
        a("s_or_b32 s%d, s2, s%d\ns_mov_b32 s%d, s2\ns_and_b32 s%d, s%d, 1\ns_and_b32 s%d, s2, 7" % (s_a2p, s_w, s_spin, s_w1, s_w, s_t0))
        a("s_waitcnt lgkmcnt(0)")
        if self.stamps:
            a("v_writelane_b32 v0, s98, 0\nv_writelane_b32 v0, s100, 1\nv_writelane_b32 v0, s2, 63")
            self.stamp(a, "karg", level=2)
        lsk = self.label("noclear")
        a("s_cmp_lg_u32 s%d, 800\ns_cbranch_scc1 %s" % (g_, lsk))
        a("v_lshlrev_b32 v%d, 7, v%d\nv_mov_b32 v%d, 0\nv_add_u32 v%d, 8192, v%d\nv_add_u32 v%d, 16384, v%d" % (U0, v_lane, U0 + 1, U0 + 2, U0, U0 + 3, U0), raw=True)
        a("global_store_dword v%d, v%d, s[46:47] sc1\nglobal_store_dword v%d, v%d, s[46:47] sc1\nglobal_store_dword v%d, v%d, s[46:47] sc1" % (U0, U0 + 1, U0 + 2, U0 + 1, U0 + 3, U0 + 1), raw=True)
        a("v_mov_b32 v%d, 1\ns_waitcnt vmcnt(0)" % v_one, raw=True)
        a("global_store_dword v%d, v%d, s[44:45] sc1" % (U0 + 1, v_one), raw=True)
        a(lsk + ":")
        a("s_add_u32 s%d, s36, s%d\ns_addc_u32 s%d, s37, 0\ns_add_u32 s%d, s38, s%d\ns_addc_u32 s%d, s39, 0" % (sRP, s_am, sRP + 1, sR2, s_am + 1, sR2 + 1))
        a.extend(self.rp_issue())
        if self.mapping == "8x4":
            a("s_and_b32 s%d, s%d, 1\ns_lshl_b32 s%d, s%d, 3\ns_and_b32 s%d, s%d, 7\ns_add_u32 s%d, s%d, s%d" % (s_i, s_t0, s_i, s_i, s_t2, s_t1, s_i, s_i, s_t2))
            a("s_lshr_b32 s%d, s%d, 1\ns_lshl_b32 s%d, s%d, 2\ns_lshr_b32 s%d, s%d, 3\ns_add_u32 s%d, s%d, s%d" % (s_j, s_t0, s_j, s_j, s_t2, s_t1, s_j, s_j, s_t2))
        else:
            a("s_and_b32 s%d, s%d, 3\ns_lshl_b32 s%d, s%d, 2\ns_and_b32 s%d, s%d, 3\ns_add_u32 s%d, s%d, s%d" % (s_i, s_t0, s_i, s_i, s_t2, s_t1, s_i, s_i, s_t2))
            a("s_lshr_b32 s%d, s%d, 2\ns_lshl_b32 s%d, s%d, 3\ns_lshr_b32 s%d, s%d, 2\ns_add_u32 s%d, s%d, s%d" % (s_j, s_t0, s_j, s_j, s_t2, s_t1, s_j, s_j, s_t2))
        if self.rot == "none":
            a("s_mov_b32 s%d, 0" % s_t3)
        elif self.rot == "xcd":
            tab = [0, 2, 5, 7, 5, 7, 0, 2] if self.mapping == "4x8" else [0, 5, 2, 7, 5, 0, 7, 2]
            K = sum(v << (4 * k) for k, v in enumerate(tab))
            a("s_lshl_b32 s%d, s%d, 2\ns_lshr_b32 s%d, 0x%x, s%d\ns_and_b32 s%d, s%d, 15" % (s_t3, s_t0, s_t3, K, s_t3, s_t3, s_t3))
        elif self.rot == "r4":
            a("s_xor_b32 s%d, s%d, s%d\ns_and_b32 s%d, s%d, 1\ns_mul_i32 s%d, s%d, 5" % (s_t3, s_i, s_j, s_t3, s_t3, s_t3, s_t3))
            a("s_lshr_b32 s%d, s%d, 2\ns_xor_b32 s%d, s%d, s%d\ns_and_b32 s%d, s%d, 1\ns_lshl_b32 s%d, s%d, 1\ns_add_u32 s%d, s%d, s%d" % (s_t2, s_t0, s_t2, s_t2, s_t0, s_t2, s_t2, s_t2, s_t2, s_t3, s_t3, s_t2))
        else:
            mul = {"ij": 1, "ij2": 2, "ij3": 3}[self.rot]
            a("s_add_u32 s%d, s%d, s%d\ns_mul_i32 s%d, s%d, %d\ns_mul_i32 s%d, s%d, 205\ns_lshr_b32 s%d, s%d, 11\ns_mul_i32 s%d, s%d, 10\ns_sub_u32 s%d, s%d, s%d"
              % (s_t3, s_i, s_j, s_t3, s_t3, mul, s_t2, s_t3, s_t2, s_t2, s_t2, s_t2, s_t3, s_t3, s_t2))
        a("v_lshrrev_b32 v%d, 4, v%d" % (v_q, v_lane))
        a("s_mul_i32 s%d, s%d, %d\ns_add_u32 s%d, s%d, %d" % (s_priv, s_w, PRIV_SZ, s_priv, s_priv, PRIV))
        a("v_xor_b32 v%d, v%d, v%d\nv_lshlrev_b32 v%d, 4, v%d" % (t1, t3, v_q, t1, t1))
        a("v_and_b32 v%d, 4, v%d\ns_lshl_b32 s%d, s%d, 5\nv_add3_u32 v%d, v%d, v%d, s%d" % (t2, t0, s_t2, s_w, t2, t2, t0, s_t2))
        a("v_mul_u32_u24 v%d, 1280, v%d\nv_add_u32 v%d, v%d, v%d" % (t2, t2, vDX[0], t2, t1))
        a("v_xor_b32 v%d, 64, v%d\nv_add_u32 v%d, %d, v%d" % (vDX[1], vDX[0], vDX[1], 16 * 1280 - 1024, vDX[1]))
        a("v_add_u32 v%d, %d, v%d\nv_add_u32 v%d, %d, v%d" % (vDX[2], 4 * 1280 - 2048, vDX[0], vDX[3], 4 * 1280 - 2048, vDX[1]))
        a("s_mul_i32 s%d, s%d, 163840\ns_lshl_b32 s%d, s%d, 7" % (s_t0, s_i, s_rx, s_t3)); a(self.mk(sX, 16, s_t0, 163840))
        a.extend(self.dma_x(0))
        a("s_cmp_lt_u32 s%d, 2\ns_cselect_b32 s22, s22, s24\ns_cselect_b32 s23, s23, s25\ns_cselect_b32 s26, s26, s28\ns_cselect_b32 s27, s27, s29" % s_w)
        a("s_mul_i32 s%d, s%d, 51200" % (s_t1, s_j)); a(self.mk(sB, 22, s_t1, 51200))
        a("s_mul_i32 s%d, s%d, 10240\ns_lshr_b32 s%d, s%d, 1\ns_mul_i32 s%d, s%d, 5120\ns_add_u32 s%d, s%d, s%d"
          % (s_bm0, s_w1, s_t1, s_w, s_t2, s_t1, s_bm0, s_bm0, s_t2))
        a("s_lshl_b32 s%d, s%d, 6\ns_lshl_b32 s%d, s%d, 7\ns_add_u32 s%d, s%d, s%d" % (s_t1, s_t1, s_t2, s_w1, s_rbb, s_rx, s_t2))
        a("v_add_u32 v%d, v%d, v%d\nv_xor_b32 v%d, s%d, v%d" % (vC[0], vC[0], t1, vDW[0], s_t1, vC[0]))
        for t in range(1, 5):
            a("v_add_u32 v%d, %d, v%d" % (vDW[t], 10240 * t - (1024 * t if t < 4 else 0), vDW[0]))
        a("s_mul_i32 s%d, s%d, 40\nv_min_u32 v%d, 39, v%d\nv_add_lshl_u32 v%d, v%d, s%d, 1" % (s_t1, s_j, TT + 9, v_lane, t1, TT + 9, s_t1))
        a("global_load_ushort v%d, v%d, s[18:19]" % (TT, t1), tag="par")
        a("global_load_ushort v%d, v%d, s[20:21]" % (TT + 1, t1), tag="par")
        a("global_load_ushort v%d, v%d, s[30:31]" % (TT + 2, t1), tag="par")
        order = self.opt.get("order", 1)
        if order == 0: a.extend(self.dma_w(0))
        self.stamp(a, "iss0", level=2)
        c = a
        c("v_lshlrev_b32 v%d, 4, v%d\nv_and_b32 v%d, 15, v%d" % (v_l16, v_lane, v_n, v_lane))
        c(self.mk(sWS, 46, None, 0x10000000 if self.stamps else 0x1000000))
        c(self.mk(sDBG, 44, None, 256))
        c("s_and_b32 s%d, s%d, 7\ns_lshr_b32 s%d, s%d, 3\ns_mul_i32 s%d, s%d, 5120" % (s_ct, s_j, s_rb, s_j, s_wm0, s_w))
        kvo, qo = s_qb, s_wob
        c("s_lshl_b32 s%d, s%d, 1\ns_and_b32 s%d, s%d, 6\ns_bfe_u32 s%d, s%d, 0x10002\ns_or_b32 s%d, s%d, s%d\ns_andn2_b32 s%d, s%d, 7\ns_or_b32 s%d, s%d, s%d"
          % (s_t0, o_, s_t0, s_t0, s_t1, o_, s_t0, s_t0, s_t1, s_t1, o_, s_t0, s_t0, s_t1))
        c("s_mul_i32 s%d, s%d, 640\ns_add_u32 s%d, s%d, %d\ns_mul_i32 s%d, s%d, 1280\ns_add_u32 s%d, s%d, %d\ns_add_u32 s%d, s%d, %d"
          % (qo, s_t0, qo, qo, W_QI, kvo, o_, s_rd[3], kvo, W_WOI, kvo, kvo, W_KVI - 640))
        c("s_mul_i32 s%d, s%d, 3" % (s_t2, b_))
        for z in range(4):
            d_ = RV + 2 + z
            if z < 3:
                c("s_add_u32 s%d, s%d, %d\ns_mul_i32 s%d, s%d, 26\ns_lshr_b32 s%d, s%d, 8\ns_mul_i32 s%d, s%d, 640\ns_lshl_b32 s%d, s%d, 6\ns_sub_u32 s%d, s%d, s%d"
                  % (s_t0, s_t2, z, s_t1, s_t0, s_t1, s_t1, s_t1, s_t1, s_t0, s_t0, s_t0, s_t0, s_t1))
                c("s_add_u32 s%d, s%d, s%d\ns_cmp_eq_u32 s%d, 0\ns_cselect_b32 s%d, s%d, s%d\ns_cselect_b32 s%d, 0, 51200\ns_add_u32 s%d, s%d, %d"
                  % (s_rd[z], kvo, s_t1, s_t1, s_rd[z], qo, s_rd[z], s_t1, s_t1, s_t1, 51200 - 640))
                c("v_add_u32 v%d, s%d, v%d\nv_mul_u32_u24 v%d, 1639, v%d\nv_lshrrev_b32 v%d, 16, v%d\nv_lshlrev_b32 v%d, 4, v%d\nv_mad_u32_u24 v%d, v%d, s%d, v%d"
                  % (t0, s_t0, v_lane, t1, t0, t1, t1, t0, t0, d_, t1, s_t1, t0))
            else:
                c("s_lshl_b32 s%d, s%d, 6\ns_mov_b32 s%d, %d" % (s_t0, b_, s_t1, 102400 - 1280))
                c("v_add_u32 v%d, s%d, v%d\nv_mul_u32_u24 v%d, 1639, v%d\nv_lshrrev_b32 v%d, 17, v%d\nv_lshlrev_b32 v%d, 4, v%d\nv_mad_u32_u24 v%d, v%d, s%d, v%d"
                  % (t0, s_t0, v_lane, t1, t0, t1, t1, t0, t0, d_, t1, s_t1, t0))
        c("s_lshr_b32 s%d, s%d, 1\ns_lshl_b32 s%d, s%d, 7\ns_add_u32 s%d, s%d, %d" % (s_rsig, o_, s_rsig, s_rsig, s_rsig, s_rsig, C_IMG))
        c("s_cmp_lt_u32 s%d, 800" % g_)
        for r in s_rd + [s_rsig]: c("s_cselect_b32 s%d, s%d, 0x70000000" % (r, r))
        c("v_and_b32 v%d, 3, v%d\nv_lshl_add_u32 v%d, v%d, 2, v%d" % (t0, v_lane, t0, v_q, t0))
        c("v_bfe_u32 v%d, v%d, 2, 2\nv_lshlrev_b32 v%d, 7, v%d\nv_lshl_add_u32 v%d, v%d, 3, v%d" % (t1, v_lane, t1, t1, t0, t0, t1))
        c("v_add_u32 v%d, s%d, v%d\nv_mov_b32 v%d, 1" % (RT, s_rlds, t0, v_one))
        if order == 1: a.extend(self.dma_w(0))
        self.rsl = self.opt.get("rsl", 1)
        if not self.rsl:
            a.extend(self.rp_read()); a.extend(self.rp_store())
        c("v_lshrrev_b32 v%d, 1, v%d\nv_xor_b32 v%d, v%d, v%d\nv_lshlrev_b32 v%d, 4, v%d" % (t0, v_n, t0, t0, v_q, t0, t0))
        c("v_lshl_add_u32 v%d, v%d, 7, v%d" % (t1, v_n, t0))
        c("v_add_u32 v%d, s%d, v%d\nv_xor_b32 v%d, 64, v%d" % (vXA[0], s_priv, t1, vXA[1], vXA[0]))
        c("v_lshrrev_b32 v%d, 3, v%d\nv_mul_u32_u24 v%d, %d, v%d" % (t3, v_n, t3, 5120 - 1024, t3))
        c("v_add_u32 v%d, v%d, v%d\nv_xor_b32 v%d, 64, v%d" % (vBA[0], t1, t3, vBA[1], vBA[0]))
        c("v_add_u32 v%d, %d, v%d\nv_add_u32 v%d, %d, v%d" % (vBA[2], 2 * SLOT, vBA[0], vBA[3], 2 * SLOT, vBA[1]))
        c("s_lshl_b32 s%d, s%d, 1\ns_add_u32 s%d, s%d, s%d\ns_mul_i32 s%d, s%d, 1600\ns_mov_b32 s%d, 0x40000" % (s_t2, s_spin, s_t2, s_t2, s_w1, s_t2, s_t2, s_spin))
        c("v_min_u32 v%d, 12, v%d\nv_lshl_add_u32 v%d, v%d, 7, s%d" % (t0, v_lane, v_ct, t0, s_t2))
        c(self.mk(sT, 26, None, 819200))
        c = late2 = L()
        c("s_mov_b32 s%d, 0x%x\ns_mov_b32 s%d, 0x%x" % (s_log2e, LOG2E, s_eps, EPS))
        c("v_xor_b32 v%d, 64, v%d\nv_add_u32 v%d, %d, v%d" % (vC[1], vC[0], vC[1], 8 * 1280 - 1024, vC[1]))
        c("s_mul_i32 s%d, s%d, 51200\ns_add_u32 s%d, s%d, %d\ns_mul_i32 s%d, s%d, 102400\ns_add_u32 s%d, s%d, %d" % (s_qb, s_j, s_qb, s_qb, W_QI, s_wob, s_ct, s_wob, s_wob, W_WOI))
        c("s_mul_i32 s%d, s%d, 102400\ns_add_u32 s%d, s%d, %d" % (s_kvi, s_j, s_kvi, s_kvi, W_KVI))
        c("v_lshlrev_b32 v%d, 7, v%d\nv_add_u32 v%d, %d, v%d" % (v_pl, TT + 9, v_pl, C_IMG, v_pl))
        c("s_lshl_b32 s%d, s%d, 6\nv_add_u32 v%d, s%d, v%d\nv_add_u32 v%d, 64, v%d\nv_min_u32 v%d, v%d, v%d\nv_lshlrev_b32 v%d, 2, v%d" % (s_t2, s_w1, t2, s_t2, v_lane, t1, v_n, t2, t2, t1, v_col4, t2))
        c("s_lshl_b32 s%d, s%d, 13\ns_add_u32 s%d, s%d, %d" % (s_t1, s_j, s_t1, s_t1, W_AGG)); c.append(grp(self.mk(sAG, 46, s_t1, 8192)))
        c("s_sub_u32 s%d, 15, s%d\ns_lshl_b32 s%d, s%d, 9" % (s_aggst, s_i, s_aggst, s_aggst))
        c("s_lshl_b32 s%d, s%d, 2\ns_add_u32 s%d, s%d, s%d\ns_lshl_b32 s%d, s%d, 13\ns_add_u32 s%d, s%d, %d" % (s_kvpld, s_j, s_kvpld, s_kvpld, s_w, s_kvpld, s_kvpld, s_kvpld, s_kvpld, W_KVP))
        c("s_lshl_b32 s%d, s%d, 9\ns_add_u32 s%d, s%d, s%d" % (s_kvpst, s_i, s_kvpst, s_kvpst, s_kvpld))
        for k in range(2): c("v_mov_b32 v%d, -1" % (S0 + k))
        c("v_lshlrev_b32 v%d, 3, v%d" % (S0 + 2, v_lane))
        c("s_lshl_b32 s%d, s%d, 7" % (s_cj, s_j))
        s2 = list(self.setup2())
        ip = [k for k, x in enumerate(s2) if not isinstance(x, G) and x.kind == "waitvm"][0]
        B1 = list(late2) + s2[:ip] + list(self.late_addr())
        self.partC = s2[ip:] + list(self.setup3())
        nb = len(B1) * self.opt.get("pb", 30) // 100
        a.extend(flat(B1[:nb])); self.partB = B1[nb:]
        self.stamp(a, "setup", level=2)
        self.first = L()
        if self.opt.get("ct", 0) == 0: self.first("buffer_load_dword v255, v%d, %s, 0 offen" % (v_ct, srd(sT)), tag="ct")
        self.first.extend(self.dma_x(1))
        self.pc = list(self.poll_issue(sDBG, "0", 0, "clr"))
        self.second = list(self.dma_x(2)) + list(self.dma_w(1)) + list(self.dma_x(3))
        return a

    def setup2(self):
        a = L()
        t0 = vt[0]
        a.append(grp("s_mul_i32 s%d, s%d, 640\ns_mul_i32 s%d, s%d, 102400\ns_add_u32 s%d, s%d, s%d\n" % (s_t2, s_w1, s_t1, s_ct, s_t1, s_t1, s_t2)
                     + self.mk(sC, 26, s_t1, "s_sub_u32 s%d, 102400, s%d" % (sC + 2, s_t2))))
        a("s_lshl_b32 s%d, s%d, 1\ns_add_u32 s%d, s%d, s%d\ns_mul_i32 s%d, s%d, 163840\ns_mul_i32 s%d, s%d, 320\ns_add_u32 s%d, s%d, s%d\n"
          % (s_t1, s_i, s_t1, s_t1, s_rb, s_t1, s_t1, s_t2, s_ct, s_t1, s_t1, s_t2))
        a.append(grp(self.mk(sOUT, 42, s_t1, "s_sub_u32 s%d, 163840, s%d" % (sOUT + 2, s_t2))))
        a("s_lshr_b32 s%d, s%d, 1\ns_mul_i32 s%d, s%d, 10240\ns_mul_i32 s%d, s%d, 80\ns_add_u32 s%d, s%d, s%d" % (s_t2, s_w, s_t2, s_t2, s_rk, s_rx, s_rk, s_rk, s_t2))
        a("s_mul_i32 s%d, s%d, 40\ns_add_u32 s%d, s%d, s%d" % (s_rq, s_rx, s_rq, s_rq, s_wm0))
        a("s_add_u32 s%d, s%d, 512\ns_add_u32 s%d, s%d, 4608" % (s_aggld, s_aggst, s_aggld2, s_aggst))
        a.append(grp("s_cmp_lt_u32 s%d, 2\ns_cselect_b32 s40, s40, s32\ns_cselect_b32 s41, s41, s33\n" % s_w + self.mk(sRP, 40, None, 1280)))
        a("s_lshl_b32 s%d, s%d, 10\ns_add_u32 s%d, s%d, s%d\ns_mul_i32 s%d, s%d, 160\ns_add_u32 s%d, s%d, %d" % (s_t2, s_w1, s_t1, s_t2, s_rx, s_t0, s_ct, s_rlds, s_t2, M_GATE))
        a.append(grp("s_add_u32 s%d, s%d, %d\ns_cmp_lt_u32 s%d, 2\ns_cselect_b32 s%d, s%d, s%d\ns_cselect_b32 s%d, s%d, s%d" % (s_t2, s_t2, M_DSK, s_w, s_t1, s_t1, s_t0, s_rlds, s_rlds, s_t2)))
        a("v_add_u32 v%d, s%d, v%d" % (RB, s_t1, v_l16))
        a("v_subrev_u32 v%d, 1280, v%d\nv_min_u32 v%d, v%d, v%d" % (t0, RB, RB, RB, t0))
        a("s_lshl_b32 s%d, s%d, 10\ns_add_u32 s%d, s%d, 8192" % (s_ci, s_i, s_ci, s_ci))
        a("s_lshr_b32 s%d, s%d, 1\ns_lshl_b32 s%d, s%d, 7\ns_add_u32 s%d, s%d, s%d" % (s_t2, s_w, s_t2, s_t2, s_hs, s_ci, s_t2))
        a("s_lshl_b32 s%d, s%d, 7\ns_add_u32 s%d, s%d, s%d" % (s_t1, s_rb, s_hp, s_ci, s_t1))
        a("s_add_u32 s%d, s%d, s%d\ns_add_u32 s%d, s%d, s%d\ns_add_u32 s%d, s%d, %d" % (s_op, s_hp, s_t1, s_op, s_op, s_t2, s_op, s_op, C_O))
        a("s_lshl_b32 s%d, s%d, 7\ns_add_u32 s%d, s%d, s%d\ns_add_u32 s%d, s%d, %d" % (s_t2, s_w, s_os, s_ci, s_t2, s_os, s_os, C_O))
        a("s_add_u32 s%d, s%d, s%d" % (s_woi, s_wob, s_wm0))
        a("s_mul_i32 s%d, s%d, 5120\ns_add_u32 s%d, s%d, s%d" % (s_t2, s_w1, s_kvi, s_kvi, s_t2))
        a("s_lshl_b32 s%d, s%d, 2\ns_add_u32 s%d, s%d, s%d\ns_mul_i32 s%d, s%d, %d\ns_mul_i32 s%d, s%d, 1280\ns_add_u32 s%d, s%d, s%d\ns_add_u32 s%d, s%d, %d"
          % (s_t2, s_i, s_t2, s_t2, s_w, s_t2, s_t2, 2 * TSTR, s_t1, s_j, s_t2, s_t2, s_t1, s_a2p, s_t2, W_A2))
        a.append(grp("s_cmp_lt_u32 s%d, 2\ns_cselect_b64 s[%d:%d], -1, 0" % (s_w, s_lo2, s_lo2 + 1)))
        a.wv("par")
        Lr, Li, dt, e1, c1, s1, x0, x1 = [TT + k for k in range(8)]
        pa, pb, pc1, pc2, zr, rv, a8, b8, a128, b128 = [TT + 10 + k for k in range(10)]
        a("v_lshlrev_b32 v%d, 16, v%d\nv_lshlrev_b32 v%d, 16, v%d\nv_lshlrev_b32 v%d, 16, v%d" % (Lr, Lr, Li, Li, dt, dt))
        a("v_mul_f32 v%d, s%d, v%d\nv_exp_f32 v%d, v%d" % (dt, s_log2e, dt, dt, dt))
        a("v_mul_u32_u24 v%d, 48, v%d\nv_add_u32 v%d, %d, v%d" % (t0, TT + 9, t0, M_PARAM, t0))
        a("v_cvt_pk_bf16_f32 v%d, v%d, v%d\nv_lshlrev_b32 v%d, 16, v%d" % (dt, dt, dt, dt, dt))
        a("v_mul_f32 v%d, v%d, v%d\nv_mul_f32 v%d, s%d, v%d" % (zr, dt, Lr, zr, s_log2e, zr))
        a("v_mul_f32 v%d, v%d, v%d\nv_mul_f32 v%d, 0.15915494, v%d" % (rv, dt, Li, rv, rv))
        def power(k, da, db):
            if k == 1:
                a("v_exp_f32 v%d, v%d\nv_fract_f32 v%d, v%d" % (e1, zr, x0, rv))
            else:
                a("v_mul_f32 v%d, 0x%x, v%d\nv_exp_f32 v%d, v%d" % (e1, f2u(float(k)), zr, e1, e1))
                a("v_mul_f32 v%d, 0x%x, v%d\nv_fract_f32 v%d, v%d" % (x0, f2u(float(k)), rv, x0, x0))
            a("v_cos_f32 v%d, v%d\nv_sin_f32 v%d, v%d" % (c1, x0, s1, x0))
            a("v_mul_f32 v%d, v%d, v%d\nv_mul_f32 v%d, v%d, v%d" % (da, e1, c1, db, e1, s1))
        power(8, a8, b8); power(128, a128, b128); power(1, pa, pb)
        a("v_add_f32 v%d, -1.0, v%d" % (x0, pa))
        a("v_mul_f32 v%d, v%d, v%d\nv_fmac_f32 v%d, v%d, v%d\nv_rcp_f32 v%d, v%d" % (x1, Lr, Lr, x1, Li, Li, x1, x1))
        a("v_mul_f32 v%d, v%d, v%d\nv_fmac_f32 v%d, v%d, v%d" % (pc1, x0, Lr, pc1, pb, Li))
        a("v_mul_f32 v%d, v%d, v%d\nv_fma_f32 v%d, -v%d, v%d, v%d" % (pc2, x0, Li, pc2, pb, Lr, pc2))
        a("v_add_f32 v%d, v%d, v%d" % (x1, x1, x1))
        a("v_mul_f32 v%d, v%d, v%d\nv_mul_f32 v%d, v%d, v%d" % (pc1, pc1, x1, pc2, pc2, x1))
        a("ds_write_b128 v%d, %s\nds_write_b128 v%d, %s offset:16\nds_write_b64 v%d, %s offset:32" % (t0, vr(pa), t0, vr(zr), t0, vr(a128, 2)), tag="pw")
        return a
    def setup3(self):
        a = L()
        t0, kf, sg, t3 = vt
        a("v_and_b32 v%d, 7, v%d\nv_mul_u32_u24 v%d, 48, v%d\nv_add_u32 v%d, %d, v%d" % (t0, v_n, t0, t0, t0, M_PARAM, t0))
        for t in range(5):
            a("ds_read_b128 %s, v%d offset:%d" % (vr(PR0 + 6 * t), t0, 384 * t), tag="pr")
            a("ds_read_b64 %s, v%d offset:%d" % (vr(PR0 + 6 * t + 4, 2), t0, 384 * t + 16), tag="pr")
        a("v_lshrrev_b32 v%d, 6, v%d\nv_mul_u32_u24 v%d, 384, v%d\nv_add_u32 v%d, v%d, v%d" % (t3, v_col4, t3, t3, t3, t3, t0))
        a("ds_read_b64 %s, v%d offset:24\nds_read_b64 %s, v%d offset:32" % (vr(vA8, 2), t3, vr(vA128, 2), t3), tag="pr")
        a.append(grp("s_lshl_b32 s%d, s%d, 5\nv_lshl_add_u32 v%d, v%d, 3, s%d" % (s_t0, s_w, kf, v_q, s_t0)))
        a("v_cvt_f32_u32 v%d, v%d" % (kf, kf))
        a("v_and_b32 v%d, 8, v%d\nv_lshlrev_b32 v%d, 28, v%d\nv_xor_b32 v%d, v%d, v%d" % (sg, v_n, sg, sg, t3, sg, kf))
        for k in range(4): a("v_mov_b32 v%d, s%d" % (EPSQ + k, s_eps))
        a("v_cmp_gt_u32 vcc, 8, v%d" % v_n)
        for k in range(4): a("v_cndmask_b32 v%d, 0, v%d, vcc" % (EPSX + k, EPSQ))
        a.wl("pr")
        R = range(5)
        z = lambda t: PR0 + 6 * t + 4
        for t in R: a("v_mul_f32 v%d, v%d, v%d\nv_mul_f32 v%d, v%d, v%d" % (z(t), z(t), kf, z(t) + 1, z(t) + 1, t3))
        for t in R: a("v_exp_f32 v%d, v%d\nv_fract_f32 v%d, v%d" % (z(t), z(t), z(t) + 1, z(t) + 1))
        for t in R: a("v_cos_f32 v%d, v%d\nv_sin_f32 v%d, v%d" % (TT + 2 * t, z(t) + 1, TT + 2 * t + 1, z(t) + 1))
        for t in R: a("v_xor_b32 v%d, v%d, v%d\nv_xor_b32 v%d, v%d, v%d" % (z(t) - 3, z(t) - 3, sg, z(t) - 2, z(t) - 2, sg))
        for t in R: a("v_mul_f32 v%d, v%d, v%d\nv_mul_f32 v%d, v%d, v%d" % (TT + 2 * t, TT + 2 * t, z(t), TT + 2 * t + 1, TT + 2 * t + 1, z(t)))
        for t in R: a("v_mul_f32 v%d, v%d, v%d\nv_mul_f32 v%d, v%d, v%d" % (z(t), z(t) - 2, TT + 2 * t, z(t) + 1, z(t) - 1, TT + 2 * t))
        for t in R: a("v_fmac_f32 v%d, v%d, v%d\nv_fma_f32 v%d, -v%d, v%d, v%d" % (z(t), z(t) - 1, TT + 2 * t + 1, z(t) + 1, z(t) - 2, TT + 2 * t + 1, z(t) + 1))
        a("v_xor_b32 v%d, v%d, v%d\nv_xor_b32 v%d, v%d, v%d" % (vB8, vB8, sg, vB128, vB128, sg))
        return a
    def calc_kvaddr(self):
        a = L(); t0 = vt[0]
        a("v_mul_u32_u24 v%d, 1280, v%d\nv_lshl_add_u32 v%d, v%d, 4, v%d" % (vBA[0], v_q, vBA[0], v_n, vBA[0]))
        a("v_and_b32 v%d, 8, v%d\nv_lshl_add_u32 v%d, v%d, 6, v%d\nv_add_u32 v%d, 256, v%d" % (t0, v_n, vBA[1], t0, vBA[0], vBA[1], vBA[1]))
        a("v_add_u32 v%d, %d, v%d\nv_add_u32 v%d, %d, v%d" % (vBA[2], 2 * SLOT, vBA[0], vBA[3], 2 * SLOT, vBA[1]))
        return a
    def late_addr(self):
        a = L()
        t0, t1, t2, t3 = vt
        a("v_mul_u32_u24 v%d, 80, v%d\nv_add_u32 v%d, %d, v%d" % (t0, v_n, v_crd, M_S + 8, t0))
        a("v_lshl_add_u32 v%d, v%d, 2, v%d" % (t0, v_q, t0))
        a("s_lshl_b32 s%d, s%d, 4\ns_add_u32 s%d, s%d, %d\nv_add_u32 v%d, s%d, v%d" % (s_t0, s_w, s_t0, s_t0, M_S + 12, v_sad, s_t0, t0))
        a("v_mul_u32_u24 v%d, 20, v%d\nv_add_u32 v%d, %d, v%d" % (v_srow, v_col4, v_srow, M_S, v_srow))
        a.append(grp("s_cmp_lt_u32 s%d, 2\ns_cselect_b32 s%d, 8, 4\nv_add_u32 v%d, s%d, v%d" % (s_w, s_t0, v_cwr, s_t0, v_srow)))
        a("v_and_b32 v%d, 3, v%d\nv_lshlrev_b32 v%d, 8, v%d" % (t1, v_lane, t1, t1))
        a("v_and_b32 v%d, 44, v%d\nv_lshl_add_u32 v%d, v%d, 2, v%d" % (t2, v_lane, t1, t2, t1))
        a("v_and_b32 v%d, 16, v%d\nv_lshrrev_b32 v%d, 1, v%d" % (t2, v_lane, t2, t2))
        a("s_add_u32 s%d, s%d, %d\nv_add_u32 v%d, s%d, v%d\nv_add3_u32 v%d, v%d, v%d, s%d" % (s_t0, s_priv, P_HT, v_htw, s_t0, v_l16, v_htr, t1, t2, s_t0))
        a("v_and_b32 v%d, 1, v%d\nv_mul_u32_u24 v%d, %d, v%d" % (t2, v_q, t2, TSTR, t2))
        a("v_lshrrev_b32 v%d, 1, v%d\nv_mul_u32_u24 v%d, 20480, v%d" % (t3, v_q, t3, t3))
        a("v_lshlrev_b32 v%d, 4, v%d\nv_add3_u32 v%d, v%d, v%d, v%d" % (t0, v_n, v_hst, t2, t3, t0))
        a("s_lshl_b32 s%d, s%d, 12\ns_add_u32 s%d, s%d, %d\nv_add_u32 v%d, s%d, v%d" % (s_t0, s_w, s_t0, s_t0, L_KVR, v_kvw, s_t0, v_l16))
        a("v_mov_b32 v%d, 0\nv_mov_b32 v%d, 0x%x" % (v_zero, v_nel, NEL))
        a("s_lshl_b32 s%d, s%d, 1\ns_add_u32 s%d, s%d, s%d\ns_mul_i32 s%d, s%d, %d\ns_add_u32 s%d, s%d, %d" % (s_t1, s_i, s_t1, s_t1, s_rb, s_t1, s_t1, 4 * TSTR, s_t1, s_t1, W_A2))
        a("s_mul_i32 s%d, s%d, %d\ns_add_u32 s%d, s%d, s%d\ns_add_u32 s%d, s%d, 40960\ns_add_u32 s%d, s%d, 16384" % (s_t2, s_w, TSTR, s_ao, s_t1, s_t2, s_ao, s_ao, s_ao2, s_ao))
        a("s_mul_i32 s%d, s%d, 10240\ns_add_u32 s%d, s%d, s%d" % (s_t2, s_w, s_t1, s_t1, s_t2))
        for ml in range(4):
            a("s_add_u32 s%d, s%d, %d\ns_and_b32 s%d, s%d, 3\ns_mul_i32 s%d, s%d, %d\ns_add_u32 s%d, s%d, s%d" % (s_t2, s_w, ml, s_t2, s_t2, s_t2, s_t2, TSTR, s_am + ml, s_t2, s_t1))
        a("v_cmp_gt_u32 vcc, 8, v%d" % v_n)
        a("v_mul_u32_u24 v%d, 1280, v%d\nv_add3_u32 v%d, v%d, v%d, v%d" % (t1, v_q, t1, t1, t0, v_zero))
        a("v_add_u32 v%d, %d, v%d\nv_lshlrev_b32 v%d, 4, v%d\nv_add_u32 v%d, %d, v%d" % (t1, 2 * SLOT + 256, t1, t2, v_q, t2, M_GATE, t2))
        a("v_cndmask_b32 v%d, v%d, v%d, vcc" % (vY, t2, t1))
        for r, val in ((vI0, 640), (vI1, 4480), (vI2, (4480 - 4 * SLOT) & 0xffffffff)):
            a("v_mov_b32 v%d, 0x%x\nv_cndmask_b32 v%d, 64, v%d, vcc" % (t1, val, r, t1))
        return a

    def pass1(self):
        a = L()
        prev = [U0 + 8 * t for t in range(5)]
        for j8 in range(1, 8):
            cur = [TT + 5 * (j8 & 1) + t for t in range(5)]
            for t in range(5): a("v_fma_f32 v%d, v%d, v%d, v%d" % (cur[t], PR0 + 6 * t, prev[t], U0 + 8 * t + j8))
            for t in range(5): a("v_fmac_f32_dpp v%d, -v%d, v%d %s" % (cur[t], prev[t], PR0 + 6 * t + 1, DPP))
            prev = cur
        for t in range(5): a("ds_write_b32 v%d, v%d offset:%d" % (v_sad, prev[t], 4 + 1280 * t), tag="sw")
        return a
    def sread(self):
        a = L()
        for k in range(4): a("ds_read_b128 %s, v%d offset:%d" % (vr(S0 + 4 * k), v_srow, 16 + 16 * k), tag="sr")
        return a
    def horner1(self):
        a = L()
        a.wl("sr")
        for k in range(1, 16):
            a.append(grp("v_fmac_f32 v%d, v%d, v%d\nv_fmac_f32_dpp v%d, -v%d, v%d %s" % (S0 + k, vA8, S0 + k - 1, S0 + k, S0 + k - 1, vB8, DPP)))
        a("v_min_u32 v%d, -2, v%d" % (S0 + 15, S0 + 15))
        a("buffer_store_dword v%d, v%d, %s, s%d offen sc1" % (S0 + 15, v_col4, srd(sAG), s_aggst), tag="aggst")
        return a
    def eback(self):
        b = L()
        b("ds_write_b32 v%d, v%d offset:12" % (v_srow, v_zero), tag="ew")
        for k in range(4): b("ds_write_b128 v%d, %s offset:%d" % (v_srow, vr(S0 + 4 * k), 16 + 16 * k), tag="ew")
        return [self.only("hi", b)]
    def coef(self):
        a = L()
        for j8 in range(8):
            for t in range(5): a("v_mul_f32_dpp v%d, v%d, v%d %s" % (TT + 16 + t, U0 + 8 * t + j8, PR0 + 6 * t + 3, DPP))
            for t in range(5):
                u = U0 + 8 * t + j8
                a("v_fma_f32 v%d, v%d, v%d, v%d" % (u, u, PR0 + 6 * t + 2, TT + 16 + t))
        return a
    def te_rd(self):
        a = L()
        for t in range(5): a("ds_read_b32 v%d, v%d offset:%d" % (TE + t, v_sad, 1280 * t), tag="er")
        return a
    def te(self):
        a = L()
        a.wl("er")
        for t in range(5): a("v_mul_f32_dpp v%d, v%d, v%d %s" % (TT + 16 + t, TE + t, PR0 + 6 * t + 3, DPP))
        for t in range(5): a("v_fma_f32 v%d, v%d, v%d, v%d" % (TE + t, TE + t, PR0 + 6 * t + 2, TT + 16 + t))
        return a
    def agg_loads(self, raw=False):
        a = L()
        for m in range(14, -1, -1):
            a("buffer_load_dword v%d, v%d, %s, s%d offen offset:%d sc1" % (TT + m, v_col4, srd(sAG), s_aggld if m < 8 else s_aggld2, 512 * (m & 7)), tag="ag", raw=raw)
        if raw: return a
        return [self.only("lo", a[:8]), self.only("lo", a[8:])]
    def agg_chk(self, raw=False):
        a = L(); c = TT + 15
        a("v_max3_u32 v%d, v%d, v%d, v%d" % (c, TT, TT + 1, TT + 2), raw=raw)
        for m in range(3, 15, 2): a("v_max3_u32 v%d, v%d, v%d, v%d" % (c, c, TT + m, TT + m + 1), raw=raw)
        return a
    def horner2(self):
        a = L()
        slow = self.label("slow"); back = self.label("back")
        a.wv("ag")
        a.extend(self.agg_chk())
        a.append(grp("v_cmp_eq_u32 vcc, -1, v%d\ns_and_b64 vcc, vcc, s[%d:%d]\ns_cbranch_scc1 %s\n%s:" % (TT + 15, s_lo2, s_lo2 + 1, slow, back)))
        s = self.slow
        self.spin_head(s, slow)
        s.extend(self.agg_loads(raw=True)); s("s_waitcnt vmcnt(0)", raw=True); s.extend(self.agg_chk(raw=True))
        s("v_cmp_eq_u32 vcc, -1, v%d\ns_cbranch_vccnz %s\ns_branch %s" % (TT + 15, slow, back), raw=True)
        for m in range(13, -1, -1):
            a.append(grp("v_fmac_f32 v%d, v%d, v%d\nv_fmac_f32_dpp v%d, -v%d, v%d %s" % (TT + m, vA128, TT + m + 1, TT + m, TT + m + 1, vB128, DPP)))
        a("ds_write_b32 v%d, v%d" % (v_cwr, TT), tag="cw")
        return a
    def pass2(self):
        a = L()
        for t in range(5): a("ds_read_b32 v%d, v%d offset:%d" % (TT + t, v_crd, 1280 * t), tag="ir")
        for k in range(1, 4): a("v_add_u32 v%d, %d, v%d" % (vL4[k], 4096 * k, v_l16))
        a("v_lshlrev_b32 v%d, 3, v%d" % (v_l8, v_lane))
        a.delay(3)
        a.wl("ir")
        for t in range(5): a("v_fmac_f32 v%d, v%d, v%d" % (TE + t, PR0 + 6 * t + 4, TT + t))
        for t in range(5): a("v_fmac_f32_dpp v%d, v%d, v%d %s" % (TE + t, TT + t, PR0 + 6 * t + 5, DPP))
        def chain(t):
            c = []
            prev = TE + t
            for j8 in range(8):
                cur = U0 + 8 * t + j8
                c.append("v_fmac_f32 v%d, v%d, v%d\nv_fmac_f32_dpp v%d, v%d, v%d %s" % (cur, PR0 + 6 * t, prev, cur, prev, PR0 + 6 * t + 1, DPP))
                prev = cur
            return c
        def fin(t):
            u0 = U0 + 8 * t; f = L()
            for k in range(4): f("v_cvt_pk_bf16_f32 v%d, v%d, v%d" % (u0 + k, u0 + 2 * k, u0 + 2 * k + 1))
            f("ds_write_b128 v%d, %s offset:%d" % (v_htw, vr(u0), 1024 * t), tag="hw")
            for e in range(2):
                f("ds_read_b64_tr_b16 %s, v%d offset:%d" % (vr(u0 + 4 + 2 * e, 2), v_htr, 1024 * t + 64 * e), tag="hr%d" % t)
            return f
        def st(t):
            f = L(); f.wl("hr%d" % t)
            f("buffer_store_dwordx4 %s, v%d, %s, s%d offen offset:%d sc1" % (vr(U0 + 8 * t + 4), v_hst, srd(sWS), s_a2p, 256 * t), tag="hst")
            return f
        for t in range(6):
            ch = [grp(x) for x in chain(t)] if t < 5 else []
            fi = list(fin(t - 1)) if t >= 1 else []
            if t >= 2: fi = fi[:4] + list(st(t - 2)) + fi[4:]
            a.extend(merge([ch, fi]))
        a.delay(4)
        a.extend(st(4))
        return a

    def kv1a(self):
        a = L()
        kA, kB, X, vA, vB = [KV0 + 8 * t for t in range(5)]
        PA, PB, PX, VA, VB, VX = [S0 + 4 * k for k in range(6)]
        t0 = vt[0]
        a("v_cmp_gt_u32 vcc, 8, v%d\nv_mov_b32 v%d, 0x3f803f80" % (v_n, t0))
        for (src, dst) in ((X, VX), (vA, VA), (vB, VB)):
            for k in range(4): a("v_cvt_pk_bf16_f32 v%d, v%d, v%d" % (dst + k, src + 2 * k, src + 2 * k + 1))
        for k in range(4): a("v_cndmask_b32 v%d, v%d, v%d, vcc" % (VX + k, VX + k, t0))
        T4a, T4b, T5, T1, T3a, T2, T3b = vA, vA + 4, vB, vB + 4, X, X + 4, kA
        a("s_mov_b32 s%d, 0x0f550f55\ns_mov_b32 s%d, 0x0f550f55" % (s_mask, s_mask + 1))
        a("v_cmp_gt_u32 vcc, 16, v%d" % v_lane)
        def part(src, dst, mm):
            self.phi8(a, src, TT)
            for k in range(4): a("v_cvt_pk_bf16_f32 v%d, v%d, v%d" % (dst + k, src + 2 * k, src + 2 * k + 1))
            for d, x, y in mm: a("%s %s, %s, %s, 0" % (M, vr(d), vr(x), vr(y)))
        part(X, PX, ((T4a, PX, VA), (T4b, PX, VB), (T5, PX, VX)))
        part(kA, PA, ((T1, PA, VA), (T3a, PA, VX)))
        for k in range(4): a("v_cndmask_b32 v%d, v%d, v%d, vcc" % (T4a + k, T4b + k, T4a + k))
        for k in range(4): a("v_permlane32_swap_b32 v%d, v%d" % (T4a + k, T5 + k))
        a("ds_write_b128 v%d, %s offset:3072" % (v_kvw, vr(T4a)), tag="kw")
        a("ds_write_b128 v%d, %s" % (v_kvw, vr(T1)), tag="kw")
        part(kB, PB, ((T3b, PB, VX), (T2, PB, VB)))
        a.delay(2)
        for k in range(4): a("v_cndmask_b32 v%d, v%d, v%d, s[%d:%d]" % (T3a + k, T3b + k, T3a + k, s_mask, s_mask + 1))
        a("ds_write_b128 v%d, %s offset:1024" % (v_kvw, vr(T2)), tag="kw")
        a("ds_write_b128 v%d, %s offset:2048" % (v_kvw, vr(T3a)), tag="kw")
        a.append(grp("s_lshl_b32 s%d, s%d, 10\ns_add_u32 s%d, s%d, %d\nv_add_u32 v%d, s%d, v%d" % (s_t0, s_w, s_t0, s_t0, L_KVR, v_kvw, s_t0, v_l16)))
        return a
    def kv1b(self):
        a = L(); K = KV0
        for k in range(4): a("ds_read_b128 %s, v%d offset:%d" % (vr(K + 4 * k), v_kvw, 4096 * k), tag="kr")
        a.delay(4)
        a.wl("kr")
        for k in range(4): a("v_add_f32 v%d, v%d, v%d\nv_add_f32 v%d, v%d, v%d" % (K + k, K + k, K + 4 + k, K + 8 + k, K + 8 + k, K + 12 + k))
        for k in range(4): a("v_add_f32 v%d, v%d, v%d" % (K + k, K + k, K + 8 + k))
        for k in range(2): a("v_cvt_pk_bf16_f32 v%d, v%d, v%d" % (K + k, K + 2 * k, K + 2 * k + 1))
        for k in range(2): a("v_min_u32 v%d, -2, v%d" % (K + k, K + k))
        a("buffer_store_dwordx2 %s, v%d, %s, s%d offen sc1" % (vr(K, 2), v_l8, srd(sWS), s_kvpst), tag="kvst")
        return a
    def phiq(self):
        a = L(); t0, t1 = vt[0], vt[1]
        Z = GB
        a("v_and_b32 v%d, 12, v%d\nv_add_u32 v%d, v%d, v%d" % (t0, v_n, t0, t0, v_n))
        a.append(grp("s_lshl_b32 s%d, s%d, 7\ns_add_u32 s%d, s%d, %d\nv_lshl_add_u32 v%d, v%d, 2, s%d" % (s_t0, s_w, s_t0, s_t0, M_G, t0, t0, s_t0)))
        for i in range(2): a("v_fma_f32 v%d, v%d, s%d, v%d" % (Z + i, Q0 + 8 + 4 * i, s_log2e, v_nel))
        for i in range(2): a("v_exp_f32 v%d, -v%d" % (Z + i, Z + i))
        for i in range(2): a("v_add_f32 v%d, 1.0, v%d" % (Z + i, Z + i))
        for i in range(2): a("v_rcp_f32 v%d, v%d" % (Z + i, Z + i))
        for i in range(2): a("v_sub_f32 v%d, 1.0, v%d" % (Z + 2 + i, Z + i))
        a.append(grp("s_mov_b32 exec_lo, 0\nds_write_b32 v%d, v%d\nds_write_b32 v%d, v%d offset:16\ns_mov_b32 exec_lo, -1" % (t0, Z, t0, Z + 1), tag="gw"))
        for i in range(2): a("v_permlane32_swap_b32 v%d, v%d" % (Z + 2 + i, OMG + i))
        for t in range(3):
            self.phi8(a, Q0 + 8 * t, TT)
            for i in range(2):
                for k in range(2):
                    a("v_cvt_pk_bf16_f32 v%d, v%d, v%d" % (PQ + 6 * i + 2 * t + k, Q0 + 8 * t + 4 * i + 2 * k, Q0 + 8 * t + 4 * i + 2 * k + 1))
        return a
    def gather_loads(self, raw=False):
        a = L()
        for c in range(8):
            a("buffer_load_dwordx4 %s, v%d, %s, s%d offen offset:%d sc1" % (ar(GA + 4 * c), vL4[c // 4], srd(sWS), s_kvpld, 1024 * (c % 4)), tag="g%d" % c, raw=raw)
        return a
    def gsel(self):
        a = L()
        t1, t2, t3 = vt[1], vt[2], vt[3]
        a("v_lshrrev_b32 v%d, 3, v%d\nv_xor_b32 v%d, v%d, v%d\nv_and_b32 v%d, 1, v%d\nv_lshlrev_b32 v%d, 3, v%d" % (t1, v_n, t1, t1, v_q, t1, t1, t1, t1))
        a("v_bfe_u32 v%d, v%d, 1, 2\nv_or_b32 v%d, v%d, v%d" % (t2, v_n, t1, t1, t2))
        a("v_and_b32 v%d, 1, v%d\nv_lshlrev_b32 v%d, 4, v%d\nv_mov_b32 v%d, 0x3f80\nv_lshlrev_b32 v%d, v%d, v%d" % (t2, v_n, t2, t2, t3, t3, t2, t3))
        for k in range(4):
            a.append(grp("v_cmp_eq_u32 vcc, %d, v%d\nv_cndmask_b32 v%d, 0, v%d, vcc" % (k, t1, SEL + k, t3)))
        a("v_and_b32 v%d, 2, v%d\nv_lshlrev_b32 v%d, 7, v%d\nv_lshl_add_u32 v%d, v%d, 4, v%d\nv_and_b32 v%d, 1, v%d\nv_lshl_add_u32 v%d, v%d, 3, v%d" % (t1, v_q, t1, t1, t1, v_n, t1, t2, v_q, t1, t2, t1))
        a.append(grp("s_lshl_b32 s%d, s%d, 9\ns_add_u32 s%d, s%d, %d\nv_add_u32 v%d, s%d, v%d" % (s_t0, s_w, s_t0, s_t0, L_KVX, GD - 2, s_t0, t1)))
        return a
    def gsum(self, raw=False):
        a = L()
        for c in range(8):
            if not raw: a.wv("g%d" % c)
            a("%s %s, %s, %s, %s" % (M, vr(GD), vr(SEL), ar(GA + 4 * c), vr(GD) if c else "0"), raw=raw)
        return a
    def gather_sum(self):
        a = L()
        t0, t1 = vt[0], vt[1]
        slow = self.label("slow"); back = self.label("back")
        a.extend(self.gsum())
        a("v_xor_b32 v%d, 256, v%d\nv_add_u32 v%d, %d, v%d\nv_add_u32 v%d, %d, v%d" % (t1, v_l8, t1, L_KVX, t1, t0, L_KVX, v_l8))
        a.delay(2)
        a.append(grp("v_cmp_u_f32 vcc, v%d, v%d\ns_cbranch_vccnz %s\n%s:" % (GD, GD + 1, slow, back)))
        s = self.slow
        self.spin_head(s, slow)
        s.extend(self.gather_loads(raw=True)); s("s_waitcnt vmcnt(0)\nv_mov_b32 v%d, 0" % vt[2], raw=True)
        for m in range(32): s("v_accvgpr_read_b32 v%d, a%d\nv_max_u32 v%d, v%d, v%d" % (vt[3], GA + m, vt[2], vt[2], vt[3]), raw=True)
        s("v_cmp_eq_u32 vcc, -1, v%d\ns_cbranch_vccnz %s" % (vt[2], slow), raw=True)
        s.extend(self.gsum(raw=True)); s("s_nop 7\ns_branch %s" % back, raw=True)
        a("v_cvt_pk_bf16_f32 v%d, v%d, v%d\nv_cvt_pk_bf16_f32 v%d, v%d, v%d" % (GD + 4, GD, GD + 1, GD + 5, GD + 2, GD + 3))
        a("ds_write_b64 v%d, %s" % (GD - 2, vr(GD + 4, 2)), tag="xw")
        a.delay(2)
        a.wl("xw"); a.wv("woE"); a("s_barrier")
        return a
    def attn2(self):
        a = L()
        t0, t1, t2, t3 = vt
        FA, FB_, FZA, FZB, R3, R4, R5 = [GB + k for k in (0, 4, 8, 12, 16, 18, 20)]
        E = GB + 22; SC = GB + 46; O = GB
        a("ds_read_b64 %s, v%d offset:%d" % (vr(R3, 2), t0, 1024), tag="xr")
        a("ds_read_b64 %s, v%d offset:%d" % (vr(R5, 2), t1, 1536), tag="xr")
        a("ds_read_b64 %s, v%d offset:%d" % (vr(R4, 2), t0, 1536), tag="xr")
        a("ds_read_b64 %s, v%d offset:%d" % (vr(FA, 2), t0, 0), tag="xr")
        a("ds_read_b64 %s, v%d offset:%d" % (vr(FB_ + 2, 2), t0, 512), tag="xr")
        a("v_lshrrev_b32 v%d, 1, v%d\nv_mul_u32_u24 v%d, %d, v%d" % (t2, v_q, t2, TSTR, t2))
        a("v_and_b32 v%d, 1, v%d\nv_lshl_add_u32 v%d, v%d, 3, v%d\nv_lshl_add_u32 v%d, v%d, 4, v%d" % (t3, v_q, t2, t3, t2, t2, v_n, t2))
        a("s_add_u32 s%d, s%d, %d\ns_add_u32 s%d, s%d, %d" % (s_t1, s_a2p, 160 * 256, s_t2, s_a2p, 160 * 256 + TSTR))
        a.delay(2)
        a.wl("xr")
        def masked(dst, src, lo, hi):
            a("s_mov_b32 s%d, 0x%x\ns_mov_b32 s%d, 0x%x" % (s_mask, lo, s_mask + 1, hi))
            for k in range(2): a("v_cndmask_b32 v%d, 0, v%d, s[%d:%d]" % (dst + k, src + k, s_mask, s_mask + 1))
        masked(FZA, R3, 0x0f550f55, 0x0f550f55); masked(FZA + 2, R5, 0x00000f55, 0)
        masked(FZB + 2, R3, 0xf0aaf0aa, 0xf0aaf0aa); masked(FZB, R5, 0xf0aa0000, 0)
        for i in range(2): a("%s %s, %s, %s, 0" % (M, vr(E + 12 * i + 8), vr(FZA), vr(PQ + 6 * i)))
        for i in range(2): a("%s %s, %s, %s, %s" % (M, vr(E + 12 * i + 8), vr(FZB), vr(PQ + 6 * i + 2), vr(E + 12 * i + 8)))
        masked(FA + 2, R4, 0x0000ffff, 0); masked(FB_, R4, 0xffff0000, 0)
        for i in range(2):
            a("%s %s, %s, %s, 0" % (M, vr(E + 12 * i), vr(FA), vr(PQ + 6 * i)))
            a("%s %s, %s, %s, 0" % (M, vr(E + 12 * i + 4), vr(FB_), vr(PQ + 6 * i + 2)))
        a("s_mov_b32 s%d, 0\ns_mov_b32 s%d, 0x0000ffff" % (s_mask, s_mask + 1))
        ih = [(i, h) for i in range(2) for h in range(2)]
        for i, h in ih: a("v_add_f32 v%d, s%d, v%d" % (SC + 6 * i + 2 * h, s_eps, E + 12 * i + 8 + h))
        for i, h in ih: a("v_rcp_f32 v%d, v%d" % (SC + 6 * i + 2 * h, SC + 6 * i + 2 * h))
        for i, h in ih: a("v_mul_f32 v%d, v%d, v%d" % (SC + 6 * i + 2 * h, SC + 6 * i + 2 * h, OMG + i))
        for i, h in ih: a("v_mov_b32 v%d, v%d" % (SC + 6 * i + 2 * h + 1, SC + 6 * i + 2 * h))
        for i, h in ih: a("v_permlane32_swap_b32 v%d, v%d" % (SC + 6 * i + 2 * h, SC + 6 * i + 2 * h + 1))
        for i in range(2):
            sc = SC + 6 * i
            a("v_cndmask_b32 v%d, v%d, v%d, s[%d:%d]" % (sc + 4, sc + 2, sc, s_mask, s_mask + 1))
            for k in range(4):
                a("v_mul_f32 v%d, v%d, v%d" % (E + 12 * i + k, E + 12 * i + k, sc))
                a("v_mul_f32 v%d, v%d, v%d" % (E + 12 * i + 4 + k, E + 12 * i + 4 + k, sc + 2))
            for k in range(4): a("v_cvt_pk_bf16_f32 v%d, v%d, v%d" % (O + 4 * i + k, E + 12 * i + 2 * k, E + 12 * i + 2 * k + 1))
            a("buffer_store_dwordx4 %s, v%d, %s, s%d offen sc1" % (vr(O + 4 * i), v_l16, srd(sWS), (s_t1, s_t2)[i]), tag="ost")
        for i in range(2):
            ez = E + 12 * i + 8; sc = SC + 6 * i
            for k in range(4): a("v_mul_f32 v%d, v%d, v%d" % (ez + k, ez + k, sc + 4))
            for k in range(2): a("v_cvt_pk_bf16_f32 v%d, v%d, v%d" % (O + 8 + 2 * i + k, ez + 2 * k, ez + 2 * k + 1))
        for k in range(2): a("v_permlane32_swap_b32 v%d, v%d" % (O + 8 + k, O + 10 + k))
        a("buffer_store_dwordx2 %s, v%d, %s, s%d offen offset:1024 sc1" % (vr(O + 10, 2), t2, srd(sWS), s_t1), tag="ost")
        return a

    def dma_wo(self, blk):
        a = L(); tag = "wo%d" % blk if blk < 4 else "woE"
        base, off = (s_wm0, WSLOT[blk] * SLOT) if blk < 4 else (s_priv, P_HT)
        if blk == 4: a.wl("sx")
        a("s_add_u32 s%d, s%d, %d\ns_add_u32 m0, s%d, %d" % (s_so, s_woi, blk * SLOT, base, off), tag=tag)
        for ph in range(4):
            a("buffer_load_dwordx4 v%d, %s, s%d offen offset:%d sc1 lds" % (v_l16, srd(sWS), s_so, 1024 * ph), tag=tag)
        a("s_add_u32 m0, s%d, %d" % (base, off + 4096), tag=tag)
        a("buffer_load_dwordx4 v%d, %s, s%d offen sc1 lds" % (vL4[1], srd(sWS), s_so), tag=tag)
        return a
    def rd_we(self):
        a = L()
        a("v_add_u32 v%d, %d, v%d" % (vWE, PRIV + P_HT, vBA[0]))
        for f in range(20):
            kk, nt = divmod(f, 5)
            a("ds_read_b128 %s, v%d offset:%d" % (ar(WE[f]), vWE, kk * PRIV_SZ + 256 * nt), tag="we")
        return a
    KORD = [16, 17, 18, 19] + list(range(16))
    def ao_loads(self):
        a = L()
        for kk in self.KORD:
            a("buffer_load_dwordx4 %s, v%d, %s, s%d offen offset:%d sc1" % (ar(AO + 4 * kk), vL4[(kk // 4) % 4], srd(sWS), s_ao if kk < 16 else s_ao2, 1024 * (kk % 4)), tag="ao%d" % kk)
        return a
    GG = GB; DS = ACC + 20; SKV = [vDX[2], vDX[3], vDW[4]]; v_ga = v_col4
    def skip_addr(self):
        a = L()
        t0, t1, t2 = vt[1], vt[2], vt[3]
        a("s_lshr_b32 s%d, s%d, 1\ns_lshl_b32 s%d, s%d, 5\ns_lshl_b32 s%d, s%d, 2\ns_add_u32 s%d, s%d, s%d" % (s_t1, s_w, s_t1, s_t1, s_t2, s_w1, s_t1, s_t1, s_t2))
        a("v_lshl_add_u32 v%d, v%d, 3, s%d" % (t0, v_q, s_t1))
        a("v_mul_u32_u24 v%d, 2560, v%d\nv_lshl_add_u32 v%d, v%d, 2, v%d\nv_add_u32 v%d, 5120, v%d" % (v_o0, t0, v_o0, v_n, v_o0, v_o1, v_o0))
        a("s_lshl_b32 s%d, s%d, 6\ns_add_u32 s%d, s%d, s%d\ns_lshl_b32 s%d, s%d, 2\ns_add_u32 s%d, s%d, %d" % (s_t2, s_rb, s_t1, s_t1, s_t2, s_rstep, s_t1, s_rstep, s_rstep, M_G))
        a("s_mul_i32 s%d, s%d, 1280\ns_mul_i32 s%d, s%d, 160\ns_add_u32 s%d, s%d, s%d" % (s_t1, s_t1, s_t2, s_ct, s_t1, s_t1, s_t2))
        for ph in range(3):
            a("v_add_u32 v%d, %d, v%d\nv_mul_u32_u24 v%d, 6554, v%d\nv_lshrrev_b32 v%d, 16, v%d" % (t0, 64 * ph, v_lane, t1, t0, t1, t1))
            a("v_mul_u32_u24 v%d, 10, v%d\nv_sub_u32 v%d, v%d, v%d" % (t2, t1, t0, t0, t2))
            a("v_and_b32 v%d, 28, v%d\nv_add_u32 v%d, v%d, v%d\nv_mul_u32_u24 v%d, 1280, v%d" % (t2, t1, t1, t1, t2, t1, t1))
            a("v_lshl_add_u32 v%d, v%d, 4, v%d\nv_add_u32 v%d, s%d, v%d" % (t1, t0, t1, self.SKV[ph], s_t1, t1))
            if ph < 2: a("s_sub_u32 s%d, s%d, 1024" % (s_t1, s_t1))
        a("v_add_u32 v%d, s%d, v%d" % (vRX[0], s_priv, v_l16))
        for ml in range(1, 4):
            a("s_sub_u32 s%d, s%d, %d\ns_and_b32 s%d, s%d, 3\ns_mul_i32 s%d, s%d, %d\ns_add_u32 s%d, s%d, %d\nv_add_u32 v%d, s%d, v%d"
              % (s_t1, s_w, ml, s_t1, s_t1, s_t1, s_t1, PRIV_SZ, s_t1, s_t1, PRIV, vRX[ml], s_t1, v_l16))
        a("v_lshrrev_b32 v%d, 2, v%d\nv_mul_u32_u24 v%d, 160, v%d\nv_and_b32 v%d, 3, v%d\nv_lshl_add_u32 v%d, v%d, 3, v%d" % (t0, v_lane, t0, t0, t1, v_lane, t0, t1, t0))
        a("v_add_u32 v%d, s%d, v%d\nv_lshlrev_b32 v%d, 1, v%d\nv_add_u32 v%d, %d, v%d" % (230, s_priv, t0, 231, v_n, 231, M_DSK, 231))
        return a
    def skip_dma(self):
        a = L()
        a.wl("hr4")
        a("s_add_u32 m0, s%d, %d" % (s_priv, P_HT), tag="sk")
        for ph in range(3):
            a("buffer_load_dwordx4 v%d, %s, 0 offen offset:%d lds" % (self.SKV[ph], srd(sX), 1024 * ph), tag="sk")
        return a
    def skip_rd(self):
        a = L()
        a.wv("sk")
        for nt in range(5): a("ds_read_b64_tr_b16 %s, v%d offset:%d" % (vr(ACC + 4 * nt + 2, 2), 230, P_HT + 32 * nt), tag="sx")
        for nt in range(5): a("ds_read_u16 v%d, v%d offset:%d" % (self.DS + nt, 231, 32 * nt), tag="sd")
        return a
    def skip_calc(self):
        a = L()
        a.wl("sd")
        for nt in range(5): a("v_lshlrev_b32 v%d, 16, v%d" % (self.DS + nt, self.DS + nt))
        for nt in range(5):
            c = ACC + 4 * nt
            a("v_lshlrev_b32 v%d, 16, v%d\nv_and_b32 v%d, 0xffff0000, v%d\nv_lshlrev_b32 v%d, 16, v%d\nv_and_b32 v%d, 0xffff0000, v%d" % (c, c + 2, c + 1, c + 2, c + 2, c + 3, c + 3, c + 3))
            for r in range(4): a("v_mul_f32 v%d, v%d, v%d" % (c + r, c + r, self.DS + nt))
        return a
    def aload(self, k):
        b = L(); kk = k
        for ml in range(4):
            b("buffer_load_dwordx4 %s, v%d, %s, s%d offen offset:%d sc1" % (vr(AF + 16 * (k % NAF) + 4 * ml), vL4[kk // 4], srd(sWS), s_am + ml, 1024 * (kk % 4)), tag="a%d" % k)
        return b

    def build(self):
        o = self.opt
        a = L()
        t0, t1, t2, t3 = vt
        a.extend(self.prologue())
        NS = 70
        S = Sched([10] * 40 + [6] * 20 + [20] * 10)
        pre = [L() for _ in range(NS)]; post = [L() for _ in range(NS)]
        cj, ci_, cct = "s%d" % s_cj, "s%d" % s_ci, "s%d" % s_cct
        sigR = self.signal([(s_cj, C_R)])
        n3 = [0, 8, 18, 99][o.get("n3", 2)]
        rsig = o.get("rsig", 2)
        stl = list(self.rp_store()) + self.pc
        d = list(self.first) + list(self.second[:n3]) + [G(self.rp_read())]
        if self.rsl == 1: d += stl; stl = []
        fill = list(self.partB) + list(self.partC)
        nf = len(fill) * o.get("pf", 70) // 100
        nv = sum(1 for x in d if not isinstance(x, G) and x.kind == "vmem")
        sh = split(fill[:nf], nv); k = 0
        for x in d:
            a.extend(flat([x]))
            if not isinstance(x, G) and x.kind == "vmem":
                a.extend(flat(sh[k])); k += 1
        self.fill = fill[nf:]
        self.stamp(a, "prol")
        a.wv("x1")
        self.stamp(a, "st0", level=2); a("s_barrier")
        a.extend(self.x_reads(0)); a.extend(self.frag_reads(0))
        if rsig >= 0: S.at(self.rp_signal(), rsig)
        gcl = o.get("gcl", 19)
        pre[gcl].wv("cl"); S.at(sigR, gcl)
        S.at(self.poll_issue(sWS, cj, C_R, "pR"), 25); S.at(self.poll_check(sWS, cj, C_R, "pR", 16), 28)
        for g in range(59):
            st1, kk1 = self.stage_of(g + 1)
            rd = list(self.frag_reads(g + 1))
            if g + 1 < 20 and kk1 == 0: rd = list(self.x_reads(2 * st1)) + rd
            if g + 1 < 20 and kk1 == 1: rd = rd + list(self.x_reads(2 * st1 + 1))
            for k, x in enumerate(rd):
                S.gap[S.start[g] + k].append(x); S.load[S.start[g] + k] += wcost(x)
        X = self.dma_x; W = self.dma_w
        gate = list(L()("s_mov_b32 m0, s%d\nbuffer_load_dwordx4 v%d, %s, 0 offen lds" % (s_rlds, RB, srd(sRP)), tag="gate"))
        ct = list(L()("buffer_load_dword v255, v%d, %s, 0 offen" % (v_ct, srd(sT)), tag="ct"))
        S.spread(stl + list(self.second[n3:]) + list(X(4)) + list(X(5)) + (ct if o.get("ct", 0) == 1 else []), 0, 2)
        S.spread(list(W(2)) + list(X(6)) + list(X(7)) + (ct if o.get("ct", 0) == 2 else []), 3, 6)
        plate = o.get("plate", 1)
        pi_ = [self.only("w0", self.vpoll_issue("pI"))]
        if not plate:
            S.spread(list(W(3)) + list(X(8)) + pi_ + list(X(9)) + list(W(4)), 7, 10)
            pre[11].append(self.only("w0", self.vpoll_check("pI", 20)))
            S.spread(list(W(5)) + list(self.clears()) + list(W(6)), 11, 14)
        else:
            S.spread(list(W(3)) + list(X(8)) + list(X(9)), 7, 10)
            S.spread(list(W(4)) + pi_ + list(self.clears()) + gate, 11, 14)
            pre[15].append(self.only("w0", self.vpoll_check("pI", 20)))
        if self.fill: S.place(self.fill, 0, 10)
        cu = [0]; crd = [0]
        def cstep(g_first, issue=True):
            d = L()
            r = crd[0]
            can_read = r < 25 and (r < 12 or g_first > 40 + (r - 12)) and (cu[0] - r >= o.get("clag", 4) or cu[0] >= 25)
            if cu[0] < 25 and cu[0] - self.NCU < crd[0] and issue:
                d.extend(self.dma_c(cu[0])); cu[0] += 1
            if can_read:
                d.extend(self.rd_c(r)); crd[0] += 1
            return d
        ncs = o.get("ncs", 3)
        for st in range(4, 10):
            d = L(self.dma_w(st + 3))
            if st == 4 and not plate: d.extend(gate)
            if st == 4 and plate: d = L(list(W(5)) + list(W(6)) + list(d))
            else:
                for _ in range(ncs + (1 if plate and st < 8 else 0)): d.extend(cstep(4 * st))
            S.spread(d, 4 * st - 1, 4 * st + 2)
        for g in range(41, 60):
            d = cstep(g)
            if d: S.spread(d, g, g)
        assert crd[0] == 25, crd
        hp, op_ = "s%d" % s_hp, "s%d" % s_op
        ph = o.get("ph", 49); gg = o.get("gg", 54)
        S.place(self.skip_addr(), 13, 18)
        S.spread(self.skip_dma(), 40, 40)
        S.place(self.skip_rd(), 47.5, 48)
        gl = self.gather_loads()
        g0 = o.get("g0", 8)
        S.at(self.poll_issue(sWS, hp, 0, "pH"), ph)
        S.spread(list(self.dma_wo(4)) + list(self.poll_check(sWS, hp, 0, "pH", 32)) + list(self.aload(0))[:o.get("a0", 2)], 49.5, gg - 1)
        S.spread(gl[:g0], gg, 59)
        S.place(self.pass1(), 20, 21); post[21].wl("sw"); post[21]("s_barrier")
        S.place(self.sread(), 22, 22.4); pre[23].wl("sr")
        co = self.coef()
        S.place(co[:20], 22, 22)
        S.place(self.horner1(), 23, 24.6)
        S.place(self.eback(), 24.6, 25); pre[27].wl("ew")
        ga = o.get("ga", 29)
        S.place(co[20:], 24.6, 28)
        S.spread(self.agg_loads(), ga, ga + 1)
        S.place(self.te_rd(), 28.5, 28); S.place(self.te(), 29.5, ga + 2)
        S.place(self.horner2(), ga + 3.5, 34); pre[35].wl("cw")
        S.place(self.pass2(), 35, 39)
        ke = o.get("ke", 42)
        S.at(self.wsignal("hst", s_hs), o.get("hs", ke + 1))
        S.place(self.kv1a(), 40, ke)
        if ke == 46: pre[47].wl("kw")
        else: post[ke].wl("kw"); post[ke]("s_barrier")
        S.place(self.kv1b(), ke + 1, ke + 2)
        pre[55].wl("kr")
        B = 60
        S.place(list(self.gsel()) + list(self.skip_calc()), 50, 59)
        gw = o.get("gw", 15) / 10.0; ge = o.get("ge", 15) / 10.0
        po = o.get("po", 8)
        aol = self.ao_loads()
        wob = {o.get("kw0", 4): 0, o.get("kw1", 7): 1}
        tailq = list(self.poll_check(sWS, op_, 0, "pO", 16)) + list(aol[:8]) + list(self.dma_wo(2)) + list(aol[8:12]) + list(self.dma_wo(3)) + list(aol[12:])
        def take(n):
            out = []
            while tailq and n > 0:
                x = tailq.pop(0); out.append(x)
                if not isinstance(x, G) and x.kind == "vmem": n -= 1
            return out
        for k in range(10):
            d = L()
            if k == po - 1: d.extend(self.poll_issue(sWS, op_, 0, "pO"))
            if k == 0: d.extend(self.aload(2))
            if k == 1: d.extend(self.aload(3))
            if 1 <= k < 7: d.extend(self.aload(k + 3))
            if k in wob: d.extend(self.dma_wo(wob[k]))
            if po <= k: d.extend(take(o.get("nt", 5)))
            if d: S.spread(d, B + k, B + k)
        between = merge([list(gl[g0:]) + list(self.aload(0))[o.get("a0", 2):] + list(self.aload(1)), self.phiq()])
        chain = list(self.gather_sum()) + list(self.attn2())
        nb_ = len(chain) * o.get("cb", 0) // 100
        between += chain[:nb_]
        S.place(chain[nb_:], B, B + ge)
        S.at(self.wsignal("ost", s_os), B + o.get("os", 4))
        S.spread(list(self.rd_we()) + list(L()("v_lshl_add_u32 v%d, v%d, 5, s%d\nds_read_b128 %s, v%d" % (self.v_ga, v_q, s_rstep, vr(self.GG), self.v_ga), tag="g2")), B + 6, B + 7)
        post[B + 7].wl("we"); post[B + 7]("s_barrier")
        for z in range(15):
            k = S.start[B + 8] + 10 + 10 * (z // 5) + 2 * (z % 5)
            S.gap[k].append(I("ds_write_b128 v%d, %s offset:%d" % (vRX[0], vr(ACC + 20 * (1 + z // 5) + 4 * (z % 5)), z * 1024), tag="rw"))
        S.gap[S.start[B + 8] + 4].append(WV("a9"))
        for g in range(60):
            p = L()
            nt_ = 5 if g < 40 else 3
            p.wl("f%d_0" % g)
            for t in range(1, nt_):
                S.gap[S.start[g] + 2 * t - 1].append(WL("f%d_%d" % (g, t)))
            if g + 1 < 60:
                st1, kk1 = self.stage_of(g + 1)
                if kk1 == 0:
                    p.wl("f%d_%d" % (g, nt_ - 1))
                    fine = o.get("f0", 99) <= g <= o.get("f1", -1)
                    p.extend(pre[g]); p.wv("w%d" % st1)
                    if st1 < 5: p.wv("x%d" % (2 * st1 + 1))
                    if fine: self.stamp(p, "wv%d" % g)
                    p("s_barrier")
                    if fine: self.stamp(p, "bar%d" % g)
                    if st1 == 5: p.extend(self.calc_kvaddr())
                else:
                    assert not pre[g], g
            a.extend(flat(p))
            a.extend(S.emit(g, self.mfmas(g)))
            a.extend(post[g])
            if g in (19, 39, 59) or o.get("f0", 99) <= g <= o.get("f1", -1): self.stamp(a, "g%d" % g)
            elif g % 4 == 3: self.stamp(a, "g%d" % g, level=2)
        a.extend(flat(between))
        self.stamp(a, "phiq")
        for k in range(10):
            a.wv("a%d" % k)
            a.wl("cr%d" % ((k >> 1) * 5 + 4))
            a.extend(S.emit(B + k, self.mfmas(B + k)))
            a.extend(post[B + k])
            self.stamp(a, "k%d" % k, level=2 if k != 9 else 1)
        a.wl("rw"); a.wv("wo1"); a("s_barrier")
        x = L()
        P = ACC + 20
        for nt in range(5):
            for ml in range(1, 4):
                x("ds_read_b128 %s, v%d offset:%d" % (vr(P + 12 * nt + 4 * (ml - 1)), vRX[ml], ((ml - 1) * 5 + nt) * 1024), tag="rr%d" % nt)
        for nt in range(5):
            x.wl("rr%d" % nt)
            b = P + 12 * nt; c = ACC + 4 * nt
            for h in (0, 2):
                x("v_pk_add_f32 %s, %s, %s" % (vr(b + h, 2), vr(b + h, 2), vr(b + 4 + h, 2)))
                x("v_pk_add_f32 %s, %s, %s" % (vr(c + h, 2), vr(c + h, 2), vr(b + 8 + h, 2)))
            for h in (0, 2): x("v_pk_add_f32 %s, %s, %s" % (vr(c + h, 2), vr(c + h, 2), vr(b + h, 2)))
            for h in (0, 2): x("v_pk_mul_f32 %s, %s, %s" % (vr(c + h, 2), vr(c + h, 2), vr(self.GG + h, 2)))
        KO = self.KORD
        order = [(kk, nt) for kk in KO[:12] for nt in range(5)] + [(kk, nt) for nt in range(5) for kk in KO[12:]]
        NB = 16; LA = o.get("la", 12)
        stream = [f for f in order if f[0] < 16]
        def rd(z):
            kk, nt = stream[z]
            slot = WSLOT[kk // 4]; hi = slot >= 2
            return I("ds_read_b128 %s, v%d offset:%d" % (vr(AF + 4 * (z % NB)), vBA[2 * hi], (slot - 2 * hi) * SLOT + 5120 * (kk % 4) + 256 * nt), tag="wf%d" % z)
        a.extend(flat(merge([x, take(o.get("nx", 6))])))
        self.stamp(a, "xchg")
        nr = 0; pend = []; vsp = o.get("vsp", 4)
        for idx, (kk, nt) in enumerate(order):
            a.wv("ao%d" % kk)
            if kk < 16:
                z = stream.index((kk, nt)); a.wl("wf%d" % z); w = vr(AF + 4 * (z % NB))
            else:
                w = ar(WE[(kk - 16) * 5 + nt])
            c = ACC + 4 * nt
            a("%s %s, %s, %s, %s" % (M, vr(c), ar(AO + 4 * kk), w, vr(c)))
            used = sum(1 for f in order[:idx + 1] if f[0] < 16)
            if nr < len(stream) and nr - used < LA and nr - NB < used - 1:
                if nr == 40:
                    a.extend(flat(take(99))) if any((not isinstance(y, G)) and y.tag == "wo3" for y in tailq) else None
                    a.wv("wo3"); a("s_barrier")
                a.append(rd(nr)); nr += 1
            if idx % vsp == 0: a.extend(flat(take(1)))
            if pend and idx >= pend[0][0]:
                a.append(pend.pop(0)[1])
            if kk == KO[-1]:
                for r in range(4):
                    pend.append((idx + 3 + 2 * r, I("buffer_store_dword v%d, v%d, %s, 0 offen offset:%d %s" % (c + r, (v_o0, v_o1)[r >> 1], srd(sOUT), 2560 * (r & 1) + 64 * nt, self.outflag), tag="out")))
        for _, s_ in pend: a.append(s_)
        self.stamp(a, "end")
        if self.stamps:
            a("s_waitcnt vmcnt(0)")
            self.stamp(a, "drain")
            a("s_sub_u32 s%d, 0x40000, s%d\nv_writelane_b32 v0, s%d, 62" % (s_t0, s_spin, s_t0))
            self.stamp(a, "rt1", real=True)
            a("v_readlane_b32 s%d, v0, 63\ns_nop 3\ns_lshl_b32 s%d, s%d, 2\ns_add_u32 s%d, s%d, s%d\ns_lshl_b32 s%d, s%d, 8\ns_add_u32 s%d, s%d, %d"
              % (s_t0, s_t0, s_t0, s_t0, s_t0, s_w, s_t0, s_t0, s_t0, s_t0, STAMP_OFF))
            a("v_lshlrev_b32 v2, 2, v%d\nbuffer_store_dword v0, v2, %s, s%d offen" % (v_lane, srd(sWS), s_t0))
        a("L_end:\ns_endpgm")
        a.extend(self.slow)
        self.S = S
        return flat(a)

def make(verbose=False, **kw):
    g = Gen(**kw)
    ins = g.build()
    check_m0(ins, {"s%d" % s_so})
    o = g.opt
    if o.get("noc"):
        import re
        ins = [i for i in ins if not (i.tag and re.fullmatch(r"cr?\d+", str(i.tag)))]
    if o.get("now"):
        import re
        ins = [i for i in ins if not (i.tag in ("w8", "w9", "w10", "w11", "w12"))]
    if o.get("noval"):
        nm = 0; out = []
        for i in ins:
            if i.kind == "mfma": nm += 1
            if 240 < nm < 440 and i.kind == "valu" and i.text.startswith(("v_fma", "v_mul_f32", "v_exp", "v_rcp", "v_add_f32", "v_cvt_pk")): continue
            out.append(i)
        ins = out
    if o.get("nocomp"):
        ins = [i for i in ins if i.raw or not (i.kind == "mfma" or (i.kind == "valu" and i.text.startswith(("v_fma", "v_mul_f32", "v_exp", "v_rcp", "v_add_f32", "v_cvt_pk", "v_max_f32", "v_pk_", "v_sin", "v_cos", "v_fract", "v_permlane"))))]
        ins = [i for i in ins if not (i.kind == "branch" and "scc1 L_slow" in i.text)]
    if o.get("nomem"):
        import re
        ins = [i for i in ins if not (i.kind in ("vmem", "waitvm") and i.tag and re.fullmatch(r"(x|w|c|a|g|ao|wo)\d+|woE|sk|tx|tb|ct", str(i.tag)))]
        ins = [i for i in ins if not (i.kind == "branch" and "scc1 L_slow" in i.text)]
    if o.get("norp"):
        drop = {1: ("rp", "rs"), 2: ("rs",), 3: ("rp",), 4: ("rp", "rs", "ct")}[o["norp"]]
        ins = [i for i in ins if not (i.kind in ("vmem", "waitvm") and i.tag in drop)]
        ins = [i for i in ins if not (i.kind == "branch" and "scc1 L_slow" in i.text)]
    if o.get("nofr"):
        import re
        ins = [i for i in ins if not (i.tag and re.fullmatch(r"f(2[1-9]|3\d)_\d", str(i.tag)))]
    ins = resolve_waits(ins)
    ins = hazards(ins, verbose=True)
    if verbose:
        S = g.S
        print("load per gap by step:", " ".join("%d:%.1f" % (k, sum(S.load[S.start[k]:S.start[k + 1]]) / S.counts[k]) for k in range(70)))
    K = NAME + "_kernel"
    txt = header([(K, 256, 256, 163840)]) + kernel_begin(K) + render(ins) + "L_codeend:\n" + rodata() + descriptor(K, 512, 102, 256)
    if g.stamps: txt += "; STAMPS " + " ".join(g.names) + "\n"
    return txt, g.nst

if __name__ == "__main__":
    out = sys.argv[1]
    kw = {}; opt = {}
    for x in sys.argv[2:]:
        k, v = x.split("=")
        if k == "stamps": kw[k] = int(v)
        elif k in ("mapping", "rot", "outflag"): kw[k] = v
        else: opt[k] = int(v)
    txt, nst = make(verbose=True, opt=opt, **kw)
    open(out, "w").write(txt)
```

```python
import re

TRANS = ("v_exp_f32", "v_log_f32", "v_rcp_f32", "v_rsq_f32", "v_sqrt_f32", "v_sin_f32", "v_cos_f32")

class I:
    __slots__ = ("text", "kind", "tag", "raw", "opt")
    def __init__(self, text, kind=None, tag=None, raw=False, opt=False):
        self.text = text.strip()
        self.tag = tag
        self.opt = opt
        self.raw = raw
        self.kind = kind or classify(self.text)
    def __repr__(self):
        return self.text

def classify(t):
    if t.endswith(":"): return "label"
    if t.startswith("."): return "dir"
    if t.startswith(";"): return "dir"
    m = t.split()[0]
    if m.startswith("v_mfma"): return "mfma"
    if m.startswith("v_"): return "valu"
    if m.startswith("ds_"): return "ds"
    if m.startswith("buffer_") or m.startswith("global_"): return "vmem"
    if m.startswith("s_load") or m.startswith("s_buffer_load") or m.startswith("s_memrealtime") or m.startswith("s_memtime"): return "smem"
    if m == "s_waitcnt": return "wait"
    if m == "s_nop": return "nop"
    if m == "s_barrier": return "barrier"
    if m.startswith("s_cbranch") or m == "s_branch" or m == "s_endpgm" or m == "s_setpc_b64": return "branch"
    if m.startswith("s_"): return "salu"
    raise ValueError("cannot classify " + t)

def WV(tag, opt=False): return I("WAITVM", "waitvm", tag, opt=opt)
def WL(tag, opt=False): return I("WAITLGKM", "waitlgkm", tag, opt=opt)

class L(list):
    def __call__(self, s, tag=None, raw=False, opt=False):
        for l in s.split("\n"):
            l = l.strip()
            if l:
                self.append(I(l, tag=tag, raw=raw, opt=opt))
        return self
    def delay(self, n): self.append(I("DELAY", "delay", n)); return self
    def wv(self, tag, opt=False): self.append(WV(tag, opt)); return self
    def wl(self, tag, opt=False): self.append(WL(tag, opt)); return self

def resolve_waits(ins):
    out = []
    q = {"vm": [], "lg": []}
    done = {"vm": 0, "lg": 0}
    smem_pending = False
    def done_after(lst, n):
        k = len(lst); c = 0
        while k > 0 and c < n:
            k -= 1
            if lst[k][1]: c += 1
        return k if c == n else 0
    for i in ins:
        if i.kind == "delay": continue
        if i.raw:
            out.append(i); continue
        if i.kind == "vmem": q["vm"].append((i.tag, not i.opt))
        elif i.kind == "ds": q["lg"].append((i.tag, not i.opt))
        elif i.kind == "smem": smem_pending = True
        elif i.kind == "wait" and not i.opt:
            m = re.search(r"vmcnt\((\d+)\)", i.text)
            if m: done["vm"] = max(done["vm"], done_after(q["vm"], int(m.group(1))))
            m = re.search(r"lgkmcnt\((\d+)\)", i.text)
            if m:
                if int(m.group(1)) == 0: smem_pending = False
                if not smem_pending: done["lg"] = max(done["lg"], done_after(q["lg"], int(m.group(1))))
        if i.kind in ("waitvm", "waitlgkm"):
            c = "vm" if i.kind == "waitvm" else "lg"
            lst = q[c]
            idx = [k for k, t in enumerate(lst) if t[0] == i.tag]
            assert idx, "wait on unknown tag %s" % i.tag
            need = idx[-1] + 1
            if need <= done[c]: continue
            n = min(63 if c == "vm" else 15, sum(1 for t in lst[need:] if t[1]))
            if c == "lg" and smem_pending:
                n = 0
                if not i.opt: smem_pending = False
            if not i.opt: done[c] = max(done[c], done_after(lst, n), need)
            txt = ("vmcnt(%d)" if c == "vm" else "lgkmcnt(%d)") % n
            if out and out[-1].kind == "wait" and not out[-1].raw and out[-1].opt == i.opt and txt.split("(")[0] not in out[-1].text:
                out[-1] = I(out[-1].text + " " + txt, opt=i.opt)
            else:
                out.append(I("s_waitcnt " + txt, opt=i.opt))
            continue
        out.append(i)
    return out

_reg = re.compile(r"^-?(?:\|)?(?:abs\()?([vas])(?:(\d+)|\[(\d+):(\d+)\])\)?(?:\|)?$")
def regs(op):
    op = op.strip()
    if op in ("vcc", "exec", "m0", "scc"): return {op}
    if op in ("vcc_lo", "vcc_hi"): return {"vcc"}
    m = _reg.match(op)
    if not m: return set()
    c = m.group(1)
    if m.group(2) is not None: return {c + m.group(2)}
    return {c + str(k) for k in range(int(m.group(3)), int(m.group(4)) + 1)}

def operands(t):
    parts = t.split(None, 1)
    if len(parts) < 2: return []
    rest = parts[1].split(";")[0]
    ops = [o.strip() for o in rest.split(",")]
    res = []
    for o in ops:
        res.append(o.split()[0] if o else o)
    return res

def rw(i):
    t = i.text; m = t.split()[0]; ops = operands(t)
    W = set(); R = set(); info = {}
    if i.kind == "mfma":
        W = regs(ops[0]); info["A"] = regs(ops[1]); info["B"] = regs(ops[2]); info["C"] = regs(ops[3])
        R = info["A"] | info["B"] | info["C"]
        info["passes"] = 8 if "32x32" in m else 4
    elif i.kind == "valu":
        W = regs(ops[0])
        for o in ops[1:]: R |= regs(o)
        if m.startswith(("v_fmac", "v_mac", "v_dot2c", "v_pk_fmac", "v_writelane")): R |= W
        if "permlane" in m and "swap" in m:
            W = regs(ops[0]) | regs(ops[1]); R = set(W); info["permlane"] = True
        if m.startswith(("v_add_co", "v_sub_co", "v_addc_co", "v_subb_co")):
            W |= regs(ops[1]); R = set()
            for o in ops[2:]: R |= regs(o)
        if m.startswith("v_cndmask") and len(ops) == 3: R.add("vcc")
        if m.startswith("v_cmpx"): W.add("exec")
        if "row_" in t or "quad_perm" in t or "_dpp" in m:
            info["dpp"] = regs(ops[1])
            if "bound_ctrl" not in t: R |= regs(ops[0])
        if m.split("_e")[0] in TRANS or m in TRANS: info["trans"] = True
        if m.startswith(("v_readfirstlane", "v_readlane")): info["readlane"] = True
    elif i.kind == "ds":
        if m.startswith(("ds_read", "ds_bpermute", "ds_swizzle", "ds_permute")):
            W = regs(ops[0])
            for o in ops[1:]: R |= regs(o)
        else:
            for o in ops: R |= regs(o)
    elif i.kind == "vmem":
        lds = re.search(r"\blds\b", t) is not None
        if "load" in m and not lds:
            W = regs(ops[0])
            for o in ops[1:]: R |= regs(o)
            if "d16" in m: R |= W
        else:
            for o in ops: R |= regs(o)
            if lds: R.add("m0"); info["ldsdma"] = True
            if "store" in m and ("x3" in m or "x4" in m):
                info["widestore"] = regs(ops[0]) if m.startswith("buffer") else regs(ops[1])
    elif i.kind in ("salu", "smem"):
        if m.startswith(("s_cmp", "s_bitcmp", "s_setprio", "s_sleep")):
            for o in ops: R |= regs(o)
        else:
            if ops: W = regs(ops[0])
            for o in ops[1:]: R |= regs(o)
            if "saveexec" in m: W.add("exec")
    return W, R, info

def isv(s): return {r for r in s if r[0] in "va" and r not in ("vcc",)}
def iss(s): return {r for r in s if r[0] == "s" or r in ("vcc",)}

def hazards(ins, verbose=False):
    out = []
    hist = []
    nins = 0
    for i in ins:
        if i.kind in ("label", "dir"):
            out.append(i); continue
        W, R, info = rw(i)
        need = 0
        dist = 0
        for (p, pW, pR, pinfo, st) in reversed(hist):
            if dist >= 20: break
            req = 0
            if p.kind == "valu":
                vW = isv(pW); sW = iss(pW)
                if i.kind == "mfma" and vW & R: req = max(req, 2)
                if i.kind == "valu":
                    if info.get("dpp") and vW & info["dpp"]: req = max(req, 2)
                    if info.get("permlane") and vW & R: req = max(req, 2)
                    if info.get("readlane") and vW & R: req = max(req, 1)
                    if pinfo.get("trans") and vW & R: req = max(req, 1)
                    if sW & R: req = max(req, 4 if info.get("readlane") else 2)
                    if "exec" in pW and (info.get("dpp")): req = max(req, 5)
                    if "exec" in pW and (info.get("readlane") or info.get("permlane")): req = max(req, 4)
                if i.kind == "mfma" and "exec" in pW: req = max(req, 4)
                if i.kind == "vmem" and sW & R: req = max(req, 5)
                if i.kind in ("salu", "branch") and sW & R: req = max(req, 1)
                if i.kind == "branch" and "vcc" in pW and "vcc" in i.text: req = max(req, 1)
            elif p.kind == "mfma":
                n = pinfo["passes"]
                full = {4: 8, 8: 12}[n]; ovl = {4: 6, 8: 10}[n]; war = {4: 3, 8: 7}[n]
                if i.kind == "mfma":
                    if pW & (info["A"] | info["B"]): req = max(req, full)
                    if pW & info["C"] and not (pW == info["C"] and info["passes"] == n): req = max(req, ovl)
                    if pW & W and not (pW == info["C"]): req = max(req, ovl)
                elif i.kind == "valu":
                    if pW & (R | W): req = max(req, full)
                    if pinfo["C"] & W: req = max(req, war)
                elif i.kind in ("ds", "vmem"):
                    if pW & (R | W): req = max(req, full)
            elif p.kind == "salu":
                if "m0" in pW and info.get("ldsdma"): req = max(req, 1)
            elif p.kind == "vmem":
                if pinfo.get("widestore") and pinfo["widestore"] & W: req = max(req, 2 if i.kind == "valu" else 1)
            elif p.kind == "ds":
                if p.text.startswith(("ds_write_b128", "ds_write_b96")) and (pR & W) and i.kind == "valu": req = max(req, 1)
            need = max(need, req - dist)
            if (not p.opt) or p.opt == i.opt: dist += st
        if need > 0:
            nop = I("s_nop %d" % (need - 1), raw=i.raw, opt=i.opt)
            out.append(nop); hist.append((nop, set(), set(), {}, need)); nins += 1
        out.append(i)
        st = 1
        if i.kind == "nop": st = int(i.text.split()[1]) + 1
        hist.append((i, W, R, info, st))
        if len(hist) > 40: hist = hist[-30:]
    if verbose: print("hazard nops inserted:", nins)
    return out

def interleave(main, side, every=1, per=1, start=0):
    out = L(); k = 0; c = 0
    for i in main:
        out.append(i)
        if i.kind == "mfma":
            c += 1
            if c > start and (c - start) % every == 0:
                n = 0
                while k < len(side) and n < per:
                    out.append(side[k])
                    if side[k].kind not in ("waitvm", "waitlgkm", "label", "dir"): n += 1
                    k += 1
    out.extend(side[k:])
    return out

def render(ins):
    return "\n".join((i.text if i.kind in ("label",) else "    " + i.text) for i in ins) + "\n"

class G(list):
    pass

def cost(x):
    if isinstance(x, G): return sum(cost(i) for i in x)
    return 0 if x.kind in ("waitvm", "waitlgkm", "label", "dir", "delay") else 1

def flat(xs):
    out = L()
    for x in xs:
        if isinstance(x, G): out.extend(x)
        else: out.append(x)
    return out

def split(stream, n):
    tot = sum(cost(x) for x in stream)
    pieces = [[] for _ in range(n)]
    acc = 0
    for x in stream:
        k = min(n - 1, int(acc * n / max(tot, 1)))
        pieces[k].append(x)
        acc += cost(x)
    return pieces

def merge(streams):
    streams = [s for s in streams if s]
    tot = [max(1, sum(cost(x) for x in s)) for s in streams]
    pos = [0] * len(streams); done = [0] * len(streams)
    out = []
    while True:
        best = None
        for k, s in enumerate(streams):
            if pos[k] < len(s):
                f = done[k] / tot[k]
                if best is None or f < best[0]: best = (f, k)
        if best is None: break
        k = best[1]
        x = streams[k][pos[k]]; pos[k] += 1; done[k] += cost(x)
        out.append(x)
    return out

def weave(mf, side):
    out = L()
    pieces = split(side, len(mf))
    for m, p in zip(mf, pieces):
        out.append(m); out.extend(flat(p))
    return out


def wcost(x):
    if isinstance(x, G): return sum(wcost(i) for i in x)
    k = x.kind
    if k in ("label", "dir", "delay"): return 0.0
    if k in ("waitvm", "waitlgkm", "wait", "salu", "nop", "branch", "barrier"): return 0.6
    if k == "valu":
        m = x.text.split()[0]
        return 2.0 if m in TRANS else 1.0
    if k == "ds": return 3.0 if x.text.startswith("ds_write_b128") else 1.0
    if k == "vmem": return 4.0
    if k == "mfma": return 2.0
    return 1.0

class Sched:
    def __init__(self, counts):
        self.counts = counts
        self.start = [0]
        for c in counts: self.start.append(self.start[-1] + c)
        n = self.start[-1]
        self.gap = [[] for _ in range(n)]
        self.load = [0.0] * n
    def rng(self, g0, g1):
        def pos(g, end):
            k = int(g); f = g - k
            if f == 0: return self.start[k + 1] if end else self.start[k]
            return self.start[k] + int(round(f * self.counts[k]))
        return pos(g0, False), pos(g1, True)
    def place(self, stream, g0, g1):
        a, b = self.rng(g0, g1)
        stream = list(stream)
        ndelay = sum(x.tag for x in stream if not isinstance(x, G) and x.kind == "delay")
        tot = sum(wcost(x) for x in stream)
        lo, hi = 0.0, tot + max(self.load[a:b]) + 10
        def run(level, commit):
            k = a; cur = self.load[k]
            for x in stream:
                if not isinstance(x, G) and x.kind == "delay":
                    k += x.tag
                    if k >= b:
                        if not commit: return False
                        k = b - 1
                    cur = self.load[k]; continue
                c = wcost(x)
                while cur + c * 0.5 > level:
                    if k + 1 >= b:
                        if not commit: return False
                        break
                    k += 1; cur = self.load[k]
                if commit:
                    self.gap[k].append(x); self.load[k] += c
                cur += c
            return True
        for _ in range(30):
            mid = (lo + hi) / 2
            if run(mid, False): hi = mid
            else: lo = mid
        run(hi, True)
    def spread(self, stream, g0, g1):
        a, b = self.rng(g0, g1)
        units = []; cur = []
        for x in stream:
            cur.append(x)
            if isinstance(x, G) or x.kind in ("vmem", "ds"):
                units.append(cur); cur = []
        if cur:
            if units: units[-1].extend(cur)
            else: units.append(cur)
        n = len(units)
        for z, u in enumerate(units):
            k = a + (z * (b - a)) // n
            self.gap[k].extend(u); self.load[k] += sum(wcost(x) for x in u)
    def at(self, stream, g):
        a, b = self.rng(g, g if g == int(g) else int(g))
        self.gap[a].extend(stream); self.load[a] += sum(wcost(x) for x in stream)
    def emit(self, step, mf):
        out = L()
        for k, m in enumerate(mf):
            if m is not None: out.append(m)
            out.extend(flat(self.gap[self.start[step] + k]))
        return out


def check_m0(ins, sregs):
    last = {}
    for i in ins:
        if i.raw: continue
        if i.kind == "salu":
            W, R, _ = rw(i)
            for r in W:
                if r == "m0" or r in sregs: last[r] = i.tag
        elif i.kind == "vmem":
            W, R, info = rw(i)
            for r in R:
                if r == "m0" or r in sregs:
                    assert last.get(r) == i.tag, "packet clash on %s: %s (tag %s, set by %s)" % (r, i.text, i.tag, last.get(r))


def gap_time(items, has_mfma=True):
    n = 0; ex = 0
    for x in flat(items):
        k = x.kind
        if k in ("label", "dir", "delay"): continue
        n += 1
        if k == "valu" and x.text.split()[0] in TRANS: ex += 4
        elif k == "ds" and x.text.startswith("ds_write_b128"): ex += 40
        elif k == "ds" and x.text.startswith("ds_write"): ex += 10
        elif k == "mfma": ex += 8
        elif k == "barrier": ex += 80
        elif k == "branch": ex += 10
        elif k == "vmem": ex += 15
    if has_mfma: return max(16.5, 8 + 4.3 * n + ex)
    return 4.3 * n + ex

def ta_cost(x, T):
    t = x.text
    f = 0.5 if x.opt else 1.0
    if "store" in t: return f * (3.2 * T if "x4" in t else 1.8 * T if "x2" in t else T)
    if "atomic" in t: return f * T
    if "load_dword " in t: return f * 0.5 * T
    return f * T

class Pkt:
    def __init__(self, name, ins, first=0, after=(), lag=0):
        self.name = name; self.ins = list(ins); self.first = first; self.after = list(after); self.lag = lag
        self.done_t = None; self.done_gap = None

def pace(S, a, b, pkts, T, nomf=(), step_extra=None, t0=0.0):
    by = {p.name: p for p in pkts}
    todo = list(pkts); cur = None
    t = t0; tfree = t0
    stepof = {}
    for g in range(len(S.counts)):
        for k in range(S.start[g], S.start[g + 1]): stepof[k] = g
    def ready(p, k, t):
        if k < p.first: return False
        for n in p.after:
            q = by[n]
            if q.done_t is None or t < q.done_t + p.lag: return False
        return True
    isv = lambda x: any(i.kind == "vmem" for i in flat([x]))
    for k in range(a, b):
        if step_extra and k == S.start[stepof[k]]: t += step_extra.get(stepof[k], 0)
        for x in flat(S.gap[k]):
            if x.kind == "vmem": tfree = max(tfree, t) + ta_cost(x, T)
        for p in list(todo):
            if p is not cur and not any(isv(x) for x in p.ins) and ready(p, k, t):
                S.gap[k].extend(p.ins); p.done_t = t; p.done_gap = k; todo.remove(p)
                break
        if t + 8 >= tfree:
            if cur is None:
                for p in todo:
                    if any(isv(x) for x in p.ins) and ready(p, k, t):
                        cur = p; break
            if cur is not None:
                while cur.ins:
                    x = cur.ins.pop(0); S.gap[k].append(x)
                    if isv(x):
                        for i in flat([x]):
                            if i.kind == "vmem": tfree = max(tfree, t) + ta_cost(i, T)
                        break
                if not any(isv(x) for x in cur.ins):
                    S.gap[k].extend(cur.ins); cur.ins = []
                    cur.done_t = tfree; cur.done_gap = k; todo.remove(cur); cur = None
        t += gap_time(S.gap[k], stepof[k] not in nomf)
    return todo, t


def align_pass(txt, nopcost=0):
    import subprocess, tempfile, os
    d = tempfile.mkdtemp()
    open(d + "/a.s", "w").write(txt)
    subprocess.run(["clang", "-x", "assembler", "-target", "amdgcn-amd-amdhsa", "-mcpu=gfx950", "-c", d + "/a.s", "-o", d + "/a.o"], check=True)
    dis = subprocess.run(["llvm-objdump", "-d", "--mcpu=gfx950", d + "/a.o"], capture_output=True, text=True).stdout
    enc = []
    for l in dis.split("\n"):
        m = re.search(r"^\s+(\S+).*// ([0-9A-F]+): ((?:[0-9A-F]{8} ?)+)", l)
        if m: enc.append((m.group(1), len(m.group(3).split())))
    lines = txt.split("\n")
    idx = [k for k, l in enumerate(lines) if l.startswith("    ") and not l.strip().startswith((".", ";"))]
    assert len(idx) == len(enc), (len(idx), len(enc))
    no = ("v_readfirstlane", "v_permlane", "v_accvgpr", "v_nop", "v_fmaak", "v_fmamk", "v_cmpx")
    conv = [e[1] == 1 and e[0].endswith("_e32") and not e[0].startswith(no) for e in enc]
    INF = 1 << 30
    cost = [0, INF]; back = []
    for k, (mn, sz) in enumerate(enc):
        nc = [INF, INF]; bk = [None, None]
        for p in (0, 1):
            if cost[p] >= INF: continue
            for c in ((0, 1) if conv[k] else (0, 2) if (nopcost and sz == 1 and not mn.startswith(("s_cbranch", "s_branch", "s_endpgm", "s_getpc"))) else (0,)):
                s = sz + (1 if c else 0)
                v = cost[p] + (10 if (s == 2 and p == 1 and c != 2) else 0) + (c if c < 2 else nopcost)
                q = (p + s) & 1
                if v < nc[q]: nc[q] = v; bk[q] = (p, c)
        cost = nc; back.append(bk)
    p = 0 if cost[0] <= cost[1] else 1
    n = 0
    for k in range(len(enc) - 1, -1, -1):
        p, c = back[k][p]
        if c == 2: lines[idx[k]] += "\n    s_nop 0"; n += 1000
        elif c:
            t = lines[idx[k]].strip(); mn, _, rest = t.partition(" ")
            lines[idx[k]] = "    " + mn + "_e64 " + rest; n += 1
    return "\n".join(lines), n, min(cost) // 10
```

```python
import sys, struct
from asmgen import NAME, header, kernel_begin, descriptor, rodata, STAMP_OFF
from ir import *

def f2u(x): return struct.unpack("<I", struct.pack("<f", x))[0]
SLOT = 20480
PRIV = 81920; PRIV_SZ = 17408; P_HT = 12288
L_KVR = SLOT; L_RP0 = 3 * SLOT
MISC = PRIV + 4 * PRIV_SZ
M_G = MISC; M_GATE = MISC + 512; M_S = MISC + 2560; M_PARAM = M_S; L_KVX = M_S; M_DSK = MISC + 8960
C_R = 0; C_IMG = 2048
C_H, C_O = 0, 256
W_AGG = 0x10000; W_KVP = 0x40000; W_A2 = 0x200000
W_KVI = 0xA00000; W_QI = 0xC00000; W_WOI = 0xD00000
TSTR = 61440
LOG2E = 0x3fb8aa3b; EPS = f2u(1e-6); NEL = f2u(-1e-6 * 1.4426950408889634)
OOB = 0x7ffffff0

sX, sB, sRP, sC, sWS, sOUT, sDBG, sAG, sT = 48, 52, 56, 60, 64, 68, 72, 76, 80
sDSK = sB
def srd(b): return "s[%d:%d]" % (b, b + 3)
s_w, s_i, s_j, s_ct, s_rb, s_priv, s_wm0, s_bm0 = 3, 4, 5, 6, 7, 8, 9, 10
s_t0, s_t1, s_t2, s_t3, s_so = 11, 12, 13, 14, 15
s_cj, s_ci, s_rstep, s_rlds, s_w1, s_cct = 84, 85, 86, 87, 88, 89
s_am = 90; s_log2e, s_eps, s_a2p, s_spin, s_mask = 94, 95, 96, 97, 98
s_aggst, s_kvpst = 34, 35
s_kvi, s_aggld, s_aggld2, s_kvpld, s_woi, s_pt = 16, 17, 24, 25, 28, 29
s_qb, s_wob = 36, 37
s_rx, s_rbb, s_rk, s_rq = 0, 1, 2, 38
s_hs, s_hp, s_os, s_op = 39, 40, 41, 45
s_so2 = 31
s_lo2 = 46
s_rd = [18, 19, 20, 21]; s_rsig = 30
sR2 = 76
s_ao, s_ao2 = 22, 23

v_lane, v_n, v_q = 1, 2, 3
vXA = [4, 5]; vBA = [6, 7, 8, 9]; vGA = 10; vDX = [11, 12, 13, 14]; vDW = [15, 16, 17, 18, 19]
v_l16, v_col4 = 20, 21
vA8, vB8, vA128, vB128 = 22, 23, 24, 25
v_poll, v_one = 26, 27
vt = [28, 29, 30, 31]
v_nel = vGA
U0 = 32; KV0 = 80; Q0 = 192; S0 = 120; TE = 136; FB0 = 144; PR0 = 192
v_zero, v_crd, v_cwr = TE + 5, TE + 6, TE + 7
RB, RT, v_ct, v_pl = 73, 74, 75, 72
RV = KV0 + 16
vY, vI0, vI1, vI2, vWE = 76, 77, 78, 79, 9
RD1 = 236
EPSQ = 222; EPSX = 226; TT = 232
vC = [184, 185]; v_srow, v_htw, v_htr, v_hst, v_sad, v_kvw = 186, 187, 188, 189, 190, 191
vL4 = [v_l16, vA8, vB8, vA128]
v_o0, v_o1 = vDX[0], vDX[1]
vRX = [vDW[0], vDW[1], vDW[2], vDW[3]]
ACC = 32; AF = 112; NAF = 4; GB = 176; PQ = 240; OMG = 252
GA = 104; SEL = 216; GD = 224; v_l8 = vB128
AO = 104
WE = list(range(184, 256, 4)) + [0, 4]
WSLOT = [2, 1, 3, 0]
def vr(b, n=4): return "v[%d:%d]" % (b, b + n - 1)
def ar(b, n=4): return "a[%d:%d]" % (b, b + n - 1)
DPP = "row_ror:8 row_mask:0xf bank_mask:0xf"
M = "v_mfma_f32_16x16x32_bf16"
def grp(s, tag=None): return G(L()(s, tag=tag))

class Gen:
    def __init__(self, stamps=0, mapping="8x4", rot="ij", outflag="sc1", opt=None):
        self.stamps = stamps; self.mapping = mapping; self.rot = rot; self.outflag = outflag
        self.opt = opt or {}
        self.slow = L(); self.nst = 2; self.nl = 0; self.names = ["rt0", "start"]
    def label(self, b):
        self.nl += 1
        return "L_%s_%d" % (b, self.nl)
    def stamp(self, a, name="", level=1, real=False):
        if self.stamps and self.stamps >= level:
            k = self.nst; self.nst += 1
            assert k < 62
            self.names.append(name)
            a.append(grp("%s s[100:101]\ns_waitcnt lgkmcnt(0)\nv_writelane_b32 v0, s100, %d" % ("s_memrealtime" if real else "s_memtime", k)))
    def only(self, cond, body):
        lab = self.label("skip")
        g = L()
        g({"w0": "s_cmp_eq_u32 s%d, 0", "lo": "s_cmp_lt_u32 s%d, 2", "hi": "s_cmp_ge_u32 s%d, 2", "n3": "s_cmp_lt_u32 s%d, 3", "w3": "s_cmp_eq_u32 s%d, 3", "rp": "s_cmp_lt_u32 s%d, 640"}[cond] % (s_unit if cond == "rp" else s_w))
        g("s_cbranch_scc0 %s" % lab)
        for i in flat(body):
            i.opt = lab; g.append(i)
        g(lab + ":")
        return G(g)
    def spin_head(self, s, slow):
        s(slow + ":", raw=True)
        s("s_sub_u32 s%d, s%d, 1\ns_cmp_eq_u32 s%d, 0\ns_cbranch_scc1 L_end" % (s_spin, s_spin, s_spin), raw=True)
        if self.opt.get("sleep", 0): s("s_sleep %d" % self.opt["sleep"], raw=True)
    def poll_issue(self, srdb, soff, imm, tag):
        return L()("buffer_load_dword v%d, off, %s, %s offset:%d sc1" % (v_poll, srd(srdb), soff, imm), tag=tag)
    def poll_check(self, srdb, soff, imm, tag, target):
        slow = self.label("slow"); back = self.label("back")
        g = L()
        g.wv(tag)
        g("v_readfirstlane_b32 s%d, v%d" % (s_pt, v_poll))
        g("s_cmp_ge_u32 s%d, %d\ns_cbranch_scc0 %s" % (s_pt, target, slow))
        g(back + ":")
        s = self.slow
        self.spin_head(s, slow)
        s("buffer_load_dword v%d, off, %s, %s offset:%d sc1" % (v_poll, srd(srdb), soff, imm), raw=True)
        s("s_waitcnt vmcnt(0)\nv_readfirstlane_b32 s%d, v%d\ns_nop 1\ns_cmp_ge_u32 s%d, %d" % (s_pt, v_poll, s_pt, target), raw=True)
        s("s_cbranch_scc0 %s\ns_branch %s" % (slow, back), raw=True)
        return [G(g)]
    def signal(self, pairs, pre=None):
        b = L()
        if pre: b.extend(pre)
        b("s_mov_b64 exec, 1")
        for sreg, imm in pairs: b("buffer_atomic_add v%d, off, %s, s%d offset:%d sc1" % (v_one, srd(sWS), sreg, imm), tag="at")
        b("s_mov_b64 exec, -1")
        return [self.only("w0", b)]

    def rotso(self, a, base, c, lim, tag, add=None):
        a("s_add_u32 s%d, s%d, %d\ns_sub_u32 s%d, s%d, %d\ns_min_u32 s%d, s%d, s%d" % (s_so, base, c, s_so2, s_so, lim, s_so, s_so, s_so2), tag=tag)
        if add is not None: a("s_add_u32 s%d, s%d, s%d" % (s_so, s_so, add), tag=tag)
    def dma_x(self, sg):
        a = L(); tag = "x%d" % sg
        if sg >= 4: a.wl("xr%d" % (sg - 4))
        a("s_add_u32 m0, s%d, %d" % (s_priv, 4096 * (sg & 3)), tag=tag)
        if sg: self.rotso(a, s_rx, 128 * sg, 1280, tag)
        for ph in range(4):
            a("buffer_load_dwordx4 v%d, %s, s%d offen offset:%d lds" % (vDX[ph], srd(sX), s_so if sg else s_rx, 1024 * ph), tag=tag)
        return a
    def dma_w(self, st):
        a = L()
        slot = st % 4; tag = "w%d" % st
        if st < 5:
            a("s_add_u32 m0, s%d, %d" % (s_bm0, slot * SLOT), tag=tag)
            self.rotso(a, s_rbb, 256 * st, 1280, tag)
            for ph in range(4):
                a("buffer_load_dwordx4 v%d, %s, s%d offen offset:%d lds" % (vDW[ph], srd(sB), s_so, 1024 * ph), tag=tag)
            a("s_add_u32 m0, s%d, %d" % (s_bm0, slot * SLOT + 4096), tag=tag)
            a("buffer_load_dwordx4 v%d, %s, s%d offen lds" % (vDW[4], srd(sB), s_so), tag=tag)
            return a
        a("s_add_u32 m0, s%d, %d" % (s_wm0, slot * SLOT), tag=tag)
        if st < 10: self.rotso(a, s_rk, 20480 * (st - 5), 102400, tag, s_kvi)
        else: self.rotso(a, s_rq, 20480 * (st - 10), 51200, tag, s_qb)
        for ph in range(4):
            a("buffer_load_dwordx4 v%d, %s, s%d offen offset:%d sc1 lds" % (v_l16, srd(sWS), s_so, 1024 * ph), tag=tag)
        a("s_add_u32 m0, s%d, %d\ns_add_u32 s%d, s%d, 4096" % (s_wm0, slot * SLOT + 4096, s_so, s_so), tag=tag)
        a("buffer_load_dwordx4 v%d, %s, s%d offen sc1 lds" % (v_l16, srd(sWS), s_so), tag=tag)
        if st == 12: return [self.only("lo", a)]
        return a
    NCU = 6
    def c_un(self, u):
        return (u % 5, u // 5) if self.opt.get("crow", 0) else divmod(u, 5)
    def c_reg(self, kap, nt):
        u = (kap >> 1) * 5 + nt
        return (160 + 8 * u if u < 12 else 8 * (u - 12)) + 4 * (kap & 1)
    def dma_c(self, u):
        a = L(); sg, nt = divmod(u, 5); tag = "c%d" % u
        if u >= self.NCU: a.wl("cr%d" % (u - self.NCU))
        if u == 0: a.wl("xr9")
        a("s_add_u32 m0, s%d, %d" % (s_priv, 2048 * (u % self.NCU)), tag=tag)
        a("s_mov_b32 s%d, %d" % (s_so, nt * 20480 + 128 * sg), tag=tag)
        for h in range(2):
            a("buffer_load_dwordx4 v%d, %s, s%d offen offset:%d lds" % (vC[h], srd(sC), s_so, 1024 * h), tag=tag)
        return a
    def rd_c(self, u):
        a = L(); sg, nt = divmod(u, 5)
        a.wv("c%d" % u)
        for e in range(2):
            a("ds_read_b128 %s, v%d offset:%d" % (ar(self.c_reg(2 * sg + e, nt)), vXA[e], 2048 * (u % self.NCU)), tag="cr%d" % u)
        return a
    def rp_issue(self):
        b = L(); tag = "rp"
        for k in range(3):
            b("s_add_u32 m0, s%d, %d" % (s_rlds, 896 * k), tag=tag)
            b("buffer_load_dwordx4 v%d, %s, 0 offen offset:%d lds" % (RV, srd(sRP), 128 * k), tag=tag)
        b("s_add_u32 m0, s%d, 3072" % s_rlds, tag=tag)
        b("buffer_load_dwordx4 v%d, %s, 0 offen lds" % (RV + 1, srd(sR2)), tag=tag)
        return b
    def rp_read(self):
        b = L()
        b.wv("rp")
        for z in range(4):
            for e in range(2):
                b("ds_read_b64_tr_b16 %s, v%d offset:%d" % (vr(KV0 + 4 * z + 2 * e, 2), RT, 1024 * z + 512 * e), tag="rr")
        return b
    def rp_store(self):
        b = L()
        b.wl("rr")
        for z in range(4):
            b("buffer_store_dwordx4 %s, v%d, %s, s%d offen sc1" % (vr(KV0 + 4 * z), RV + 2 + z, srd(sWS), s_rd[z]), tag="rs")
        return b
    def rp_signal(self):
        b = L(flat(self.poll_check(sDBG, "0", 0, "clr", 1)))
        b("s_mov_b64 exec, 1\nbuffer_atomic_add v%d, off, %s, s%d sc1\ns_mov_b64 exec, -1" % (v_one, srd(sWS), s_rsig), tag="at")
        return [G(b)]
    def clears(self):
        b = L()
        b("buffer_store_dwordx4 %s, v%d, %s, s%d offen sc1" % (vr(S0), S0 + 4, srd(sWS), s_rstep), tag="rs")
        b("buffer_store_dword v%d, v%d, %s, s%d offen sc1" % (S0, v_col4, srd(sAG), s_aggst), tag="rs")
        return [self.only("lo", b)]
    def vpoll_issue(self, tag, raw=False):
        return L()("buffer_load_dword v%d, v%d, %s, 0 offen sc1" % (v_poll, v_pl, srd(sWS)), tag=tag, raw=raw)
    def vpoll_check(self, tag, target):
        slow = self.label("slow"); back = self.label("back")
        chk = "v_cmp_gt_u32 vcc, %d, v%d\n" % (target, v_poll)
        g = L(); g.wv(tag); g(chk + "s_cbranch_vccnz %s\n%s:" % (slow, back))
        s = self.slow
        self.spin_head(s, slow)
        s.extend(self.vpoll_issue(tag, raw=True))
        s("s_waitcnt vmcnt(0)\n" + chk + "s_cbranch_vccnz %s\ns_branch %s" % (slow, back), raw=True)
        return g
    def wsignal(self, tag, sreg):
        g = L(); g.wv(tag)
        g("s_mov_b64 exec, 1\nbuffer_atomic_add v%d, off, %s, s%d sc1\ns_mov_b64 exec, -1" % (v_one, srd(sWS), sreg), tag="at")
        return [G(g)]

    def stage_of(self, g):
        if g < 40: return g // 4, g % 4
        return 10 + (g - 40) // 8, (g - 40) % 8
    def fb(self, g): return FB0 + (20 if g < 40 else 12) * (g & 1)
    def frag_reads(self, g):
        a = L()
        st, kk = self.stage_of(g)
        slot = st % 4; hi = slot >= 2; off = (slot - 2 * hi) * SLOT
        fb = self.fb(g); tag = "f%d" % g
        if g < 20:
            adr = vBA[(kk & 1) + 2 * hi]
            for t in range(5):
                a("ds_read_b128 %s, v%d offset:%d" % (vr(fb + 4 * t), adr, off + 10240 * (kk >> 1) + 1024 * t), tag=tag + "_%d" % t)
        elif g < 40:
            o = off + 5120 * kk
            for t, (adr, to) in enumerate([(0, 0), (0, 384), (1, 0), (0, 640), (0, 1024)]):
                a("ds_read_b128 %s, v%d offset:%d" % (vr(fb + 4 * t), vBA[adr + 2 * hi], o + to), tag=tag + "_%d" % t)
        else:
            o = off + 5120 * (kk >> 1) + 640 * (kk & 1)
            a("ds_read_b128 %s, v%d offset:%d" % (vr(fb), vBA[2 * hi], o), tag=tag + "_0")
            y = L()("ds_read_b128 %s, v%d" % (vr(fb + 4), vY), tag=tag + "_1")
            if g < 59: y("v_add_u32 v%d, v%d, v%d" % (vY, vY, vI2 if g == 55 else vI1 if g & 1 else vI0))
            a.append(G(y))
            a("ds_read_b128 %s, v%d offset:%d" % (vr(fb + 8), vBA[2 * hi], o + 384), tag=tag + "_2")
        return a
    def x_reads(self, sg):
        a = L(); tag = "xr%d" % sg
        for e in range(2):
            for i in range(2):
                a("ds_read_b128 %s, v%d offset:%d" % (ar(8 * (2 * sg + e) + 4 * i), vXA[e], 4096 * (sg & 3) + 2048 * i), tag=tag)
        return a
    def mfmas(self, g):
        a = L()
        if g >= 60:
            k = g - 60
            if k < 8: lst = [(ml, k, nt) for ml in range(4) for nt in range(5)]
            else: lst = [(ml, kk, nt) for ml in (1, 2, 3, 0) for kk in (8, 9) for nt in range(5)][20 * (k - 8):20 * (k - 8) + 20]
            for ml, kk, nt in lst:
                dd = ACC + 20 * ml + 4 * nt
                a("%s %s, %s, %s, %s" % (M, vr(dd), vr(AF + 16 * (kk % NAF) + 4 * ml), ar(self.c_reg(kk, nt)), vr(dd) if (kk or ml == 0) else "0"))
            return a
        ks = g % 20; fb = self.fb(g)
        if g < 20:
            for t in range(5):
                for i in range(2):
                    d = U0 + 8 * t + 4 * i
                    a("%s %s, %s, %s, %s" % (M, vr(d), ar(8 * ks + 4 * i), vr(fb + 4 * t), vr(d) if ks else "0"))
        elif g < 40:
            for t in range(5):
                for i in range(2):
                    d = KV0 + 8 * t + 4 * i
                    c0 = [vr(EPSQ), vr(EPSQ), vr(EPSX), "0", "0"][t]
                    a("%s %s, %s, %s, %s" % (M, vr(d), ar(8 * ks + 4 * i), vr(fb + 4 * t), vr(d) if ks else c0))
        else:
            for t in range(3):
                for i in range(2):
                    d = Q0 + 8 * t + 4 * i
                    a("%s %s, %s, %s, %s" % (M, vr(d), vr(fb + 4 * t), ar(8 * ks + 4 * i), vr(d) if ks else vr(EPSQ)))
        return a
    def phi8(self, a, r, tmp):
        for k in range(8): a("v_fma_f32 v%d, v%d, s%d, v%d" % (tmp + k, r + k, s_log2e, v_nel))
        for k in range(8):
            a("v_exp_f32 v%d, v%d clamp" % (tmp + k, tmp + k))
            a("v_max_f32 v%d, s%d, v%d" % (r + k, s_eps, r + k))
        for k in range(8): a("v_add_f32 v%d, v%d, v%d" % (r + k, r + k, tmp + k))
    def mk(self, b, lo, add_reg, nrec):
        if add_reg is None: t = "s_mov_b32 s%d, s%d\ns_mov_b32 s%d, s%d\n" % (b, lo, b + 1, lo + 1)
        else: t = "s_add_u32 s%d, s%d, s%d\ns_addc_u32 s%d, s%d, 0\n" % (b, lo, add_reg, b + 1, lo + 1)
        if isinstance(nrec, int): t += "s_mov_b32 s%d, 0x%x\n" % (b + 2, nrec)
        elif nrec: t += nrec + "\n"
        return t + "s_mov_b32 s%d, 0x20000\n" % (b + 3)
    def prologue(self):
        a = L()
        t0, t1, t2, t3 = vt
        a("s_cmp_ge_u32 s2, 256\ns_cbranch_scc1 L_end")
        a("s_load_dwordx16 s[16:31], s[0:1], 0\ns_load_dwordx16 s[32:47], s[0:1], 64")
        if self.stamps: a("s_memrealtime s[98:99]\ns_memtime s[100:101]")
        a("s_getpc_b64 s[%d:%d]\nL_pc0:" % (sT, sT + 1))
        a("s_mov_b32 s%d, L_codeend-L_pc0\ns_mov_b32 s%d, 0x20000" % (sT + 2, sT + 3))
        a("s_lshr_b32 s%d, s2, 3\ns_lshl_b32 s%d, s%d, 10" % (s_t1, s_t2, s_t1))
        a("v_lshrrev_b32 v%d, 5, v0\nv_lshlrev_b32 v%d, 7, v%d" % (t1, t1, t1))
        a("buffer_load_dword v255, v%d, %s, s%d offen" % (t1, srd(sT), s_t2), tag="pf")
        a("v_lshrrev_b32 v%d, 6, v0\nv_and_b32 v%d, 63, v0" % (t0, v_lane))
        a("v_readfirstlane_b32 s%d, v%d" % (s_w, t0))
        g_, o_, b_ = s_cj, s_ci, s_cct
        a("s_lshl_b32 s%d, s%d, 8\ns_add_u32 s%d, s%d, s2\ns_mul_i32 s%d, s%d, 6554\ns_lshr_b32 s%d, s%d, 16\ns_mul_i32 s%d, s%d, 10\ns_sub_u32 s%d, s%d, s%d"
          % (g_, s_w, g_, g_, o_, g_, o_, o_, s_t0, o_, b_, g_, s_t0))
        a("s_lshl_b32 s%d, s%d, 12\ns_add_u32 s%d, s%d, %d" % (s_rlds, s_w, s_rlds, s_rlds, L_RP0))
        a("s_mul_i32 s%d, s%d, %d\ns_mul_i32 s%d, s%d, 384\ns_add_u32 s%d, s%d, s%d" % (s_am, o_, 8 * 3840, s_t0, b_, s_am, s_am, s_t0))
        a("s_mul_i32 s%d, s%d, 205\ns_lshr_b32 s%d, s%d, 10\ns_mul_i32 s%d, s%d, 5\ns_sub_u32 s%d, s%d, s%d" % (s_t0, o_, s_t0, s_t0, s_t0, s_t0, s_t2, o_, s_t0))
        a("s_add_u32 s%d, s%d, s%d\ns_mul_i32 s%d, s%d, 5120\ns_lshl_b32 s%d, s%d, 7\ns_add_u32 s%d, s%d, s%d" % (s_t0, s_t0, o_, s_t0, s_t0, s_t3, b_, s_am + 1, s_t0, s_t3))
        a("s_cmp_lt_u32 s%d, 4\ns_cselect_b32 s%d, %d, 0" % (s_t2, s_t2, 20 * 1280))
        a("s_cmp_lt_u32 s%d, 800\ns_cselect_b32 s%d, %d, 0\ns_cselect_b32 s%d, %d, 0" % (g_, sRP + 2, 7 * 3840 + 384, sR2 + 2, 27 * 1280 + 128))
        a("s_mov_b32 s%d, 0x20000\ns_mov_b32 s%d, 0x20000" % (sRP + 3, sR2 + 3))
        a("v_lshrrev_b32 v%d, 3, v%d\nv_and_b32 v%d, 7, v%d\nv_lshlrev_b32 v%d, 4, v%d" % (t0, v_lane, t3, v_lane, t1, t3))
        a("v_mul_u32_u24 v%d, 3840, v%d\nv_add_u32 v%d, v%d, v%d\nv_mul_u32_u24 v%d, 1280, v%d\nv_add_u32 v%d, v%d, v%d" % (RV, t0, RV, RV, t1, vC[0], t0, RV + 1, vC[0], t1))
        a("v_lshrrev_b32 v%d, 2, v%d\nv_mad_u32_u24 v%d, v%d, s%d, v%d" % (t1, t0, RV + 1, t1, s_t2, RV + 1))
        a("s_or_b32 s%d, s2, s%d\ns_mov_b32 s%d, s2\ns_and_b32 s%d, s%d, 1\ns_and_b32 s%d, s2, 7" % (s_a2p, s_w, s_spin, s_w1, s_w, s_t0))
        a("s_waitcnt lgkmcnt(0)")
        if self.stamps:
            a("v_writelane_b32 v0, s98, 0\nv_writelane_b32 v0, s100, 1\nv_writelane_b32 v0, s2, 63")
            self.stamp(a, "karg", level=2)
        lsk = self.label("noclear")
        a("s_cmp_lg_u32 s%d, 800\ns_cbranch_scc1 %s" % (g_, lsk))
        a("v_lshlrev_b32 v%d, 7, v%d\nv_mov_b32 v%d, 0\nv_add_u32 v%d, 8192, v%d\nv_add_u32 v%d, 16384, v%d" % (U0, v_lane, U0 + 1, U0 + 2, U0, U0 + 3, U0), raw=True)
        a("global_store_dword v%d, v%d, s[46:47] sc1\nglobal_store_dword v%d, v%d, s[46:47] sc1\nglobal_store_dword v%d, v%d, s[46:47] sc1" % (U0, U0 + 1, U0 + 2, U0 + 1, U0 + 3, U0 + 1), raw=True)
        a("v_mov_b32 v%d, 1\ns_waitcnt vmcnt(0)" % v_one, raw=True)
        a("global_store_dword v%d, v%d, s[44:45] sc1" % (U0 + 1, v_one), raw=True)
        a(lsk + ":")
        a("s_add_u32 s%d, s36, s%d\ns_addc_u32 s%d, s37, 0\ns_add_u32 s%d, s38, s%d\ns_addc_u32 s%d, s39, 0" % (sRP, s_am, sRP + 1, sR2, s_am + 1, sR2 + 1))
        a.extend(self.rp_issue())
        if self.mapping == "8x4":
            a("s_and_b32 s%d, s%d, 1\ns_lshl_b32 s%d, s%d, 3\ns_and_b32 s%d, s%d, 7\ns_add_u32 s%d, s%d, s%d" % (s_i, s_t0, s_i, s_i, s_t2, s_t1, s_i, s_i, s_t2))
            a("s_lshr_b32 s%d, s%d, 1\ns_lshl_b32 s%d, s%d, 2\ns_lshr_b32 s%d, s%d, 3\ns_add_u32 s%d, s%d, s%d" % (s_j, s_t0, s_j, s_j, s_t2, s_t1, s_j, s_j, s_t2))
        else:
            a("s_and_b32 s%d, s%d, 3\ns_lshl_b32 s%d, s%d, 2\ns_and_b32 s%d, s%d, 3\ns_add_u32 s%d, s%d, s%d" % (s_i, s_t0, s_i, s_i, s_t2, s_t1, s_i, s_i, s_t2))
            a("s_lshr_b32 s%d, s%d, 2\ns_lshl_b32 s%d, s%d, 3\ns_lshr_b32 s%d, s%d, 2\ns_add_u32 s%d, s%d, s%d" % (s_j, s_t0, s_j, s_j, s_t2, s_t1, s_j, s_j, s_t2))
        if self.rot == "none":
            a("s_mov_b32 s%d, 0" % s_t3)
        elif self.rot == "xcd":
            tab = [0, 2, 5, 7, 5, 7, 0, 2] if self.mapping == "4x8" else [0, 5, 2, 7, 5, 0, 7, 2]
            K = sum(v << (4 * k) for k, v in enumerate(tab))
            a("s_lshl_b32 s%d, s%d, 2\ns_lshr_b32 s%d, 0x%x, s%d\ns_and_b32 s%d, s%d, 15" % (s_t3, s_t0, s_t3, K, s_t3, s_t3, s_t3))
        elif self.rot.startswith("jx"):
            mj = int(self.rot[2:] or 1)
            sh, mu = (2, 3) if self.mapping == "4x8" else (3, 5)
            if self.mapping == "4x8": a("s_lshr_b32 s%d, s%d, 2\ns_mul_i32 s%d, s%d, 5\ns_lshr_b32 s%d, s%d, 1" % (s_t3, s_i, s_t3, s_t3, s_t3, s_t3))
            else: a("s_lshr_b32 s%d, s%d, 3\ns_mul_i32 s%d, s%d, 5" % (s_t3, s_i, s_t3, s_t3))
            a("s_mul_i32 s%d, s%d, %d\ns_add_u32 s%d, s%d, s%d\ns_mul_i32 s%d, s%d, 205\ns_lshr_b32 s%d, s%d, 11\ns_mul_i32 s%d, s%d, 10\ns_sub_u32 s%d, s%d, s%d"
              % (s_t2, s_j, mj, s_t3, s_t3, s_t2, s_t2, s_t3, s_t2, s_t2, s_t2, s_t2, s_t3, s_t3, s_t2))
        elif self.rot == "r4":
            a("s_xor_b32 s%d, s%d, s%d\ns_and_b32 s%d, s%d, 1\ns_mul_i32 s%d, s%d, 5" % (s_t3, s_i, s_j, s_t3, s_t3, s_t3, s_t3))
            a("s_lshr_b32 s%d, s%d, 2\ns_xor_b32 s%d, s%d, s%d\ns_and_b32 s%d, s%d, 1\ns_lshl_b32 s%d, s%d, 1\ns_add_u32 s%d, s%d, s%d" % (s_t2, s_t0, s_t2, s_t2, s_t0, s_t2, s_t2, s_t2, s_t2, s_t3, s_t3, s_t2))
        else:
            mul = {"ij": 1, "ij2": 2, "ij3": 3}[self.rot]
            a("s_add_u32 s%d, s%d, s%d\ns_mul_i32 s%d, s%d, %d\ns_mul_i32 s%d, s%d, 205\ns_lshr_b32 s%d, s%d, 11\ns_mul_i32 s%d, s%d, 10\ns_sub_u32 s%d, s%d, s%d"
              % (s_t3, s_i, s_j, s_t3, s_t3, mul, s_t2, s_t3, s_t2, s_t2, s_t2, s_t2, s_t3, s_t3, s_t2))
        a("v_lshrrev_b32 v%d, 4, v%d" % (v_q, v_lane))
        a("s_mul_i32 s%d, s%d, %d\ns_add_u32 s%d, s%d, %d" % (s_priv, s_w, PRIV_SZ, s_priv, s_priv, PRIV))
        a("v_xor_b32 v%d, v%d, v%d\nv_lshlrev_b32 v%d, 4, v%d" % (t1, t3, v_q, t1, t1))
        a("v_and_b32 v%d, 4, v%d\ns_lshl_b32 s%d, s%d, 5\nv_add3_u32 v%d, v%d, v%d, s%d" % (t2, t0, s_t2, s_w, t2, t2, t0, s_t2))
        a("v_mul_u32_u24 v%d, 1280, v%d\nv_add_u32 v%d, v%d, v%d" % (t2, t2, vDX[0], t2, t1))
        a("v_xor_b32 v%d, 64, v%d\nv_add_u32 v%d, %d, v%d" % (vDX[1], vDX[0], vDX[1], 16 * 1280 - 1024, vDX[1]))
        a("v_add_u32 v%d, %d, v%d\nv_add_u32 v%d, %d, v%d" % (vDX[2], 4 * 1280 - 2048, vDX[0], vDX[3], 4 * 1280 - 2048, vDX[1]))
        a("s_mul_i32 s%d, s%d, 163840\ns_lshl_b32 s%d, s%d, 7" % (s_t0, s_i, s_rx, s_t3)); a(self.mk(sX, 16, s_t0, 163840))
        a.extend(self.dma_x(0))
        a("s_cmp_lt_u32 s%d, 2\ns_cselect_b32 s22, s22, s24\ns_cselect_b32 s23, s23, s25\ns_cselect_b32 s26, s26, s28\ns_cselect_b32 s27, s27, s29" % s_w)
        a("s_mul_i32 s%d, s%d, 51200" % (s_t1, s_j)); a(self.mk(sB, 22, s_t1, 51200))
        a("s_mul_i32 s%d, s%d, 10240\ns_lshr_b32 s%d, s%d, 1\ns_mul_i32 s%d, s%d, 5120\ns_add_u32 s%d, s%d, s%d"
          % (s_bm0, s_w1, s_t1, s_w, s_t2, s_t1, s_bm0, s_bm0, s_t2))
        a("s_lshl_b32 s%d, s%d, 6\ns_lshl_b32 s%d, s%d, 7\ns_add_u32 s%d, s%d, s%d" % (s_t1, s_t1, s_t2, s_w1, s_rbb, s_rx, s_t2))
        a("v_add_u32 v%d, v%d, v%d\nv_xor_b32 v%d, s%d, v%d" % (vC[0], vC[0], t1, vDW[0], s_t1, vC[0]))
        for t in range(1, 5):
            a("v_add_u32 v%d, %d, v%d" % (vDW[t], 10240 * t - (1024 * t if t < 4 else 0), vDW[0]))
        a("s_mul_i32 s%d, s%d, 40\nv_min_u32 v%d, 39, v%d\nv_add_lshl_u32 v%d, v%d, s%d, 1" % (s_t1, s_j, TT + 9, v_lane, t1, TT + 9, s_t1))
        a("global_load_ushort v%d, v%d, s[18:19]" % (TT, t1), tag="par")
        a("global_load_ushort v%d, v%d, s[20:21]" % (TT + 1, t1), tag="par")
        a("global_load_ushort v%d, v%d, s[30:31]" % (TT + 2, t1), tag="par")
        order = self.opt.get("order", 1)
        if order == 0: a.extend(self.dma_w(0))
        self.stamp(a, "iss0", level=2)
        c = a
        c("v_lshlrev_b32 v%d, 4, v%d\nv_and_b32 v%d, 15, v%d" % (v_l16, v_lane, v_n, v_lane))
        c(self.mk(sWS, 46, None, 0x10000000 if self.stamps else 0x1000000))
        c(self.mk(sDBG, 44, None, 256))
        c("s_and_b32 s%d, s%d, 7\ns_lshr_b32 s%d, s%d, 3\ns_mul_i32 s%d, s%d, 5120" % (s_ct, s_j, s_rb, s_j, s_wm0, s_w))
        kvo, qo = s_qb, s_wob
        c("s_lshl_b32 s%d, s%d, 1\ns_and_b32 s%d, s%d, 6\ns_bfe_u32 s%d, s%d, 0x10002\ns_or_b32 s%d, s%d, s%d\ns_andn2_b32 s%d, s%d, 7\ns_or_b32 s%d, s%d, s%d"
          % (s_t0, o_, s_t0, s_t0, s_t1, o_, s_t0, s_t0, s_t1, s_t1, o_, s_t0, s_t0, s_t1))
        c("s_mul_i32 s%d, s%d, 640\ns_add_u32 s%d, s%d, %d\ns_mul_i32 s%d, s%d, 1280\ns_add_u32 s%d, s%d, %d\ns_add_u32 s%d, s%d, %d"
          % (qo, s_t0, qo, qo, W_QI, kvo, o_, s_rd[3], kvo, W_WOI, kvo, kvo, W_KVI - 640))
        c("s_mul_i32 s%d, s%d, 3" % (s_t2, b_))
        for z in range(4):
            d_ = RV + 2 + z
            if z < 3:
                c("s_add_u32 s%d, s%d, %d\ns_mul_i32 s%d, s%d, 26\ns_lshr_b32 s%d, s%d, 8\ns_mul_i32 s%d, s%d, 640\ns_lshl_b32 s%d, s%d, 6\ns_sub_u32 s%d, s%d, s%d"
                  % (s_t0, s_t2, z, s_t1, s_t0, s_t1, s_t1, s_t1, s_t1, s_t0, s_t0, s_t0, s_t0, s_t1))
                c("s_add_u32 s%d, s%d, s%d\ns_cmp_eq_u32 s%d, 0\ns_cselect_b32 s%d, s%d, s%d\ns_cselect_b32 s%d, 0, 51200\ns_add_u32 s%d, s%d, %d"
                  % (s_rd[z], kvo, s_t1, s_t1, s_rd[z], qo, s_rd[z], s_t1, s_t1, s_t1, 51200 - 640))
                c("v_add_u32 v%d, s%d, v%d\nv_mul_u32_u24 v%d, 1639, v%d\nv_lshrrev_b32 v%d, 16, v%d\nv_lshlrev_b32 v%d, 4, v%d\nv_mad_u32_u24 v%d, v%d, s%d, v%d"
                  % (t0, s_t0, v_lane, t1, t0, t1, t1, t0, t0, d_, t1, s_t1, t0))
            else:
                c("s_lshl_b32 s%d, s%d, 6\ns_mov_b32 s%d, %d" % (s_t0, b_, s_t1, 102400 - 1280))
                c("v_add_u32 v%d, s%d, v%d\nv_mul_u32_u24 v%d, 1639, v%d\nv_lshrrev_b32 v%d, 17, v%d\nv_lshlrev_b32 v%d, 4, v%d\nv_mad_u32_u24 v%d, v%d, s%d, v%d"
                  % (t0, s_t0, v_lane, t1, t0, t1, t1, t0, t0, d_, t1, s_t1, t0))
        c("s_lshr_b32 s%d, s%d, 1\ns_lshl_b32 s%d, s%d, 7\ns_add_u32 s%d, s%d, %d" % (s_rsig, o_, s_rsig, s_rsig, s_rsig, s_rsig, C_IMG))
        c("s_cmp_lt_u32 s%d, 800" % g_)
        for r in s_rd + [s_rsig]: c("s_cselect_b32 s%d, s%d, 0x70000000" % (r, r))
        c("v_and_b32 v%d, 3, v%d\nv_lshl_add_u32 v%d, v%d, 2, v%d" % (t0, v_lane, t0, v_q, t0))
        c("v_bfe_u32 v%d, v%d, 2, 2\nv_lshlrev_b32 v%d, 7, v%d\nv_lshl_add_u32 v%d, v%d, 3, v%d" % (t1, v_lane, t1, t1, t0, t0, t1))
        c("v_add_u32 v%d, s%d, v%d\nv_mov_b32 v%d, 1" % (RT, s_rlds, t0, v_one))
        if order == 1: a.extend(self.dma_w(0))
        self.rsl = self.opt.get("rsl", 1)
        if not self.rsl:
            a.extend(self.rp_read()); a.extend(self.rp_store())
        c("v_lshrrev_b32 v%d, 1, v%d\nv_xor_b32 v%d, v%d, v%d\nv_lshlrev_b32 v%d, 4, v%d" % (t0, v_n, t0, t0, v_q, t0, t0))
        c("v_lshl_add_u32 v%d, v%d, 7, v%d" % (t1, v_n, t0))
        c("v_add_u32 v%d, s%d, v%d\nv_xor_b32 v%d, 64, v%d" % (vXA[0], s_priv, t1, vXA[1], vXA[0]))
        c("v_lshrrev_b32 v%d, 3, v%d\nv_mul_u32_u24 v%d, %d, v%d" % (t3, v_n, t3, 5120 - 1024, t3))
        c("v_add_u32 v%d, v%d, v%d\nv_xor_b32 v%d, 64, v%d" % (vBA[0], t1, t3, vBA[1], vBA[0]))
        c("v_add_u32 v%d, %d, v%d\nv_add_u32 v%d, %d, v%d" % (vBA[2], 2 * SLOT, vBA[0], vBA[3], 2 * SLOT, vBA[1]))
        c("s_lshl_b32 s%d, s%d, 1\ns_add_u32 s%d, s%d, s%d\ns_mul_i32 s%d, s%d, 1600\ns_mov_b32 s%d, 0x40000" % (s_t2, s_spin, s_t2, s_t2, s_w1, s_t2, s_t2, s_spin))
        c("v_min_u32 v%d, 12, v%d\nv_lshl_add_u32 v%d, v%d, 7, s%d" % (t0, v_lane, v_ct, t0, s_t2))
        c(self.mk(sT, 26, None, 819200))
        c = late2 = L()
        c("s_mov_b32 s%d, 0x%x\ns_mov_b32 s%d, 0x%x" % (s_log2e, LOG2E, s_eps, EPS))
        c("v_xor_b32 v%d, 64, v%d\nv_add_u32 v%d, %d, v%d" % (vC[1], vC[0], vC[1], 8 * 1280 - 1024, vC[1]))
        c("s_mul_i32 s%d, s%d, 51200\ns_add_u32 s%d, s%d, %d\ns_mul_i32 s%d, s%d, 102400\ns_add_u32 s%d, s%d, %d" % (s_qb, s_j, s_qb, s_qb, W_QI, s_wob, s_ct, s_wob, s_wob, W_WOI))
        c("s_mul_i32 s%d, s%d, 102400\ns_add_u32 s%d, s%d, %d" % (s_kvi, s_j, s_kvi, s_kvi, W_KVI))
        c("v_lshlrev_b32 v%d, 7, v%d\nv_add_u32 v%d, %d, v%d" % (v_pl, TT + 9, v_pl, C_IMG, v_pl))
        c("s_lshl_b32 s%d, s%d, 6\nv_add_u32 v%d, s%d, v%d\nv_add_u32 v%d, 64, v%d\nv_min_u32 v%d, v%d, v%d\nv_lshlrev_b32 v%d, 2, v%d" % (s_t2, s_w1, t2, s_t2, v_lane, t1, v_n, t2, t2, t1, v_col4, t2))
        c("s_lshl_b32 s%d, s%d, 13\ns_add_u32 s%d, s%d, %d" % (s_t1, s_j, s_t1, s_t1, W_AGG)); c.append(grp(self.mk(sAG, 46, s_t1, 8192)))
        c("s_sub_u32 s%d, 15, s%d\ns_lshl_b32 s%d, s%d, 9" % (s_aggst, s_i, s_aggst, s_aggst))
        c("s_lshl_b32 s%d, s%d, 2\ns_add_u32 s%d, s%d, s%d\ns_lshl_b32 s%d, s%d, 13\ns_add_u32 s%d, s%d, %d" % (s_kvpld, s_j, s_kvpld, s_kvpld, s_w, s_kvpld, s_kvpld, s_kvpld, s_kvpld, W_KVP))
        c("s_lshl_b32 s%d, s%d, 9\ns_add_u32 s%d, s%d, s%d" % (s_kvpst, s_i, s_kvpst, s_kvpst, s_kvpld))
        for k in range(4): c("v_mov_b32 v%d, -1" % (S0 + k))
        c("v_and_b32 v%d, 32, v%d\nv_mul_u32_u24 v%d, 240, v%d\nv_add_u32 v%d, v%d, v%d" % (S0 + 4, v_lane, S0 + 4, S0 + 4, S0 + 4, S0 + 4, v_l16))
        c("s_lshl_b32 s%d, s%d, 13\ns_add_u32 s%d, s%d, s%d" % (s_rstep, s_w, s_rstep, s_rstep, s_kvpst))
        c("s_lshl_b32 s%d, s%d, 7" % (s_cj, s_j))
        s2 = list(self.setup2())
        ip = [k for k, x in enumerate(s2) if not isinstance(x, G) and x.kind == "waitvm"][0]
        B1 = list(late2) + s2[:ip] + list(self.late_addr())
        self.partC = s2[ip:] + list(self.setup3())
        nb = len(B1) * self.opt.get("pb", 30) // 100
        a.extend(flat(B1[:nb])); self.partB = B1[nb:]
        self.stamp(a, "setup", level=2)
        self.first = L()
        if self.opt.get("ct", 0) == 0: self.first("buffer_load_dword v255, v%d, %s, 0 offen" % (v_ct, srd(sT)), tag="ct")
        self.first.extend(self.dma_x(1))
        self.pc = list(self.poll_issue(sDBG, "0", 0, "clr"))
        self.second = list(self.dma_x(2)) + list(self.dma_w(1)) + list(self.dma_x(3))
        return a

    def setup2(self):
        a = L()
        t0 = vt[0]
        a.append(grp("s_mul_i32 s%d, s%d, 640\ns_mul_i32 s%d, s%d, 102400\ns_add_u32 s%d, s%d, s%d\n" % (s_t2, s_w1, s_t1, s_ct, s_t1, s_t1, s_t2)
                     + self.mk(sC, 26, s_t1, "s_sub_u32 s%d, 102400, s%d" % (sC + 2, s_t2))))
        a("s_lshl_b32 s%d, s%d, 1\ns_add_u32 s%d, s%d, s%d\ns_mul_i32 s%d, s%d, 163840\ns_mul_i32 s%d, s%d, 320\ns_add_u32 s%d, s%d, s%d\n"
          % (s_t1, s_i, s_t1, s_t1, s_rb, s_t1, s_t1, s_t2, s_ct, s_t1, s_t1, s_t2))
        a.append(grp(self.mk(sOUT, 42, s_t1, "s_sub_u32 s%d, 163840, s%d" % (sOUT + 2, s_t2))))
        a("s_lshr_b32 s%d, s%d, 1\ns_mul_i32 s%d, s%d, 10240\ns_mul_i32 s%d, s%d, 80\ns_add_u32 s%d, s%d, s%d" % (s_t2, s_w, s_t2, s_t2, s_rk, s_rx, s_rk, s_rk, s_t2))
        a("s_mul_i32 s%d, s%d, 40\ns_add_u32 s%d, s%d, s%d" % (s_rq, s_rx, s_rq, s_rq, s_wm0))
        a("s_add_u32 s%d, s%d, 512\ns_add_u32 s%d, s%d, 4608" % (s_aggld, s_aggst, s_aggld2, s_aggst))
        a.append(grp("s_cmp_lt_u32 s%d, 2\ns_cselect_b32 s40, s40, s32\ns_cselect_b32 s41, s41, s33\n" % s_w + self.mk(sRP, 40, None, 1280)))
        a("s_lshl_b32 s%d, s%d, 10\ns_add_u32 s%d, s%d, s%d\ns_mul_i32 s%d, s%d, 160\ns_add_u32 s%d, s%d, %d" % (s_t2, s_w1, s_t1, s_t2, s_rx, s_t0, s_ct, s_rlds, s_t2, M_GATE))
        a.append(grp("s_add_u32 s%d, s%d, %d\ns_cmp_lt_u32 s%d, 2\ns_cselect_b32 s%d, s%d, s%d\ns_cselect_b32 s%d, s%d, s%d" % (s_t2, s_t2, M_DSK, s_w, s_t1, s_t1, s_t0, s_rlds, s_rlds, s_t2)))
        a("v_add_u32 v%d, s%d, v%d" % (RB, s_t1, v_l16))
        a("v_subrev_u32 v%d, 1280, v%d\nv_min_u32 v%d, v%d, v%d" % (t0, RB, RB, RB, t0))
        a("s_lshl_b32 s%d, s%d, 10\ns_add_u32 s%d, s%d, 8192" % (s_ci, s_i, s_ci, s_ci))
        a("s_lshr_b32 s%d, s%d, 1\ns_lshl_b32 s%d, s%d, 7\ns_add_u32 s%d, s%d, s%d" % (s_t2, s_w, s_t2, s_t2, s_hs, s_ci, s_t2))
        a("s_lshl_b32 s%d, s%d, 7\ns_add_u32 s%d, s%d, s%d" % (s_t1, s_rb, s_hp, s_ci, s_t1))
        a("s_add_u32 s%d, s%d, s%d\ns_add_u32 s%d, s%d, s%d\ns_add_u32 s%d, s%d, %d" % (s_op, s_hp, s_t1, s_op, s_op, s_t2, s_op, s_op, C_O))
        a("s_lshl_b32 s%d, s%d, 7\ns_add_u32 s%d, s%d, s%d\ns_add_u32 s%d, s%d, %d" % (s_t2, s_w, s_os, s_ci, s_t2, s_os, s_os, C_O))
        a("s_add_u32 s%d, s%d, s%d" % (s_woi, s_wob, s_wm0))
        a("s_mul_i32 s%d, s%d, 5120\ns_add_u32 s%d, s%d, s%d" % (s_t2, s_w1, s_kvi, s_kvi, s_t2))
        a("s_lshl_b32 s%d, s%d, 2\ns_add_u32 s%d, s%d, s%d\ns_mul_i32 s%d, s%d, %d\ns_mul_i32 s%d, s%d, 1280\ns_add_u32 s%d, s%d, s%d\ns_add_u32 s%d, s%d, %d"
          % (s_t2, s_i, s_t2, s_t2, s_w, s_t2, s_t2, 2 * TSTR, s_t1, s_j, s_t2, s_t2, s_t1, s_a2p, s_t2, W_A2))
        a.append(grp("s_cmp_lt_u32 s%d, 2\ns_cselect_b64 s[%d:%d], -1, 0" % (s_w, s_lo2, s_lo2 + 1)))
        a.wv("par")
        Lr, Li, dt, e1, c1, s1, x0, x1 = [TT + k for k in range(8)]
        pa, pb, pc1, pc2, zr, rv, a8, b8, a128, b128 = [TT + 10 + k for k in range(10)]
        a("v_lshlrev_b32 v%d, 16, v%d\nv_lshlrev_b32 v%d, 16, v%d\nv_lshlrev_b32 v%d, 16, v%d" % (Lr, Lr, Li, Li, dt, dt))
        a("v_mul_f32 v%d, s%d, v%d\nv_exp_f32 v%d, v%d" % (dt, s_log2e, dt, dt, dt))
        a("v_mul_u32_u24 v%d, 48, v%d\nv_add_u32 v%d, %d, v%d" % (t0, TT + 9, t0, M_PARAM, t0))
        a("v_cvt_pk_bf16_f32 v%d, v%d, v%d\nv_lshlrev_b32 v%d, 16, v%d" % (dt, dt, dt, dt, dt))
        a("v_mul_f32 v%d, v%d, v%d\nv_mul_f32 v%d, s%d, v%d" % (zr, dt, Lr, zr, s_log2e, zr))
        a("v_mul_f32 v%d, v%d, v%d\nv_mul_f32 v%d, 0.15915494, v%d" % (rv, dt, Li, rv, rv))
        def power(k, da, db):
            if k == 1:
                a("v_exp_f32 v%d, v%d\nv_fract_f32 v%d, v%d" % (e1, zr, x0, rv))
            else:
                a("v_mul_f32 v%d, 0x%x, v%d\nv_exp_f32 v%d, v%d" % (e1, f2u(float(k)), zr, e1, e1))
                a("v_mul_f32 v%d, 0x%x, v%d\nv_fract_f32 v%d, v%d" % (x0, f2u(float(k)), rv, x0, x0))
            a("v_cos_f32 v%d, v%d\nv_sin_f32 v%d, v%d" % (c1, x0, s1, x0))
            a("v_mul_f32 v%d, v%d, v%d\nv_mul_f32 v%d, v%d, v%d" % (da, e1, c1, db, e1, s1))
        power(8, a8, b8); power(128, a128, b128); power(1, pa, pb)
        a("v_add_f32 v%d, -1.0, v%d" % (x0, pa))
        a("v_mul_f32 v%d, v%d, v%d\nv_fmac_f32 v%d, v%d, v%d\nv_rcp_f32 v%d, v%d" % (x1, Lr, Lr, x1, Li, Li, x1, x1))
        a("v_mul_f32 v%d, v%d, v%d\nv_fmac_f32 v%d, v%d, v%d" % (pc1, x0, Lr, pc1, pb, Li))
        a("v_mul_f32 v%d, v%d, v%d\nv_fma_f32 v%d, -v%d, v%d, v%d" % (pc2, x0, Li, pc2, pb, Lr, pc2))
        a("v_add_f32 v%d, v%d, v%d" % (x1, x1, x1))
        a("v_mul_f32 v%d, v%d, v%d\nv_mul_f32 v%d, v%d, v%d" % (pc1, pc1, x1, pc2, pc2, x1))
        a("ds_write_b128 v%d, %s\nds_write_b128 v%d, %s offset:16\nds_write_b64 v%d, %s offset:32" % (t0, vr(pa), t0, vr(zr), t0, vr(a128, 2)), tag="pw")
        return a
    def setup3(self):
        a = L()
        t0, kf, sg, t3 = vt
        a("v_and_b32 v%d, 7, v%d\nv_mul_u32_u24 v%d, 48, v%d\nv_add_u32 v%d, %d, v%d" % (t0, v_n, t0, t0, t0, M_PARAM, t0))
        for t in range(5):
            a("ds_read_b128 %s, v%d offset:%d" % (vr(PR0 + 6 * t), t0, 384 * t), tag="pr")
            a("ds_read_b64 %s, v%d offset:%d" % (vr(PR0 + 6 * t + 4, 2), t0, 384 * t + 16), tag="pr")
        a("v_lshrrev_b32 v%d, 6, v%d\nv_mul_u32_u24 v%d, 384, v%d\nv_add_u32 v%d, v%d, v%d" % (t3, v_col4, t3, t3, t3, t3, t0))
        a("ds_read_b64 %s, v%d offset:24\nds_read_b64 %s, v%d offset:32" % (vr(vA8, 2), t3, vr(vA128, 2), t3), tag="pr")
        a.append(grp("s_lshl_b32 s%d, s%d, 5\nv_lshl_add_u32 v%d, v%d, 3, s%d" % (s_t0, s_w, kf, v_q, s_t0)))
        a("v_cvt_f32_u32 v%d, v%d" % (kf, kf))
        a("v_and_b32 v%d, 8, v%d\nv_lshlrev_b32 v%d, 28, v%d\nv_xor_b32 v%d, v%d, v%d" % (sg, v_n, sg, sg, t3, sg, kf))
        for k in range(4): a("v_mov_b32 v%d, s%d" % (EPSQ + k, s_eps))
        a("v_cmp_gt_u32 vcc, 8, v%d" % v_n)
        for k in range(4): a("v_cndmask_b32 v%d, 0, v%d, vcc" % (EPSX + k, EPSQ))
        a.wl("pr")
        R = range(5)
        z = lambda t: PR0 + 6 * t + 4
        for t in R: a("v_mul_f32 v%d, v%d, v%d\nv_mul_f32 v%d, v%d, v%d" % (z(t), z(t), kf, z(t) + 1, z(t) + 1, t3))
        for t in R: a("v_exp_f32 v%d, v%d\nv_fract_f32 v%d, v%d" % (z(t), z(t), z(t) + 1, z(t) + 1))
        for t in R: a("v_cos_f32 v%d, v%d\nv_sin_f32 v%d, v%d" % (TT + 2 * t, z(t) + 1, TT + 2 * t + 1, z(t) + 1))
        for t in R: a("v_xor_b32 v%d, v%d, v%d\nv_xor_b32 v%d, v%d, v%d" % (z(t) - 3, z(t) - 3, sg, z(t) - 2, z(t) - 2, sg))
        for t in R: a("v_mul_f32 v%d, v%d, v%d\nv_mul_f32 v%d, v%d, v%d" % (TT + 2 * t, TT + 2 * t, z(t), TT + 2 * t + 1, TT + 2 * t + 1, z(t)))
        for t in R: a("v_mul_f32 v%d, v%d, v%d\nv_mul_f32 v%d, v%d, v%d" % (z(t), z(t) - 2, TT + 2 * t, z(t) + 1, z(t) - 1, TT + 2 * t))
        for t in R: a("v_fmac_f32 v%d, v%d, v%d\nv_fma_f32 v%d, -v%d, v%d, v%d" % (z(t), z(t) - 1, TT + 2 * t + 1, z(t) + 1, z(t) - 2, TT + 2 * t + 1, z(t) + 1))
        a("v_xor_b32 v%d, v%d, v%d\nv_xor_b32 v%d, v%d, v%d" % (vB8, vB8, sg, vB128, vB128, sg))
        return a
    def calc_kvaddr(self):
        a = L(); t0 = vt[0]
        a("v_mul_u32_u24 v%d, 1280, v%d\nv_lshl_add_u32 v%d, v%d, 4, v%d" % (vBA[0], v_q, vBA[0], v_n, vBA[0]))
        a("v_and_b32 v%d, 8, v%d\nv_lshl_add_u32 v%d, v%d, 6, v%d\nv_add_u32 v%d, 256, v%d" % (t0, v_n, vBA[1], t0, vBA[0], vBA[1], vBA[1]))
        a("v_add_u32 v%d, %d, v%d\nv_add_u32 v%d, %d, v%d" % (vBA[2], 2 * SLOT, vBA[0], vBA[3], 2 * SLOT, vBA[1]))
        return a
    def late_addr(self):
        a = L()
        t0, t1, t2, t3 = vt
        a("v_mul_u32_u24 v%d, 80, v%d\nv_add_u32 v%d, %d, v%d" % (t0, v_n, v_crd, M_S + 8, t0))
        a("v_lshl_add_u32 v%d, v%d, 2, v%d" % (t0, v_q, t0))
        a("s_lshl_b32 s%d, s%d, 4\ns_add_u32 s%d, s%d, %d\nv_add_u32 v%d, s%d, v%d" % (s_t0, s_w, s_t0, s_t0, M_S + 12, v_sad, s_t0, t0))
        a("v_mul_u32_u24 v%d, 20, v%d\nv_add_u32 v%d, %d, v%d" % (v_srow, v_col4, v_srow, M_S, v_srow))
        a.append(grp("s_cmp_lt_u32 s%d, 2\ns_cselect_b32 s%d, 8, 4\nv_add_u32 v%d, s%d, v%d" % (s_w, s_t0, v_cwr, s_t0, v_srow)))
        a("v_and_b32 v%d, 3, v%d\nv_lshlrev_b32 v%d, 8, v%d" % (t1, v_lane, t1, t1))
        a("v_and_b32 v%d, 44, v%d\nv_lshl_add_u32 v%d, v%d, 2, v%d" % (t2, v_lane, t1, t2, t1))
        a("v_and_b32 v%d, 16, v%d\nv_lshrrev_b32 v%d, 1, v%d" % (t2, v_lane, t2, t2))
        a("s_add_u32 s%d, s%d, %d\nv_add_u32 v%d, s%d, v%d\nv_add3_u32 v%d, v%d, v%d, s%d" % (s_t0, s_priv, P_HT, v_htw, s_t0, v_l16, v_htr, t1, t2, s_t0))
        a("v_and_b32 v%d, 1, v%d\nv_mul_u32_u24 v%d, %d, v%d" % (t2, v_q, t2, TSTR, t2))
        a("v_lshrrev_b32 v%d, 1, v%d\nv_mul_u32_u24 v%d, 20480, v%d" % (t3, v_q, t3, t3))
        a("v_lshlrev_b32 v%d, 4, v%d\nv_add3_u32 v%d, v%d, v%d, v%d" % (t0, v_n, v_hst, t2, t3, t0))
        a("s_lshl_b32 s%d, s%d, 12\ns_add_u32 s%d, s%d, %d\nv_add_u32 v%d, s%d, v%d" % (s_t0, s_w, s_t0, s_t0, L_KVR, v_kvw, s_t0, v_l16))
        a("v_mov_b32 v%d, 0\nv_mov_b32 v%d, 0x%x" % (v_zero, v_nel, NEL))
        a("s_lshl_b32 s%d, s%d, 1\ns_add_u32 s%d, s%d, s%d\ns_mul_i32 s%d, s%d, %d\ns_add_u32 s%d, s%d, %d" % (s_t1, s_i, s_t1, s_t1, s_rb, s_t1, s_t1, 4 * TSTR, s_t1, s_t1, W_A2))
        a("s_mul_i32 s%d, s%d, %d\ns_add_u32 s%d, s%d, s%d\ns_add_u32 s%d, s%d, 40960\ns_add_u32 s%d, s%d, 16384" % (s_t2, s_w, TSTR, s_ao, s_t1, s_t2, s_ao, s_ao, s_ao2, s_ao))
        a("s_mul_i32 s%d, s%d, 10240\ns_add_u32 s%d, s%d, s%d" % (s_t2, s_w, s_t1, s_t1, s_t2))
        for ml in range(4):
            a("s_add_u32 s%d, s%d, %d\ns_and_b32 s%d, s%d, 3\ns_mul_i32 s%d, s%d, %d\ns_add_u32 s%d, s%d, s%d" % (s_t2, s_w, ml, s_t2, s_t2, s_t2, s_t2, TSTR, s_am + ml, s_t2, s_t1))
        a("v_cmp_gt_u32 vcc, 8, v%d" % v_n)
        a("v_mul_u32_u24 v%d, 1280, v%d\nv_add3_u32 v%d, v%d, v%d, v%d" % (t1, v_q, t1, t1, t0, v_zero))
        a("v_add_u32 v%d, %d, v%d\nv_lshlrev_b32 v%d, 4, v%d\nv_add_u32 v%d, %d, v%d" % (t1, 2 * SLOT + 256, t1, t2, v_q, t2, M_GATE, t2))
        a("v_cndmask_b32 v%d, v%d, v%d, vcc" % (vY, t2, t1))
        for r, val in ((vI0, 640), (vI1, 4480), (vI2, (4480 - 4 * SLOT) & 0xffffffff)):
            a("v_mov_b32 v%d, 0x%x\nv_cndmask_b32 v%d, 64, v%d, vcc" % (t1, val, r, t1))
        return a

    def pass1(self):
        a = L()
        prev = [U0 + 8 * t for t in range(5)]
        for j8 in range(1, 8):
            cur = [TT + 5 * (j8 & 1) + t for t in range(5)]
            for t in range(5): a("v_fma_f32 v%d, v%d, v%d, v%d" % (cur[t], PR0 + 6 * t, prev[t], U0 + 8 * t + j8))
            for t in range(5): a("v_fmac_f32_dpp v%d, -v%d, v%d %s" % (cur[t], prev[t], PR0 + 6 * t + 1, DPP))
            prev = cur
        for t in range(5): a("ds_write_b32 v%d, v%d offset:%d" % (v_sad, prev[t], 4 + 1280 * t), tag="sw")
        return a
    def sread(self):
        a = L()
        for k in range(4): a("ds_read_b128 %s, v%d offset:%d" % (vr(S0 + 4 * k), v_srow, 16 + 16 * k), tag="sr")
        return a
    def horner1(self):
        a = L()
        a.wl("sr")
        for k in range(1, 16):
            a.append(grp("v_fmac_f32 v%d, v%d, v%d\nv_fmac_f32_dpp v%d, -v%d, v%d %s" % (S0 + k, vA8, S0 + k - 1, S0 + k, S0 + k - 1, vB8, DPP)))
        a("v_min_u32 v%d, -2, v%d" % (S0 + 15, S0 + 15))
        a("buffer_store_dword v%d, v%d, %s, s%d offen sc1" % (S0 + 15, v_col4, srd(sAG), s_aggst), tag="aggst")
        return a
    def eback(self):
        b = L()
        b("ds_write_b32 v%d, v%d offset:12" % (v_srow, v_zero), tag="ew")
        for k in range(4): b("ds_write_b128 v%d, %s offset:%d" % (v_srow, vr(S0 + 4 * k), 16 + 16 * k), tag="ew")
        return [self.only("hi", b)]
    def coef(self):
        a = L()
        for j8 in range(8):
            for t in range(5): a("v_mul_f32_dpp v%d, v%d, v%d %s" % (TT + 16 + t, U0 + 8 * t + j8, PR0 + 6 * t + 3, DPP))
            for t in range(5):
                u = U0 + 8 * t + j8
                a("v_fma_f32 v%d, v%d, v%d, v%d" % (u, u, PR0 + 6 * t + 2, TT + 16 + t))
        return a
    def te_rd(self):
        a = L()
        for t in range(5): a("ds_read_b32 v%d, v%d offset:%d" % (TE + t, v_sad, 1280 * t), tag="er")
        return a
    def te(self):
        a = L()
        a.wl("er")
        for t in range(5): a("v_mul_f32_dpp v%d, v%d, v%d %s" % (TT + 16 + t, TE + t, PR0 + 6 * t + 3, DPP))
        for t in range(5): a("v_fma_f32 v%d, v%d, v%d, v%d" % (TE + t, TE + t, PR0 + 6 * t + 2, TT + 16 + t))
        return a
    def agg_loads(self, raw=False):
        a = L()
        for m in range(14, -1, -1):
            a("buffer_load_dword v%d, v%d, %s, s%d offen offset:%d sc1" % (TT + m, v_col4, srd(sAG), s_aggld if m < 8 else s_aggld2, 512 * (m & 7)), tag="ag", raw=raw)
        if raw: return a
        return [self.only("lo", a[:8]), self.only("lo", a[8:])]
    def agg_chk(self, raw=False):
        a = L(); c = TT + 15
        a("v_max3_u32 v%d, v%d, v%d, v%d" % (c, TT, TT + 1, TT + 2), raw=raw)
        for m in range(3, 15, 2): a("v_max3_u32 v%d, v%d, v%d, v%d" % (c, c, TT + m, TT + m + 1), raw=raw)
        return a
    def horner2(self):
        a = L()
        slow = self.label("slow"); back = self.label("back")
        a.wv("ag")
        a.extend(self.agg_chk())
        a.append(grp("v_cmp_eq_u32 vcc, -1, v%d\ns_and_b64 vcc, vcc, s[%d:%d]\ns_cbranch_scc1 %s\n%s:" % (TT + 15, s_lo2, s_lo2 + 1, slow, back)))
        s = self.slow
        self.spin_head(s, slow)
        s.extend(self.agg_loads(raw=True)); s("s_waitcnt vmcnt(0)", raw=True); s.extend(self.agg_chk(raw=True))
        s("v_cmp_eq_u32 vcc, -1, v%d\ns_cbranch_vccnz %s\ns_branch %s" % (TT + 15, slow, back), raw=True)
        for m in range(13, -1, -1):
            a.append(grp("v_fmac_f32 v%d, v%d, v%d\nv_fmac_f32_dpp v%d, -v%d, v%d %s" % (TT + m, vA128, TT + m + 1, TT + m, TT + m + 1, vB128, DPP)))
        a("ds_write_b32 v%d, v%d" % (v_cwr, TT), tag="cw")
        return a
    def pass2(self):
        a = L()
        for t in range(5): a("ds_read_b32 v%d, v%d offset:%d" % (TT + t, v_crd, 1280 * t), tag="ir")
        for k in range(1, 4): a("v_add_u32 v%d, %d, v%d" % (vL4[k], 4096 * k, v_l16))
        a("v_lshlrev_b32 v%d, 3, v%d" % (v_l8, v_lane))
        a.delay(3)
        a.wl("ir")
        for t in range(5): a("v_fmac_f32 v%d, v%d, v%d" % (TE + t, PR0 + 6 * t + 4, TT + t))
        for t in range(5): a("v_fmac_f32_dpp v%d, v%d, v%d %s" % (TE + t, TT + t, PR0 + 6 * t + 5, DPP))
        def chain(t):
            c = []
            prev = TE + t
            for j8 in range(8):
                cur = U0 + 8 * t + j8
                c.append("v_fmac_f32 v%d, v%d, v%d\nv_fmac_f32_dpp v%d, v%d, v%d %s" % (cur, PR0 + 6 * t, prev, cur, prev, PR0 + 6 * t + 1, DPP))
                prev = cur
            return c
        def fin(t):
            u0 = U0 + 8 * t; f = L()
            for k in range(4): f("v_cvt_pk_bf16_f32 v%d, v%d, v%d" % (u0 + k, u0 + 2 * k, u0 + 2 * k + 1))
            f("ds_write_b128 v%d, %s offset:%d" % (v_htw, vr(u0), 1024 * t), tag="hw")
            for e in range(2):
                f("ds_read_b64_tr_b16 %s, v%d offset:%d" % (vr(u0 + 4 + 2 * e, 2), v_htr, 1024 * t + 64 * e), tag="hr%d" % t)
            return f
        def st(t):
            f = L(); f.wl("hr%d" % t)
            f("buffer_store_dwordx4 %s, v%d, %s, s%d offen offset:%d sc1" % (vr(U0 + 8 * t + 4), v_hst, srd(sWS), s_a2p, 256 * t), tag="hst")
            return f
        for t in range(6):
            ch = [grp(x) for x in chain(t)] if t < 5 else []
            fi = list(fin(t - 1)) if t >= 1 else []
            if t >= 2: fi = fi[:4] + list(st(t - 2)) + fi[4:]
            a.extend(merge([ch, fi]))
        a.delay(4)
        a.extend(st(4))
        return a

    def kv1a(self):
        a = L()
        kA, kB, X, vA, vB = [KV0 + 8 * t for t in range(5)]
        PA, PB, PX, VA, VB, VX = [S0 + 4 * k for k in range(6)]
        t0 = vt[0]
        a("v_cmp_gt_u32 vcc, 8, v%d\nv_mov_b32 v%d, 0x3f803f80" % (v_n, t0))
        for (src, dst) in ((X, VX), (vA, VA), (vB, VB)):
            for k in range(4): a("v_cvt_pk_bf16_f32 v%d, v%d, v%d" % (dst + k, src + 2 * k, src + 2 * k + 1))
        for k in range(4): a("v_cndmask_b32 v%d, v%d, v%d, vcc" % (VX + k, VX + k, t0))
        T4a, T4b, T5, T1, T3a, T2, T3b = vA, vA + 4, vB, vB + 4, X, X + 4, kA
        a("s_mov_b32 s%d, 0x0f550f55\ns_mov_b32 s%d, 0x0f550f55" % (s_mask, s_mask + 1))
        a("v_cmp_gt_u32 vcc, 16, v%d" % v_lane)
        def part(src, dst, mm):
            self.phi8(a, src, TT)
            for k in range(4): a("v_cvt_pk_bf16_f32 v%d, v%d, v%d" % (dst + k, src + 2 * k, src + 2 * k + 1))
            for d, x, y in mm: a("%s %s, %s, %s, 0" % (M, vr(d), vr(x), vr(y)))
        part(X, PX, ((T4a, PX, VA), (T4b, PX, VB), (T5, PX, VX)))
        part(kA, PA, ((T1, PA, VA), (T3a, PA, VX)))
        for k in range(4): a("v_cndmask_b32 v%d, v%d, v%d, vcc" % (T4a + k, T4b + k, T4a + k))
        for k in range(4): a("v_permlane32_swap_b32 v%d, v%d" % (T4a + k, T5 + k))
        a("ds_write_b128 v%d, %s offset:3072" % (v_kvw, vr(T4a)), tag="kw")
        a("ds_write_b128 v%d, %s" % (v_kvw, vr(T1)), tag="kw")
        part(kB, PB, ((T3b, PB, VX), (T2, PB, VB)))
        a.delay(2)
        for k in range(4): a("v_cndmask_b32 v%d, v%d, v%d, s[%d:%d]" % (T3a + k, T3b + k, T3a + k, s_mask, s_mask + 1))
        a("ds_write_b128 v%d, %s offset:1024" % (v_kvw, vr(T2)), tag="kw")
        a("ds_write_b128 v%d, %s offset:2048" % (v_kvw, vr(T3a)), tag="kw")
        a.append(grp("s_lshl_b32 s%d, s%d, 10\ns_add_u32 s%d, s%d, %d\nv_add_u32 v%d, s%d, v%d" % (s_t0, s_w, s_t0, s_t0, L_KVR, v_kvw, s_t0, v_l16)))
        return a
    def kv1b(self):
        a = L(); K = KV0
        for k in range(4): a("ds_read_b128 %s, v%d offset:%d" % (vr(K + 4 * k), v_kvw, 4096 * k), tag="kr")
        a.delay(4)
        a.wl("kr")
        for k in range(4): a("v_add_f32 v%d, v%d, v%d\nv_add_f32 v%d, v%d, v%d" % (K + k, K + k, K + 4 + k, K + 8 + k, K + 8 + k, K + 12 + k))
        for k in range(4): a("v_add_f32 v%d, v%d, v%d" % (K + k, K + k, K + 8 + k))
        for k in range(2): a("v_cvt_pk_bf16_f32 v%d, v%d, v%d" % (K + k, K + 2 * k, K + 2 * k + 1))
        for k in range(2): a("v_min_u32 v%d, -2, v%d" % (K + k, K + k))
        a("buffer_store_dwordx2 %s, v%d, %s, s%d offen sc1" % (vr(K, 2), v_l8, srd(sWS), s_kvpst), tag="kvst")
        return a
    def phiq(self):
        a = L(); t0 = vt[2]
        Z = SEL
        a("v_and_b32 v%d, 12, v%d\nv_add_u32 v%d, v%d, v%d" % (t0, v_n, t0, t0, v_n))
        a.append(grp("s_lshl_b32 s%d, s%d, 7\ns_add_u32 s%d, s%d, %d\nv_lshl_add_u32 v%d, v%d, 2, s%d" % (s_t0, s_w, s_t0, s_t0, M_G, t0, t0, s_t0)))
        for i in range(2): a("v_fma_f32 v%d, v%d, s%d, v%d" % (Z + i, Q0 + 8 + 4 * i, s_log2e, v_nel))
        for i in range(2): a("v_exp_f32 v%d, -v%d" % (Z + i, Z + i))
        for i in range(2): a("v_add_f32 v%d, 1.0, v%d" % (Z + i, Z + i))
        for i in range(2): a("v_rcp_f32 v%d, v%d" % (Z + i, Z + i))
        for i in range(2): a("v_sub_f32 v%d, 1.0, v%d" % (Z + 2 + i, Z + i))
        a.append(grp("s_mov_b32 exec_lo, 0\nds_write_b32 v%d, v%d\nds_write_b32 v%d, v%d offset:16\ns_mov_b32 exec_lo, -1" % (t0, Z, t0, Z + 1), tag="gw"))
        for i in range(2): a("v_permlane32_swap_b32 v%d, v%d" % (Z + 2 + i, OMG + i))
        for t in range(3):
            self.phi8(a, Q0 + 8 * t, TT)
            for i in range(2):
                for k in range(2):
                    a("v_cvt_pk_bf16_f32 v%d, v%d, v%d" % (PQ + 6 * i + 2 * t + k, Q0 + 8 * t + 4 * i + 2 * k, Q0 + 8 * t + 4 * i + 2 * k + 1))
        return a
    def gather_loads(self, raw=False):
        a = L()
        for c in range(8):
            a("buffer_load_dwordx4 %s, v%d, %s, s%d offen offset:%d sc1" % (vr(KV0 + 4 * c), vL4[c // 4], srd(sWS), s_kvpld, 1024 * (c % 4)), tag="g%d" % c, raw=raw)
        return a
    def gsel(self):
        a = L()
        t1, t2, t3 = vt[1], vt[2], vt[3]
        a("v_lshrrev_b32 v%d, 3, v%d\nv_xor_b32 v%d, v%d, v%d\nv_and_b32 v%d, 1, v%d\nv_lshlrev_b32 v%d, 3, v%d" % (t1, v_n, t1, t1, v_q, t1, t1, t1, t1))
        a("v_bfe_u32 v%d, v%d, 1, 2\nv_or_b32 v%d, v%d, v%d" % (t2, v_n, t1, t1, t2))
        a("v_and_b32 v%d, 1, v%d\nv_lshlrev_b32 v%d, 4, v%d\nv_mov_b32 v%d, 0x3f80\nv_lshlrev_b32 v%d, v%d, v%d" % (t2, v_n, t2, t2, t3, t3, t2, t3))
        for k in range(4):
            a.append(grp("v_cmp_eq_u32 vcc, %d, v%d\nv_cndmask_b32 v%d, 0, v%d, vcc" % (k, t1, SEL + k, t3)))
        a("v_and_b32 v%d, 2, v%d\nv_lshlrev_b32 v%d, 7, v%d\nv_lshl_add_u32 v%d, v%d, 4, v%d\nv_and_b32 v%d, 1, v%d\nv_lshl_add_u32 v%d, v%d, 3, v%d" % (t1, v_q, t1, t1, t1, v_n, t1, t2, v_q, t1, t2, t1))
        a.append(grp("s_lshl_b32 s%d, s%d, 9\ns_add_u32 s%d, s%d, %d\nv_add_u32 v%d, s%d, v%d" % (s_t0, s_w, s_t0, s_t0, L_KVX, GD - 2, s_t0, t1)))
        return a
    def gsum(self, raw=False):
        a = L()
        for c in range(8):
            if not raw: a.wv("g%d" % c)
            a("%s %s, %s, %s, %s" % (M, vr(GD), vr(SEL), vr(KV0 + 4 * c), vr(GD) if c else "0"), raw=raw)
        return a
    def gather_sum(self):
        a = L()
        t0, t1 = vt[0], vt[1]
        slow = self.label("slow"); back = self.label("back")
        a.extend(self.gsum())
        a("v_xor_b32 v%d, 256, v%d\nv_add_u32 v%d, %d, v%d\nv_add_u32 v%d, %d, v%d" % (t1, v_l8, t1, L_KVX, t1, t0, L_KVX, v_l8))
        a.delay(2)
        a.append(grp("v_cmp_u_f32 vcc, v%d, v%d\ns_cbranch_vccnz %s\n%s:" % (GD, GD + 1, slow, back)))
        s = self.slow
        self.spin_head(s, slow)
        s.extend(self.gather_loads(raw=True)); s("s_waitcnt vmcnt(0)\nv_mov_b32 v%d, 0" % vt[2], raw=True)
        for m in range(0, 32, 2): s("v_max3_u32 v%d, v%d, v%d, v%d" % (vt[2], vt[2], KV0 + m, KV0 + m + 1), raw=True)
        s("v_cmp_eq_u32 vcc, -1, v%d\ns_cbranch_vccnz %s" % (vt[2], slow), raw=True)
        s.extend(self.gsum(raw=True)); s("s_nop 7\ns_branch %s" % back, raw=True)
        a("v_cvt_pk_bf16_f32 v%d, v%d, v%d\nv_cvt_pk_bf16_f32 v%d, v%d, v%d" % (GD + 4, GD, GD + 1, GD + 5, GD + 2, GD + 3))
        a("ds_write_b64 v%d, %s" % (GD - 2, vr(GD + 4, 2)), tag="xw")
        return a
    def attn2(self):
        a = L()
        t0, t1, t2, t3 = vt
        FA, FB_, FZA, FZB, R3, R4, R5 = GB, GB + 4, GB + 8, GB + 12, GD, GD + 2, GD + 4
        E = Q0; SC = SEL; O = GB
        a("ds_read_b64 %s, v%d offset:%d" % (vr(R3, 2), t0, 1024), tag="xr")
        a("ds_read_b64 %s, v%d offset:%d" % (vr(R5, 2), t1, 1536), tag="xr")
        a("ds_read_b64 %s, v%d offset:%d" % (vr(R4, 2), t0, 1536), tag="xr")
        a("ds_read_b64 %s, v%d offset:%d" % (vr(FA, 2), t0, 0), tag="xr")
        a("ds_read_b64 %s, v%d offset:%d" % (vr(FB_ + 2, 2), t0, 512), tag="xr")
        a.delay(4)
        a.wl("xr")
        def masked(dst, src, lo, hi):
            a("s_mov_b32 s%d, 0x%x\ns_mov_b32 s%d, 0x%x" % (s_mask, lo, s_mask + 1, hi))
            for k in range(2): a("v_cndmask_b32 v%d, 0, v%d, s[%d:%d]" % (dst + k, src + k, s_mask, s_mask + 1))
        masked(FZA, R3, 0x0f550f55, 0x0f550f55); masked(FZA + 2, R5, 0x00000f55, 0)
        masked(FZB + 2, R3, 0xf0aaf0aa, 0xf0aaf0aa); masked(FZB, R5, 0xf0aa0000, 0)
        masked(FA + 2, R4, 0x0000ffff, 0); masked(FB_, R4, 0xffff0000, 0)
        self.nf = len(a)
        for i in range(2): a("%s %s, %s, %s, 0" % (M, vr(E + 12 * i + 8), vr(FZA), vr(PQ + 6 * i)))
        for i in range(2): a("%s %s, %s, %s, %s" % (M, vr(E + 12 * i + 8), vr(FZB), vr(PQ + 6 * i + 2), vr(E + 12 * i + 8)))
        a("v_lshrrev_b32 v%d, 1, v%d\nv_mul_u32_u24 v%d, %d, v%d" % (t2, v_q, t2, TSTR, t2))
        a("v_and_b32 v%d, 1, v%d\nv_lshl_add_u32 v%d, v%d, 3, v%d\nv_lshl_add_u32 v%d, v%d, 4, v%d" % (t3, v_q, t2, t3, t2, t2, v_n, t2))
        a("s_add_u32 s%d, s%d, %d\ns_add_u32 s%d, s%d, %d" % (s_t1, s_a2p, 160 * 256, s_t2, s_a2p, 160 * 256 + TSTR))
        for i in range(2):
            a("%s %s, %s, %s, 0" % (M, vr(E + 12 * i), vr(FA), vr(PQ + 6 * i)))
            a("%s %s, %s, %s, 0" % (M, vr(E + 12 * i + 4), vr(FB_), vr(PQ + 6 * i + 2)))
        a("s_mov_b32 s%d, 0\ns_mov_b32 s%d, 0x0000ffff" % (s_mask, s_mask + 1))
        ih = [(i, h) for i in range(2) for h in range(2)]
        for i, h in ih: a("v_add_f32 v%d, s%d, v%d" % (SC + 6 * i + 2 * h, s_eps, E + 12 * i + 8 + h))
        for i, h in ih: a("v_rcp_f32 v%d, v%d" % (SC + 6 * i + 2 * h, SC + 6 * i + 2 * h))
        for i, h in ih: a("v_mul_f32 v%d, v%d, v%d" % (SC + 6 * i + 2 * h, SC + 6 * i + 2 * h, OMG + i))
        for i, h in ih: a("v_mov_b32 v%d, v%d" % (SC + 6 * i + 2 * h + 1, SC + 6 * i + 2 * h))
        for i, h in ih: a("v_permlane32_swap_b32 v%d, v%d" % (SC + 6 * i + 2 * h, SC + 6 * i + 2 * h + 1))
        for i in range(2):
            sc = SC + 6 * i
            a("v_cndmask_b32 v%d, v%d, v%d, s[%d:%d]" % (sc + 4, sc + 2, sc, s_mask, s_mask + 1))
            for k in range(4):
                a("v_mul_f32 v%d, v%d, v%d" % (E + 12 * i + k, E + 12 * i + k, sc))
                a("v_mul_f32 v%d, v%d, v%d" % (E + 12 * i + 4 + k, E + 12 * i + 4 + k, sc + 2))
            for k in range(4): a("v_cvt_pk_bf16_f32 v%d, v%d, v%d" % (O + 4 * i + k, E + 12 * i + 2 * k, E + 12 * i + 2 * k + 1))
            a("buffer_store_dwordx4 %s, v%d, %s, s%d offen sc1" % (vr(O + 4 * i), v_l16, srd(sWS), (s_t1, s_t2)[i]), tag="ost")
        for i in range(2):
            ez = E + 12 * i + 8; sc = SC + 6 * i
            for k in range(4): a("v_mul_f32 v%d, v%d, v%d" % (ez + k, ez + k, sc + 4))
            for k in range(2): a("v_cvt_pk_bf16_f32 v%d, v%d, v%d" % (O + 8 + 2 * i + k, ez + 2 * k, ez + 2 * k + 1))
        for k in range(2): a("v_permlane32_swap_b32 v%d, v%d" % (O + 8 + k, O + 10 + k))
        a("buffer_store_dwordx2 %s, v%d, %s, s%d offen offset:1024 sc1" % (vr(O + 10, 2), t2, srd(sWS), s_t1), tag="ost")
        return a

    def dma_wo(self, blk):
        a = L(); tag = "wo%d" % blk if blk < 4 else "woE"
        base, off = (s_wm0, WSLOT[blk] * SLOT) if blk < 4 else (s_priv, P_HT)
        if blk == 4: a.wl("sx")
        a("s_add_u32 s%d, s%d, %d\ns_add_u32 m0, s%d, %d" % (s_so, s_woi, blk * SLOT, base, off), tag=tag)
        for ph in range(4):
            a("buffer_load_dwordx4 v%d, %s, s%d offen offset:%d sc1 lds" % (v_l16, srd(sWS), s_so, 1024 * ph), tag=tag)
        a("s_add_u32 m0, s%d, %d" % (base, off + 4096), tag=tag)
        a("buffer_load_dwordx4 v%d, %s, s%d offen sc1 lds" % (vL4[1], srd(sWS), s_so), tag=tag)
        return a
    def rd_we(self):
        a = L()
        a("v_add_u32 v%d, %d, v%d" % (vWE, PRIV + P_HT, vBA[0]))
        for f in range(20):
            kk, nt = divmod(f, 5)
            a("ds_read_b128 %s, v%d offset:%d" % (ar(WE[f]), vWE, kk * PRIV_SZ + 256 * nt), tag="we")
        return a
    KORD = [16, 17, 18, 19] + list(range(16))
    def ao_loads(self):
        a = L()
        for kk in self.KORD:
            a("buffer_load_dwordx4 %s, v%d, %s, s%d offen offset:%d sc1" % (ar(AO + 4 * kk), vL4[(kk // 4) % 4], srd(sWS), s_ao if kk < 16 else s_ao2, 1024 * (kk % 4)), tag="ao%d" % kk)
        return a
    GG = GB; DS = ACC + 20; SKV = [vDX[2], vDX[3], vDW[4]]; v_ga = v_col4
    def skip_addr(self):
        a = L()
        t0, t1, t2 = vt[1], vt[2], vt[3]
        a("s_lshr_b32 s%d, s%d, 1\ns_lshl_b32 s%d, s%d, 5\ns_lshl_b32 s%d, s%d, 2\ns_add_u32 s%d, s%d, s%d" % (s_t1, s_w, s_t1, s_t1, s_t2, s_w1, s_t1, s_t1, s_t2))
        a("v_lshl_add_u32 v%d, v%d, 3, s%d" % (t0, v_q, s_t1))
        a("v_mul_u32_u24 v%d, 2560, v%d\nv_lshl_add_u32 v%d, v%d, 2, v%d\nv_add_u32 v%d, 5120, v%d" % (v_o0, t0, v_o0, v_n, v_o0, v_o1, v_o0))
        a("s_lshl_b32 s%d, s%d, 6\ns_add_u32 s%d, s%d, s%d\ns_lshl_b32 s%d, s%d, 2\ns_add_u32 s%d, s%d, %d" % (s_t2, s_rb, s_t1, s_t1, s_t2, s_rstep, s_t1, s_rstep, s_rstep, M_G))
        a("s_mul_i32 s%d, s%d, 1280\ns_mul_i32 s%d, s%d, 160\ns_add_u32 s%d, s%d, s%d" % (s_t1, s_t1, s_t2, s_ct, s_t1, s_t1, s_t2))
        for ph in range(3):
            a("v_add_u32 v%d, %d, v%d\nv_mul_u32_u24 v%d, 6554, v%d\nv_lshrrev_b32 v%d, 16, v%d" % (t0, 64 * ph, v_lane, t1, t0, t1, t1))
            a("v_mul_u32_u24 v%d, 10, v%d\nv_sub_u32 v%d, v%d, v%d" % (t2, t1, t0, t0, t2))
            a("v_and_b32 v%d, 28, v%d\nv_add_u32 v%d, v%d, v%d\nv_mul_u32_u24 v%d, 1280, v%d" % (t2, t1, t1, t1, t2, t1, t1))
            a("v_lshl_add_u32 v%d, v%d, 4, v%d\nv_add_u32 v%d, s%d, v%d" % (t1, t0, t1, self.SKV[ph], s_t1, t1))
            if ph < 2: a("s_sub_u32 s%d, s%d, 1024" % (s_t1, s_t1))
        a("v_add_u32 v%d, s%d, v%d" % (vRX[0], s_priv, v_l16))
        for ml in range(1, 4):
            a("s_sub_u32 s%d, s%d, %d\ns_and_b32 s%d, s%d, 3\ns_mul_i32 s%d, s%d, %d\ns_add_u32 s%d, s%d, %d\nv_add_u32 v%d, s%d, v%d"
              % (s_t1, s_w, ml, s_t1, s_t1, s_t1, s_t1, PRIV_SZ, s_t1, s_t1, PRIV, vRX[ml], s_t1, v_l16))
        a("v_lshrrev_b32 v%d, 2, v%d\nv_mul_u32_u24 v%d, 160, v%d\nv_and_b32 v%d, 3, v%d\nv_lshl_add_u32 v%d, v%d, 3, v%d" % (t0, v_lane, t0, t0, t1, v_lane, t0, t1, t0))
        a("v_add_u32 v%d, s%d, v%d\nv_lshlrev_b32 v%d, 1, v%d\nv_add_u32 v%d, %d, v%d" % (230, s_priv, t0, 231, v_n, 231, M_DSK, 231))
        return a
    def skip_dma(self):
        a = L()
        a.wl("hr4")
        a("s_add_u32 m0, s%d, %d" % (s_priv, P_HT), tag="sk")
        for ph in range(3):
            a("buffer_load_dwordx4 v%d, %s, 0 offen offset:%d lds" % (self.SKV[ph], srd(sX), 1024 * ph), tag="sk")
        return a
    def skip_rd(self):
        a = L()
        a.wv("sk")
        for nt in range(5): a("ds_read_b64_tr_b16 %s, v%d offset:%d" % (vr(ACC + 4 * nt + 2, 2), 230, P_HT + 32 * nt), tag="sx")
        for nt in range(5): a("ds_read_u16 v%d, v%d offset:%d" % (self.DS + nt, 231, 32 * nt), tag="sd")
        return a
    def skip_calc(self):
        a = L()
        a.wl("sd")
        for nt in range(5): a("v_lshlrev_b32 v%d, 16, v%d" % (self.DS + nt, self.DS + nt))
        for nt in range(5):
            c = ACC + 4 * nt
            a("v_lshlrev_b32 v%d, 16, v%d\nv_and_b32 v%d, 0xffff0000, v%d\nv_lshlrev_b32 v%d, 16, v%d\nv_and_b32 v%d, 0xffff0000, v%d" % (c, c + 2, c + 1, c + 2, c + 2, c + 3, c + 3, c + 3))
            for r in range(4): a("v_mul_f32 v%d, v%d, v%d" % (c + r, c + r, self.DS + nt))
        return a
    def aload(self, k):
        b = L(); kk = k
        for ml in range(4):
            b("buffer_load_dwordx4 %s, v%d, %s, s%d offen offset:%d sc1" % (vr(AF + 16 * (k % NAF) + 4 * ml), vL4[kk // 4], srd(sWS), s_am + ml, 1024 * (kk % 4)), tag="a%d" % k)
        return b

    def build(self):
        o = self.opt
        a = L()
        t0, t1, t2, t3 = vt
        a.extend(self.prologue())
        NS = 71
        S = Sched([10] * 40 + [6] * 20 + [16] + [20] * 10)
        pre = [L() for _ in range(NS)]; post = [L() for _ in range(NS)]
        cj, ci_, cct = "s%d" % s_cj, "s%d" % s_ci, "s%d" % s_cct
        n3 = [0, 8, 18, 99][o.get("n3", 2)]
        rsig = o.get("rsig", 2)
        stl = list(self.rp_store()) + self.clears() + self.pc
        d = list(self.first) + list(self.second[:n3]) + [G(self.rp_read())]
        if self.rsl == 1: d += stl; stl = []
        fill = list(self.partB) + list(self.partC)
        nf = len(fill) * o.get("pf", 70) // 100
        nv = sum(1 for x in d if not isinstance(x, G) and x.kind == "vmem")
        sh = split(fill[:nf], nv); k = 0
        for x in d:
            a.extend(flat([x]))
            if not isinstance(x, G) and x.kind == "vmem":
                a.extend(flat(sh[k])); k += 1
        self.fill = fill[nf:]
        self.stamp(a, "prol")
        a.wv("x1")
        self.stamp(a, "st0", level=2); a("s_barrier")
        a.extend(self.x_reads(0)); a.extend(self.frag_reads(0))
        S.at(self.rp_signal(), rsig)
        for g in range(59):
            st1, kk1 = self.stage_of(g + 1)
            rd = list(self.frag_reads(g + 1))
            if g + 1 < 20 and kk1 == 0: rd = list(self.x_reads(2 * st1)) + rd
            if g + 1 < 20 and kk1 == 1: rd = rd + list(self.x_reads(2 * st1 + 1))
            for k, x in enumerate(rd):
                S.gap[S.start[g] + k].append(x); S.load[S.start[g] + k] += wcost(x)
        for g in range(60):
            for t in ((1, 3) if g < 40 else (1,)) if o.get("w2", 1) else range(1, 5 if g < 40 else 3):
                S.gap[S.start[g] + 2 * t - 1].append(WL("f%d_%d" % (g, t + o.get("w2", 1))))
        X = self.dma_x; W = self.dma_w
        gate = list(L()("s_mov_b32 m0, s%d\nbuffer_load_dwordx4 v%d, %s, 0 offen lds" % (s_rlds, RB, srd(sRP)), tag="gate"))
        S.spread(stl + list(self.second[n3:]) + list(X(4)) + list(X(5)), 0, 2)
        S.spread(list(W(2)) + list(X(6)) + list(X(7)), 3, 6)
        pi_ = [self.only("w0", self.vpoll_issue("pI"))]
        gi = o.get("gi", 15)
        S.spread(list(W(3)) + (pi_ if gi == 11 else []) + list(X(8)) + list(X(9)), 7, 10)
        S.spread(list(W(4)) + (pi_ if gi == 15 else []) + gate, 11, 12)
        pre[gi].append(self.only("w0", self.vpoll_check("pI", 20)))
        if self.fill: S.place(self.fill, 0, 10)
        S.place(self.skip_addr(), 13, 18)
        hp, op_ = "s%d" % s_hp, "s%d" % s_op
        co = self.coef(); ga = o.get("ga", 29)
        if o.get("xb", 0):
            S.place(self.pass1(), 20, 21); post[21].wl("sw"); post[21]("s_barrier")
            S.place(self.sread(), 22, 22.4); pre[23].wl("sr")
            S.place(co[:20], 22, 22)
            S.place(self.horner1(), 23, 24.6)
            S.place(self.eback(), 24.6, 25); pre[27].wl("ew")
            S.place(co[20:], 24.6, 28)
            S.place(self.te_rd(), 28.5, 28); S.place(self.te(), 29.5, ga + 2)
        else:
            S.place(self.pass1(), 20, 22); pre[23].wl("sw")
            S.place(self.sread(), 23.5, 23); S.place(co[:20], 23, 23)
            S.place(self.horner1(), 24.3, 25); pre[27].wl("sr")
            S.place(self.eback(), 27.5, 27); pre[31].wl("ew")
            S.place(co[20:], 26, 29)
            S.place(self.te_rd(), 31.5, 31); S.place(self.te(), 32.3, 32)
            ga = o.get("ga", 30)
        S.spread(self.agg_loads(), ga, ga)
        S.place(self.horner2(), ga + 3, 34); pre[35].wl("cw")
        S.place(self.pass2(), 35, 39)
        ke = o.get("ke", 42)
        S.at(self.wsignal("hst", s_hs), o.get("hs", ke + 1))
        S.place(self.kv1a(), 40, ke)
        post[ke].wl("kw"); post[ke]("s_barrier")
        S.place(self.kv1b(), ke + 1, ke + 2)
        pre[47].wl("kr")
        S.place(self.gsel(), 45, 48); S.place(self.skip_calc(), 49, 55)
        B = 61
        gsw = o.get("gsw", 57)
        S.place(self.gather_sum(), gsw, 59)
        post[59].wl("xw"); post[59].wv("woE"); post[59]("s_barrier")
        at2 = list(self.attn2())
        S.place(at2[:self.nf], 60, 60); S.place(self.phiq(), 60, 60)
        ge = o.get("ge", 9) / 10.0
        S.place(at2[self.nf:], B, B + ge)
        S.at(self.wsignal("ost", s_os), B + o.get("os", 3))
        S.spread(list(self.rd_we()), B + 6, B + 7)
        post[B + 7].wl("we"); post[B + 7]("s_barrier")
        S.gap[S.start[B + 9] + 2].extend(L()("v_lshl_add_u32 v%d, v%d, 5, s%d\nds_read_b128 %s, v%d" % (self.v_ga, v_q, s_rstep, vr(self.GG), self.v_ga), tag="g2"))
        for z in range(15):
            k = S.start[B + 8] + 10 + 10 * (z // 5) + 2 * (z % 5)
            S.gap[k].append(I("ds_write_b128 v%d, %s offset:%d" % (vRX[0], vr(ACC + 20 * (1 + z // 5) + 4 * (z % 5)), z * 1024), tag="rw"))
        S.gap[S.start[B + 8] + 4].append(WV("a9"))
        st_ = lambda g: S.rng(g, int(g))[0]
        T = o.get("T", 72); LAT = o.get("lat", 800); PL = o.get("pl", 1000)
        P = []
        gl = self.gather_loads(); aol = self.ao_loads()
        P.append(Pkt("pH", self.poll_issue(sWS, hp, 0, "pH"), st_(o.get("ph", 47))))
        P.append(Pkt("cH", self.poll_check(sWS, hp, 0, "pH", 32), after=["pH"], lag=PL))
        P.append(Pkt("pO", self.poll_issue(sWS, op_, 0, "pO"), st_(B + o.get("po", 50) / 10.0), after=["cH"]))
        P.append(Pkt("cO", self.poll_check(sWS, op_, 0, "pO", 16), after=["pO"], lag=o.get("plo", PL)))
        for c in range(8): P.append(Pkt("g%d" % c, [gl[c]], st_(o.get("gg", 51))))
        for st in range(5, 13):
            fr = max(gi, 4 * st - 13) if st > 5 else gi
            P.append(Pkt("w%d" % st, W(st), st_(fr)))
        P.append(Pkt("sk", self.skip_dma(), st_(40)))
        P.append(Pkt("skr", self.skip_rd(), after=["sk"], lag=LAT))
        for k in range(10):
            P.append(Pkt("a%d" % k, self.aload(k), st_(ke + 3) if k < 2 else st_(60) if k < 4 else st_(B + k - 3), after=["cH"]))
        for u in range(25):
            P.append(Pkt("c%d" % u, self.dma_c(u), st_(17), after=["cr%d" % (u - self.NCU)] if u >= self.NCU else [], lag=60))
            P.append(Pkt("cr%d" % u, self.rd_c(u), 0 if u < 12 else st_(41 + u - 12), after=["c%d" % u], lag=LAT))
        P.append(Pkt("woE", self.dma_wo(4), after=["skr"], lag=60))
        P.append(Pkt("wo0", self.dma_wo(0), st_(o.get("w0", 47))))
        P.append(Pkt("wo1", self.dma_wo(1), st_(o.get("w1", 58))))
        if o.get("w2e", 1): P.append(Pkt("wo2", self.dma_wo(2), st_(o.get("w1", 58))))
        for z in range(8): P.append(Pkt("ao%d" % z, [aol[z]], after=["cO"]))
        if not o.get("w2e", 1): P.append(Pkt("wo2", self.dma_wo(2), st_(55), after=["cO"]))
        for z in range(8, 12): P.append(Pkt("ao%d" % z, [aol[z]], after=["cO"]))
        P.append(Pkt("wo3", self.dma_wo(3), st_(60)))
        for z in range(12, 20): P.append(Pkt("ao%d" % z, [aol[z]], after=["cO"]))
        extra = {g: 110 for g in range(60) if g + 1 < 60 and self.stage_of(g + 1)[1] == 0}
        extra[ke + 1] = 110; extra[B + 8] = 110; extra[60] = 110
        left, tend = pace(S, st_(13), S.start[B + 10], P, T, nomf=(60,), step_extra=extra)
        if o.get("v", 0):
            stepof = lambda k: max(g for g in range(len(S.counts)) if S.start[g] <= k)
            print("model end", int(tend), " ".join("%s@%d" % (p.name, stepof(p.done_gap)) for p in P if p.done_gap is not None), "| left:", [p.name for p in left])
        tailq = [x for p in left for x in p.ins]
        def take(n):
            out = []
            while tailq and n > 0:
                x = tailq.pop(0); out.append(x)
                if not isinstance(x, G) and x.kind == "vmem": n -= 1
            return out
        for g in range(60):
            p = L()
            nt_ = 5 if g < 40 else 3
            p.wl("f%d_0" % g)
            if g + 1 < 60:
                st1, kk1 = self.stage_of(g + 1)
                if kk1 == 0:
                    p.wl("f%d_%d" % (g, nt_ - 1))
                    fine = o.get("f0", 99) <= g <= o.get("f1", -1)
                    p.extend(pre[g]); p.wv("w%d" % st1)
                    if st1 < 5: p.wv("x%d" % (2 * st1 + 1))
                    if fine: self.stamp(p, "wv%d" % g)
                    p("s_barrier")
                    if fine: self.stamp(p, "bar%d" % g)
                    if st1 == 5: p.extend(self.calc_kvaddr())
                else:
                    assert not pre[g], g
            a.extend(flat(p))
            a.extend(S.emit(g, self.mfmas(g)))
            a.extend(post[g])
            if g in (19, 39, 59) or o.get("f0", 99) <= g <= o.get("f1", -1): self.stamp(a, "g%d" % g)
            elif g % 4 == 3: self.stamp(a, "g%d" % g, level=2)
        a.extend(S.emit(60, [None] * 16))
        self.stamp(a, "phiq")
        for k in range(10):
            a.wv("a%d" % k)
            a.wl("cr%d" % ((k >> 1) * 5 + 4))
            a.extend(S.emit(B + k, self.mfmas(60 + k)))
            a.extend(post[B + k])
            self.stamp(a, "k%d" % k, level=2 if k != 9 else 1)
        late_wo = any((not isinstance(y, G)) and y.tag in ("wo2", "wo3") for y in tailq) or o.get("midbar", 0)
        a.wl("rw"); a.wv("wo1" if late_wo else "wo3"); a("s_barrier")
        x = L()
        P = ACC + 20
        for nt in range(5):
            for ml in range(1, 4):
                x("ds_read_b128 %s, v%d offset:%d" % (vr(P + 12 * nt + 4 * (ml - 1)), vRX[ml], ((ml - 1) * 5 + nt) * 1024), tag="rr%d" % nt)
        for nt in range(5):
            x.wl("rr%d" % nt)
            b = P + 12 * nt; c = ACC + 4 * nt
            for h in (0, 2):
                x("v_pk_add_f32 %s, %s, %s" % (vr(b + h, 2), vr(b + h, 2), vr(b + 4 + h, 2)))
                x("v_pk_add_f32 %s, %s, %s" % (vr(c + h, 2), vr(c + h, 2), vr(b + 8 + h, 2)))
            for h in (0, 2): x("v_pk_add_f32 %s, %s, %s" % (vr(c + h, 2), vr(c + h, 2), vr(b + h, 2)))
            for h in (0, 2): x("v_pk_mul_f32 %s, %s, %s" % (vr(c + h, 2), vr(c + h, 2), vr(self.GG + h, 2)))
        KO = self.KORD
        ksw = o.get("ksw", 4)
        if late_wo: ksw = 12
        order = [(kk, nt) for kk in KO[:ksw] for nt in range(5)] + [(kk, nt) for nt in range(5) for kk in KO[ksw:]]
        NB = 16; LA = o.get("la", 12)
        stream = [f for f in order if f[0] < 16]
        def rd(z):
            kk, nt = stream[z]
            slot = WSLOT[kk // 4]; hi = slot >= 2
            return I("ds_read_b128 %s, v%d offset:%d" % (vr(AF + 4 * (z % NB)), vBA[2 * hi], (slot - 2 * hi) * SLOT + 5120 * (kk % 4) + 256 * nt), tag="wf%d" % z)
        a.extend(flat(merge([x, take(o.get("nx", 8))])))
        self.stamp(a, "xchg")
        nr = 0; pend = []; vsp = o.get("vsp", 3)
        for idx, (kk, nt) in enumerate(order):
            a.wv("ao%d" % kk)
            if kk < 16:
                z = stream.index((kk, nt)); a.wl("wf%d" % z); w = vr(AF + 4 * (z % NB))
            else:
                w = ar(WE[(kk - 16) * 5 + nt])
            c = ACC + 4 * nt
            a("%s %s, %s, %s, %s" % (M, vr(c), ar(AO + 4 * kk), w, vr(c)))
            used = sum(1 for f in order[:idx + 1] if f[0] < 16)
            if nr < len(stream) and nr - used < LA and nr - NB < used - 1:
                if nr == 40 and late_wo:
                    a.extend(flat(take(99))) if any((not isinstance(y, G)) and y.tag == "wo3" for y in tailq) else None
                    a.wv("wo3"); a("s_barrier")
                a.append(rd(nr)); nr += 1
            if idx % vsp == 0: a.extend(flat(take(1)))
            if pend and idx >= pend[0][0]:
                a.append(pend.pop(0)[1])
            if kk == KO[-1]:
                for r in range(4):
                    pend.append((idx + 3 + 2 * r, I("buffer_store_dword v%d, v%d, %s, 0 offen offset:%d %s" % (c + r, (v_o0, v_o1)[r >> 1], srd(sOUT), 2560 * (r & 1) + 64 * nt, self.outflag), tag="out")))
        for _, s_ in pend: a.append(s_)
        self.stamp(a, "end")
        if self.stamps:
            a("s_waitcnt vmcnt(0)")
            self.stamp(a, "drain")
            a("s_sub_u32 s%d, 0x40000, s%d\nv_writelane_b32 v0, s%d, 62" % (s_t0, s_spin, s_t0))
            self.stamp(a, "rt1", real=True)
            a("v_readlane_b32 s%d, v0, 63\ns_nop 3\ns_lshl_b32 s%d, s%d, 2\ns_add_u32 s%d, s%d, s%d\ns_lshl_b32 s%d, s%d, 8\ns_add_u32 s%d, s%d, %d"
              % (s_t0, s_t0, s_t0, s_t0, s_t0, s_w, s_t0, s_t0, s_t0, s_t0, STAMP_OFF))
            a("v_lshlrev_b32 v2, 2, v%d\nbuffer_store_dword v0, v2, %s, s%d offen" % (v_lane, srd(sWS), s_t0))
        a("L_end:\ns_endpgm")
        a.extend(self.slow)
        self.S = S
        return flat(a)

def make(verbose=False, **kw):
    g = Gen(**kw)
    ins = g.build()
    check_m0(ins, {"s%d" % s_so})
    o = g.opt
    if o.get("noc"):
        import re
        ins = [i for i in ins if not (i.tag and re.fullmatch(r"cr?\d+", str(i.tag)))]
    if o.get("now"):
        import re
        ins = [i for i in ins if not (i.tag in ("w8", "w9", "w10", "w11", "w12"))]
    if o.get("noval"):
        nm = 0; out = []
        for i in ins:
            if i.kind == "mfma": nm += 1
            if 240 < nm < 440 and i.kind == "valu" and i.text.startswith(("v_fma", "v_mul_f32", "v_exp", "v_rcp", "v_add_f32", "v_cvt_pk")): continue
            out.append(i)
        ins = out
    if o.get("nocomp"):
        ins = [i for i in ins if i.raw or not (i.kind == "mfma" or (i.kind == "valu" and i.text.startswith(("v_fma", "v_mul_f32", "v_exp", "v_rcp", "v_add_f32", "v_cvt_pk", "v_max_f32", "v_pk_", "v_sin", "v_cos", "v_fract", "v_permlane"))))]
        ins = [i for i in ins if not (i.kind == "branch" and ("scc1 L_slow" in i.text or ("vccnz L_slow" in i.text and not i.opt and not i.raw)))]
    if o.get("nomem"):
        import re
        ins = [i for i in ins if not (i.kind in ("vmem", "waitvm") and i.tag and re.fullmatch(r"(x|w|c|a|g|ao|wo)\d+|woE|sk|tx|tb|ct", str(i.tag)))]
        ins = [i for i in ins if not (i.kind == "branch" and ("scc1 L_slow" in i.text or ("vccnz L_slow" in i.text and not i.opt and not i.raw)))]
    if o.get("norp"):
        drop = {1: ("rp", "rs"), 2: ("rs",), 3: ("rp",), 4: ("rp", "rs", "ct")}[o["norp"]]
        ins = [i for i in ins if not (i.kind in ("vmem", "waitvm") and i.tag in drop)]
        ins = [i for i in ins if not (i.kind == "branch" and ("scc1 L_slow" in i.text or ("vccnz L_slow" in i.text and not i.opt and not i.raw)))]
    if o.get("drop"):
        import re
        pat = {1: r"c\d+", 2: r"wo\d|woE", 3: r"a\d", 4: r"ao\d+", 5: r"hst", 6: r"w([5-9]|1\d)", 7: r"x\d|w[0-4]", 8: r"out", 9: r"cr?\d+", 10: r"ag", 11: r"ost", 12: r"rp|rs", 13: r"g\d|kvst", 14: r"sk|ct|par|gate"}[o["drop"]]
        ins = [i for i in ins if not ((i.kind in ("vmem", "waitvm") or o["drop"] == 9) and i.tag and re.fullmatch(pat, str(i.tag)))]
        ins = [i for i in ins if not (i.kind == "branch" and ("scc1 L_slow" in i.text or ("vccnz L_slow" in i.text and not i.opt and not i.raw)))]
    if o.get("nomf"):
        ins = [i for i in ins if i.raw or i.kind != "mfma"]
        ins = [i for i in ins if not (i.kind == "branch" and ("scc1 L_slow" in i.text or ("vccnz L_slow" in i.text and not i.opt and not i.raw)))]
    if o.get("nofr"):
        import re
        ins = [i for i in ins if not (i.tag and re.fullmatch(r"f(2[1-9]|3\d)_\d", str(i.tag)))]
    ins = resolve_waits(ins)
    ins = hazards(ins, verbose=True)
    if verbose:
        S = g.S
        print("load per gap by step:", " ".join("%d:%.1f" % (k, sum(S.load[S.start[k]:S.start[k + 1]]) / S.counts[k]) for k in range(71)))
    K = NAME + "_kernel"
    txt = header([(K, 256, 256, 163840)]) + kernel_begin(K) + render(ins) + "L_codeend:\n" + rodata() + descriptor(K, 512, 102, 256)
    if o.get("al", 0):
        txt, n, left = align_pass(txt, o.get("nc", 0))
        if verbose: print("re-encoded", n, "misaligned left about", left)
    if g.stamps: txt += "; STAMPS " + " ".join(g.names) + "\n"
    return txt, g.nst

if __name__ == "__main__":
    out = sys.argv[1]
    kw = {}; opt = {}
    for x in sys.argv[2:]:
        k, v = x.split("=")
        if k == "stamps": kw[k] = int(v)
        elif k in ("mapping", "rot", "outflag"): kw[k] = v
        else: opt[k] = int(v)
    txt, nst = make(verbose=True, opt=opt, **kw)
    open(out, "w").write(txt)
```

```python
import sys, struct
from asmgen import NAME, header, kernel_begin, descriptor, rodata, STAMP_OFF
from ir import *

def f2u(x): return struct.unpack("<I", struct.pack("<f", x))[0]
SLOT = 20480
PRIV = 81920; PRIV_SZ = 17408; P_HT = 12288
L_KVR = SLOT; L_RP0 = 3 * SLOT
MISC = PRIV + 4 * PRIV_SZ
M_G = MISC; M_GATE = MISC + 512; M_S = MISC + 2560; M_PARAM = M_S; L_KVX = M_S; M_DSK = MISC + 8960
C_R = 0; C_IMG = 2048
C_H, C_O = 0, 256
W_AGG = 0x10000; W_KVP = 0x40000; W_A2 = 0x200000
W_KVI = 0xA00000; W_QI = 0xC00000; W_WOI = 0xD00000
TSTR = 61440
LOG2E = 0x3fb8aa3b; EPS = f2u(1e-6); NEL = f2u(-1e-6 * 1.4426950408889634)
OOB = 0x7ffffff0

sX, sB, sRP, sC, sWS, sOUT, sDBG, sAG, sT = 48, 52, 56, 60, 64, 68, 72, 76, 80
sDSK = sB
def srd(b): return "s[%d:%d]" % (b, b + 3)
s_w, s_i, s_j, s_ct, s_rb, s_priv, s_wm0, s_bm0 = 3, 4, 5, 6, 7, 8, 9, 10
s_t0, s_t1, s_t2, s_t3, s_so = 11, 12, 13, 14, 15
s_cj, s_ci, s_rstep, s_rlds, s_w1, s_cct = 84, 85, 86, 87, 88, 89
s_am = 90; s_log2e, s_eps, s_a2p, s_spin, s_mask = 94, 95, 96, 97, 98
s_aggst, s_kvpst = 34, 35
s_kvi, s_aggld, s_aggld2, s_kvpld, s_woi, s_pt = 16, 17, 24, 25, 28, 29
s_qb, s_wob = 36, 37
s_rx, s_rbb, s_rk, s_rq = 0, 1, 2, 38
s_hs, s_hp, s_os, s_op = 39, 40, 41, 45
s_so2 = 31
s_lo2 = 46
s_rd = [18, 19, 20, 21]; s_rsig = 30
sR2 = 76
s_ao, s_ao2 = 22, 23

v_lane, v_n, v_q = 1, 2, 3
vXA = [4, 5]; vBA = [6, 7, 8, 9]; vGA = 10; vDX = [11, 12, 13, 14]; vDW = [15, 16, 17, 18, 19]
v_l16, v_col4 = 20, 21
vA8, vB8, vA128, vB128 = 22, 23, 24, 25
v_poll, v_one = 26, 27
vt = [28, 29, 30, 31]
v_nel = vGA
U0 = 32; KV0 = 80; Q0 = 192; S0 = 120; TE = 136; FB0 = 144; PR0 = 192
v_zero, v_crd, v_cwr = TE + 5, TE + 6, TE + 7
RB, RT, v_ct, v_pl = 73, 74, 75, 72
RV = KV0 + 16
vY, vI0, vI1, vI2, vWE = 76, 77, 78, 79, 9
RD1 = 236
EPSQ = 222; EPSX = 226; TT = 232
vC = [184, 185]; v_srow, v_htw, v_htr, v_hst, v_sad, v_kvw = 186, 187, 188, 189, 190, 191
vL4 = [v_l16, vA8, vB8, vA128]
v_o0, v_o1 = vDX[0], vDX[1]
vRX = [vDW[0], vDW[1], vDW[2], vDW[3]]
ACC = 32; AF = 112; NAF = 4; GB = 176; PQ = 240; OMG = 252
GA = 104; SEL = 216; GD = 224; v_l8 = vB128
AO = 104
WE = list(range(184, 256, 4)) + [0, 4]
WSLOT = [2, 1, 3, 0]
def vr(b, n=4): return "v[%d:%d]" % (b, b + n - 1)
def ar(b, n=4): return "a[%d:%d]" % (b, b + n - 1)
DPP = "row_ror:8 row_mask:0xf bank_mask:0xf"
M = "v_mfma_f32_16x16x32_bf16"
def grp(s, tag=None): return G(L()(s, tag=tag))

class Gen:
    def __init__(self, stamps=0, mapping="8x4", rot="ij", outflag="sc1", opt=None):
        self.stamps = stamps; self.mapping = mapping; self.rot = rot; self.outflag = outflag
        self.opt = opt or {}
        self.padat = ["-", "start", "karg2", "st0", "g19", "g39", "g59", "k9", "end"][self.opt.get("pad", 0)]
        self.slow = L(); self.nst = 2; self.nl = 0; self.names = ["rt0", "start"]
    def label(self, b):
        self.nl += 1
        return "L_%s_%d" % (b, self.nl)
    def stamp(self, a, name="", level=1, real=False):
        if self.padat == name: a.append(grp("s_memrealtime s[100:101]\ns_waitcnt lgkmcnt(0)"))
        if self.stamps and self.stamps >= level:
            k = self.nst; self.nst += 1
            assert k < 62
            self.names.append(name)
            a.append(grp("%s s[100:101]\ns_waitcnt lgkmcnt(0)\nv_writelane_b32 v0, s100, %d" % ("s_memrealtime" if real else "s_memtime", k)))
    def only(self, cond, body):
        lab = self.label("skip")
        g = L()
        g({"w0": "s_cmp_eq_u32 s%d, 0", "lo": "s_cmp_lt_u32 s%d, 2", "hi": "s_cmp_ge_u32 s%d, 2", "n3": "s_cmp_lt_u32 s%d, 3", "w3": "s_cmp_eq_u32 s%d, 3", "rp": "s_cmp_lt_u32 s%d, 640"}[cond] % (s_unit if cond == "rp" else s_w))
        g("s_cbranch_scc0 %s" % lab)
        for i in flat(body):
            i.opt = lab; g.append(i)
        g(lab + ":")
        return G(g)
    def spin_head(self, s, slow):
        s(slow + ":", raw=True)
        s("s_sub_u32 s%d, s%d, 1\ns_cmp_eq_u32 s%d, 0\ns_cbranch_scc1 L_end" % (s_spin, s_spin, s_spin), raw=True)
        if self.opt.get("sleep", 0): s("s_sleep %d" % self.opt["sleep"], raw=True)
    def poll_issue(self, srdb, soff, imm, tag):
        return L()("buffer_load_dword v%d, off, %s, %s offset:%d sc1" % (v_poll, srd(srdb), soff, imm), tag=tag)
    def poll_check(self, srdb, soff, imm, tag, target):
        slow = self.label("slow"); back = self.label("back")
        g = L()
        g.wv(tag)
        g("v_readfirstlane_b32 s%d, v%d" % (s_pt, v_poll))
        g("s_cmp_ge_u32 s%d, %d\ns_cbranch_scc0 %s" % (s_pt, target, slow))
        g(back + ":")
        s = self.slow
        self.spin_head(s, slow)
        s("buffer_load_dword v%d, off, %s, %s offset:%d sc1" % (v_poll, srd(srdb), soff, imm), raw=True)
        s("s_waitcnt vmcnt(0)\nv_readfirstlane_b32 s%d, v%d\ns_nop 1\ns_cmp_ge_u32 s%d, %d" % (s_pt, v_poll, s_pt, target), raw=True)
        s("s_cbranch_scc0 %s\ns_branch %s" % (slow, back), raw=True)
        return [G(g)]
    def signal(self, pairs, pre=None):
        b = L()
        if pre: b.extend(pre)
        b("s_mov_b64 exec, 1")
        for sreg, imm in pairs: b("buffer_atomic_add v%d, off, %s, s%d offset:%d sc1" % (v_one, srd(sWS), sreg, imm), tag="at")
        b("s_mov_b64 exec, -1")
        return [self.only("w0", b)]

    def rotso(self, a, base, c, lim, tag, add=None):
        a("s_add_u32 s%d, s%d, %d\ns_sub_u32 s%d, s%d, %d\ns_min_u32 s%d, s%d, s%d" % (s_so, base, c, s_so2, s_so, lim, s_so, s_so, s_so2), tag=tag)
        if add is not None: a("s_add_u32 s%d, s%d, s%d" % (s_so, s_so, add), tag=tag)
    def dma_x(self, sg):
        a = L(); tag = "x%d" % sg
        if sg >= 4: a.wl("xr%d" % (sg - 4))
        a("s_add_u32 m0, s%d, %d" % (s_priv, 4096 * (sg & 3)), tag=tag)
        if sg: self.rotso(a, s_rx, 128 * sg, 1280, tag)
        for ph in range(4):
            a("buffer_load_dwordx4 v%d, %s, s%d offen offset:%d lds" % (vDX[ph], srd(sX), s_so if sg else s_rx, 1024 * ph), tag=tag)
        return a
    def dma_w(self, st):
        a = L()
        slot = st % 4; tag = "w%d" % st
        if st < 5:
            a("s_add_u32 m0, s%d, %d" % (s_bm0, slot * SLOT), tag=tag)
            self.rotso(a, s_rbb, 256 * st, 1280, tag)
            for ph in range(4):
                a("buffer_load_dwordx4 v%d, %s, s%d offen offset:%d lds" % (vDW[ph], srd(sB), s_so, 1024 * ph), tag=tag)
            a("s_add_u32 m0, s%d, %d" % (s_bm0, slot * SLOT + 4096), tag=tag)
            a("buffer_load_dwordx4 v%d, %s, s%d offen lds" % (vDW[4], srd(sB), s_so), tag=tag)
            return a
        a("s_add_u32 m0, s%d, %d" % (s_wm0, slot * SLOT), tag=tag)
        if st < 10: self.rotso(a, s_rk, 20480 * (st - 5), 102400, tag, s_kvi)
        else: self.rotso(a, s_rq, 20480 * (st - 10), 51200, tag, s_qb)
        for ph in range(4):
            a("buffer_load_dwordx4 v%d, %s, s%d offen offset:%d sc1 lds" % (v_l16, srd(sWS), s_so, 1024 * ph), tag=tag)
        a("s_add_u32 m0, s%d, %d\ns_add_u32 s%d, s%d, 4096" % (s_wm0, slot * SLOT + 4096, s_so, s_so), tag=tag)
        a("buffer_load_dwordx4 v%d, %s, s%d offen sc1 lds" % (v_l16, srd(sWS), s_so), tag=tag)
        if st == 12: return [self.only("lo", a)]
        return a
    NCU = 6
    def c_un(self, u):
        return (u % 5, u // 5) if self.opt.get("crow", 0) else divmod(u, 5)
    def c_reg(self, kap, nt):
        u = (kap >> 1) * 5 + nt
        return (160 + 8 * u if u < 12 else 8 * (u - 12)) + 4 * (kap & 1)
    def dma_c(self, u):
        a = L(); sg, nt = divmod(u, 5); tag = "c%d" % u
        if u >= self.NCU: a.wl("cr%d" % (u - self.NCU))
        if u == 0: a.wl("xr9")
        a("s_add_u32 m0, s%d, %d" % (s_priv, 2048 * (u % self.NCU)), tag=tag)
        a("s_mov_b32 s%d, %d" % (s_so, nt * 20480 + 128 * sg), tag=tag)
        for h in range(2):
            a("buffer_load_dwordx4 v%d, %s, s%d offen offset:%d lds" % (vC[h], srd(sC), s_so, 1024 * h), tag=tag)
        return a
    def rd_c(self, u):
        a = L(); sg, nt = divmod(u, 5)
        a.wv("c%d" % u)
        for e in range(2):
            a("ds_read_b128 %s, v%d offset:%d" % (ar(self.c_reg(2 * sg + e, nt)), vXA[e], 2048 * (u % self.NCU)), tag="cr%d" % u)
        return a
    def rp_issue(self):
        b = L(); tag = "rp"
        for k in range(3):
            b("s_add_u32 m0, s%d, %d" % (s_rlds, 896 * k), tag=tag)
            b("buffer_load_dwordx4 v%d, %s, 0 offen offset:%d lds" % (RV, srd(sRP), 128 * k), tag=tag)
        b("s_add_u32 m0, s%d, 3072" % s_rlds, tag=tag)
        b("buffer_load_dwordx4 v%d, %s, 0 offen lds" % (RV + 1, srd(sR2)), tag=tag)
        return b
    def rp_read(self):
        b = L()
        b.wv("rp")
        for z in range(4):
            for e in range(2):
                b("ds_read_b64_tr_b16 %s, v%d offset:%d" % (vr(KV0 + 4 * z + 2 * e, 2), RT, 1024 * z + 512 * e), tag="rr")
        return b
    def rp_store(self):
        b = L()
        b.wl("rr")
        for z in range(4):
            b("buffer_store_dwordx4 %s, v%d, %s, s%d offen sc1" % (vr(KV0 + 4 * z), RV + 2 + z, srd(sWS), s_rd[z]), tag="rs")
        return b
    def rp_signal(self):
        b = L(flat(self.poll_check(sDBG, "0", 0, "clr", 1)))
        b("s_mov_b64 exec, 1\nbuffer_atomic_add v%d, off, %s, s%d sc1\ns_mov_b64 exec, -1" % (v_one, srd(sWS), s_rsig), tag="at")
        return [G(b)]
    def clears(self):
        b = L()
        b("buffer_store_dwordx4 %s, v%d, %s, s%d offen sc1" % (vr(S0), S0 + 4, srd(sWS), s_rstep), tag="rs")
        b("buffer_store_dword v%d, v%d, %s, s%d offen sc1" % (S0, v_col4, srd(sAG), s_aggst), tag="rs")
        return [self.only("lo", b)]
    def vpoll_issue(self, tag, raw=False):
        return L()("buffer_load_dword v%d, v%d, %s, 0 offen sc1" % (v_poll, v_pl, srd(sWS)), tag=tag, raw=raw)
    def vpoll_check(self, tag, target):
        slow = self.label("slow"); back = self.label("back")
        chk = "v_cmp_gt_u32 vcc, %d, v%d\n" % (target, v_poll)
        g = L(); g.wv(tag); g(chk + "s_cbranch_vccnz %s\n%s:" % (slow, back))
        s = self.slow
        self.spin_head(s, slow)
        s.extend(self.vpoll_issue(tag, raw=True))
        s("s_waitcnt vmcnt(0)\n" + chk + "s_cbranch_vccnz %s\ns_branch %s" % (slow, back), raw=True)
        return g
    def wsignal(self, tag, sreg):
        g = L(); g.wv(tag)
        g("s_mov_b64 exec, 1\nbuffer_atomic_add v%d, off, %s, s%d sc1\ns_mov_b64 exec, -1" % (v_one, srd(sWS), sreg), tag="at")
        return [G(g)]

    def stage_of(self, g):
        if g < 40: return g // 4, g % 4
        return 10 + (g - 40) // 8, (g - 40) % 8
    def fb(self, g): return FB0 + (20 if g < 40 else 12) * (g & 1)
    def frag_reads(self, g):
        a = L()
        st, kk = self.stage_of(g)
        slot = st % 4; hi = slot >= 2; off = (slot - 2 * hi) * SLOT
        fb = self.fb(g); tag = "f%d" % g
        if g < 20:
            adr = vBA[(kk & 1) + 2 * hi]
            for t in range(5):
                a("ds_read_b128 %s, v%d offset:%d" % (vr(fb + 4 * t), adr, off + 10240 * (kk >> 1) + 1024 * t), tag=tag + "_%d" % t)
        elif g < 40:
            o = off + 5120 * kk
            for t, (adr, to) in enumerate([(0, 0), (0, 384), (1, 0), (0, 640), (0, 1024)]):
                a("ds_read_b128 %s, v%d offset:%d" % (vr(fb + 4 * t), vBA[adr + 2 * hi], o + to), tag=tag + "_%d" % t)
        else:
            o = off + 5120 * (kk >> 1) + 640 * (kk & 1)
            a("ds_read_b128 %s, v%d offset:%d" % (vr(fb), vBA[2 * hi], o), tag=tag + "_0")
            y = L()("ds_read_b128 %s, v%d" % (vr(fb + 4), vY), tag=tag + "_1")
            if g < 59: y("v_add_u32 v%d, v%d, v%d" % (vY, vY, vI2 if g == 55 else vI1 if g & 1 else vI0))
            a.append(G(y))
            a("ds_read_b128 %s, v%d offset:%d" % (vr(fb + 8), vBA[2 * hi], o + 384), tag=tag + "_2")
        return a
    def x_reads(self, sg):
        a = L(); tag = "xr%d" % sg
        for e in range(2):
            for i in range(2):
                a("ds_read_b128 %s, v%d offset:%d" % (ar(8 * (2 * sg + e) + 4 * i), vXA[e], 4096 * (sg & 3) + 2048 * i), tag=tag)
        return a
    def mfmas(self, g):
        a = L()
        if g >= 60:
            k = g - 60
            if k < 8: lst = [(ml, k, nt) for ml in range(4) for nt in range(5)]
            else: lst = [(ml, kk, nt) for ml in (1, 2, 3, 0) for kk in (8, 9) for nt in range(5)][20 * (k - 8):20 * (k - 8) + 20]
            for ml, kk, nt in lst:
                dd = ACC + 20 * ml + 4 * nt
                a("%s %s, %s, %s, %s" % (M, vr(dd), vr(AF + 16 * (kk % NAF) + 4 * ml), ar(self.c_reg(kk, nt)), vr(dd) if (kk or ml == 0) else "0"))
            return a
        ks = g % 20; fb = self.fb(g)
        if g < 20:
            for t in range(5):
                for i in range(2):
                    d = U0 + 8 * t + 4 * i
                    a("%s %s, %s, %s, %s" % (M, vr(d), ar(8 * ks + 4 * i), vr(fb + 4 * t), vr(d) if ks else "0"))
        elif g < 40:
            for t in range(5):
                for i in range(2):
                    d = KV0 + 8 * t + 4 * i
                    c0 = [vr(EPSQ), vr(EPSQ), vr(EPSX), "0", "0"][t]
                    a("%s %s, %s, %s, %s" % (M, vr(d), ar(8 * ks + 4 * i), vr(fb + 4 * t), vr(d) if ks else c0))
        else:
            for t in range(3):
                for i in range(2):
                    d = Q0 + 8 * t + 4 * i
                    a("%s %s, %s, %s, %s" % (M, vr(d), vr(fb + 4 * t), ar(8 * ks + 4 * i), vr(d) if ks else vr(EPSQ)))
        return a
    def phi8(self, a, r, tmp):
        for k in range(8): a("v_fma_f32 v%d, v%d, s%d, v%d" % (tmp + k, r + k, s_log2e, v_nel))
        for k in range(8):
            a("v_exp_f32 v%d, v%d clamp" % (tmp + k, tmp + k))
            a("v_max_f32 v%d, s%d, v%d" % (r + k, s_eps, r + k))
        for k in range(8): a("v_add_f32 v%d, v%d, v%d" % (r + k, r + k, tmp + k))
    def mk(self, b, lo, add_reg, nrec):
        if add_reg is None: t = "s_mov_b32 s%d, s%d\ns_mov_b32 s%d, s%d\n" % (b, lo, b + 1, lo + 1)
        else: t = "s_add_u32 s%d, s%d, s%d\ns_addc_u32 s%d, s%d, 0\n" % (b, lo, add_reg, b + 1, lo + 1)
        if isinstance(nrec, int): t += "s_mov_b32 s%d, 0x%x\n" % (b + 2, nrec)
        elif nrec: t += nrec + "\n"
        return t + "s_mov_b32 s%d, 0x20000\n" % (b + 3)
    def prologue(self):
        a = L()
        t0, t1, t2, t3 = vt
        a("s_cmp_ge_u32 s2, 256\ns_cbranch_scc1 L_end")
        a("s_load_dwordx16 s[16:31], s[0:1], 0\ns_load_dwordx16 s[32:47], s[0:1], 64")
        if self.stamps: a("s_memrealtime s[98:99]\ns_memtime s[100:101]")
        if self.padat == "start": a("s_memrealtime s[100:101]")
        a("s_getpc_b64 s[%d:%d]\nL_pc0:" % (sT, sT + 1))
        a("s_mov_b32 s%d, L_codeend-L_pc0\ns_mov_b32 s%d, 0x20000" % (sT + 2, sT + 3))
        a("s_lshr_b32 s%d, s2, 3\ns_lshl_b32 s%d, s%d, 10" % (s_t1, s_t2, s_t1))
        a("v_lshrrev_b32 v%d, 5, v0\nv_lshlrev_b32 v%d, 7, v%d" % (t1, t1, t1))
        a("buffer_load_dword v255, v%d, %s, s%d offen" % (t1, srd(sT), s_t2), tag="pf")
        a("v_lshrrev_b32 v%d, 6, v0\nv_and_b32 v%d, 63, v0" % (t0, v_lane))
        a("v_readfirstlane_b32 s%d, v%d" % (s_w, t0))
        g_, o_, b_ = s_cj, s_ci, s_cct
        a("s_lshl_b32 s%d, s%d, 8\ns_add_u32 s%d, s%d, s2\ns_mul_i32 s%d, s%d, 6554\ns_lshr_b32 s%d, s%d, 16\ns_mul_i32 s%d, s%d, 10\ns_sub_u32 s%d, s%d, s%d"
          % (g_, s_w, g_, g_, o_, g_, o_, o_, s_t0, o_, b_, g_, s_t0))
        a("s_lshl_b32 s%d, s%d, 12\ns_add_u32 s%d, s%d, %d" % (s_rlds, s_w, s_rlds, s_rlds, L_RP0))
        a("s_mul_i32 s%d, s%d, %d\ns_mul_i32 s%d, s%d, 384\ns_add_u32 s%d, s%d, s%d" % (s_am, o_, 8 * 3840, s_t0, b_, s_am, s_am, s_t0))
        a("s_mul_i32 s%d, s%d, 205\ns_lshr_b32 s%d, s%d, 10\ns_mul_i32 s%d, s%d, 5\ns_sub_u32 s%d, s%d, s%d" % (s_t0, o_, s_t0, s_t0, s_t0, s_t0, s_t2, o_, s_t0))
        a("s_add_u32 s%d, s%d, s%d\ns_mul_i32 s%d, s%d, 5120\ns_lshl_b32 s%d, s%d, 7\ns_add_u32 s%d, s%d, s%d" % (s_t0, s_t0, o_, s_t0, s_t0, s_t3, b_, s_am + 1, s_t0, s_t3))
        a("s_cmp_lt_u32 s%d, 4\ns_cselect_b32 s%d, %d, 0" % (s_t2, s_t2, 20 * 1280))
        a("s_cmp_lt_u32 s%d, 800\ns_cselect_b32 s%d, %d, 0\ns_cselect_b32 s%d, %d, 0" % (g_, sRP + 2, 7 * 3840 + 384, sR2 + 2, 27 * 1280 + 128))
        a("s_mov_b32 s%d, 0x20000\ns_mov_b32 s%d, 0x20000" % (sRP + 3, sR2 + 3))
        a("v_lshrrev_b32 v%d, 3, v%d\nv_and_b32 v%d, 7, v%d\nv_lshlrev_b32 v%d, 4, v%d" % (t0, v_lane, t3, v_lane, t1, t3))
        a("v_mul_u32_u24 v%d, 3840, v%d\nv_add_u32 v%d, v%d, v%d\nv_mul_u32_u24 v%d, 1280, v%d\nv_add_u32 v%d, v%d, v%d" % (RV, t0, RV, RV, t1, vC[0], t0, RV + 1, vC[0], t1))
        a("v_lshrrev_b32 v%d, 2, v%d\nv_mad_u32_u24 v%d, v%d, s%d, v%d" % (t1, t0, RV + 1, t1, s_t2, RV + 1))
        a("s_or_b32 s%d, s2, s%d\ns_mov_b32 s%d, s2\ns_and_b32 s%d, s%d, 1\ns_and_b32 s%d, s2, 7" % (s_a2p, s_w, s_spin, s_w1, s_w, s_t0))
        a("s_waitcnt lgkmcnt(0)")
        if self.stamps:
            a("v_writelane_b32 v0, s98, 0\nv_writelane_b32 v0, s100, 1\nv_writelane_b32 v0, s2, 63")
            self.stamp(a, "karg", level=2)
        self.stamp(a, "karg2", level=9)
        lsk = self.label("noclear")
        a("s_cmp_lg_u32 s%d, 800\ns_cbranch_scc1 %s" % (g_, lsk))
        a("v_lshlrev_b32 v%d, 7, v%d\nv_mov_b32 v%d, 0\nv_add_u32 v%d, 8192, v%d\nv_add_u32 v%d, 16384, v%d" % (U0, v_lane, U0 + 1, U0 + 2, U0, U0 + 3, U0), raw=True)
        a("global_store_dword v%d, v%d, s[46:47] sc1\nglobal_store_dword v%d, v%d, s[46:47] sc1\nglobal_store_dword v%d, v%d, s[46:47] sc1" % (U0, U0 + 1, U0 + 2, U0 + 1, U0 + 3, U0 + 1), raw=True)
        a("v_mov_b32 v%d, 1\ns_waitcnt vmcnt(0)" % v_one, raw=True)
        a("global_store_dword v%d, v%d, s[44:45] sc1" % (U0 + 1, v_one), raw=True)
        a(lsk + ":")
        a("s_add_u32 s%d, s36, s%d\ns_addc_u32 s%d, s37, 0\ns_add_u32 s%d, s38, s%d\ns_addc_u32 s%d, s39, 0" % (sRP, s_am, sRP + 1, sR2, s_am + 1, sR2 + 1))
        a.extend(self.rp_issue())
        if self.mapping == "8x4":
            a("s_and_b32 s%d, s%d, 1\ns_lshl_b32 s%d, s%d, 3\ns_and_b32 s%d, s%d, 7\ns_add_u32 s%d, s%d, s%d" % (s_i, s_t0, s_i, s_i, s_t2, s_t1, s_i, s_i, s_t2))
            a("s_lshr_b32 s%d, s%d, 1\ns_lshl_b32 s%d, s%d, 2\ns_lshr_b32 s%d, s%d, 3\ns_add_u32 s%d, s%d, s%d" % (s_j, s_t0, s_j, s_j, s_t2, s_t1, s_j, s_j, s_t2))
        else:
            a("s_and_b32 s%d, s%d, 3\ns_lshl_b32 s%d, s%d, 2\ns_and_b32 s%d, s%d, 3\ns_add_u32 s%d, s%d, s%d" % (s_i, s_t0, s_i, s_i, s_t2, s_t1, s_i, s_i, s_t2))
            a("s_lshr_b32 s%d, s%d, 2\ns_lshl_b32 s%d, s%d, 3\ns_lshr_b32 s%d, s%d, 2\ns_add_u32 s%d, s%d, s%d" % (s_j, s_t0, s_j, s_j, s_t2, s_t1, s_j, s_j, s_t2))
        if self.rot == "none":
            a("s_mov_b32 s%d, 0" % s_t3)
        elif self.rot == "xcd":
            tab = [0, 2, 5, 7, 5, 7, 0, 2] if self.mapping == "4x8" else [0, 5, 2, 7, 5, 0, 7, 2]
            K = sum(v << (4 * k) for k, v in enumerate(tab))
            a("s_lshl_b32 s%d, s%d, 2\ns_lshr_b32 s%d, 0x%x, s%d\ns_and_b32 s%d, s%d, 15" % (s_t3, s_t0, s_t3, K, s_t3, s_t3, s_t3))
        elif self.rot.startswith("jx"):
            mj = int(self.rot[2:] or 1)
            sh, mu = (2, 3) if self.mapping == "4x8" else (3, 5)
            if self.mapping == "4x8": a("s_lshr_b32 s%d, s%d, 2\ns_mul_i32 s%d, s%d, 5\ns_lshr_b32 s%d, s%d, 1" % (s_t3, s_i, s_t3, s_t3, s_t3, s_t3))
            else: a("s_lshr_b32 s%d, s%d, 3\ns_mul_i32 s%d, s%d, 5" % (s_t3, s_i, s_t3, s_t3))
            a("s_mul_i32 s%d, s%d, %d\ns_add_u32 s%d, s%d, s%d\ns_mul_i32 s%d, s%d, 205\ns_lshr_b32 s%d, s%d, 11\ns_mul_i32 s%d, s%d, 10\ns_sub_u32 s%d, s%d, s%d"
              % (s_t2, s_j, mj, s_t3, s_t3, s_t2, s_t2, s_t3, s_t2, s_t2, s_t2, s_t2, s_t3, s_t3, s_t2))
        elif self.rot == "r4":
            a("s_xor_b32 s%d, s%d, s%d\ns_and_b32 s%d, s%d, 1\ns_mul_i32 s%d, s%d, 5" % (s_t3, s_i, s_j, s_t3, s_t3, s_t3, s_t3))
            a("s_lshr_b32 s%d, s%d, 2\ns_xor_b32 s%d, s%d, s%d\ns_and_b32 s%d, s%d, 1\ns_lshl_b32 s%d, s%d, 1\ns_add_u32 s%d, s%d, s%d" % (s_t2, s_t0, s_t2, s_t2, s_t0, s_t2, s_t2, s_t2, s_t2, s_t3, s_t3, s_t2))
        else:
            mul = {"ij": 1, "ij2": 2, "ij3": 3}[self.rot]
            a("s_add_u32 s%d, s%d, s%d\ns_mul_i32 s%d, s%d, %d\ns_mul_i32 s%d, s%d, 205\ns_lshr_b32 s%d, s%d, 11\ns_mul_i32 s%d, s%d, 10\ns_sub_u32 s%d, s%d, s%d"
              % (s_t3, s_i, s_j, s_t3, s_t3, mul, s_t2, s_t3, s_t2, s_t2, s_t2, s_t2, s_t3, s_t3, s_t2))
        a("v_lshrrev_b32 v%d, 4, v%d" % (v_q, v_lane))
        a("s_mul_i32 s%d, s%d, %d\ns_add_u32 s%d, s%d, %d" % (s_priv, s_w, PRIV_SZ, s_priv, s_priv, PRIV))
        a("v_xor_b32 v%d, v%d, v%d\nv_lshlrev_b32 v%d, 4, v%d" % (t1, t3, v_q, t1, t1))
        a("v_and_b32 v%d, 4, v%d\ns_lshl_b32 s%d, s%d, 5\nv_add3_u32 v%d, v%d, v%d, s%d" % (t2, t0, s_t2, s_w, t2, t2, t0, s_t2))
        a("v_mul_u32_u24 v%d, 1280, v%d\nv_add_u32 v%d, v%d, v%d" % (t2, t2, vDX[0], t2, t1))
        a("v_xor_b32 v%d, 64, v%d\nv_add_u32 v%d, %d, v%d" % (vDX[1], vDX[0], vDX[1], 16 * 1280 - 1024, vDX[1]))
        a("v_add_u32 v%d, %d, v%d\nv_add_u32 v%d, %d, v%d" % (vDX[2], 4 * 1280 - 2048, vDX[0], vDX[3], 4 * 1280 - 2048, vDX[1]))
        a("s_mul_i32 s%d, s%d, 163840\ns_lshl_b32 s%d, s%d, 7" % (s_t0, s_i, s_rx, s_t3)); a(self.mk(sX, 16, s_t0, 163840))
        a.extend(self.dma_x(0))
        a("s_cmp_lt_u32 s%d, 2\ns_cselect_b32 s22, s22, s24\ns_cselect_b32 s23, s23, s25\ns_cselect_b32 s26, s26, s28\ns_cselect_b32 s27, s27, s29" % s_w)
        a("s_mul_i32 s%d, s%d, 51200" % (s_t1, s_j)); a(self.mk(sB, 22, s_t1, 51200))
        a("s_mul_i32 s%d, s%d, 10240\ns_lshr_b32 s%d, s%d, 1\ns_mul_i32 s%d, s%d, 5120\ns_add_u32 s%d, s%d, s%d"
          % (s_bm0, s_w1, s_t1, s_w, s_t2, s_t1, s_bm0, s_bm0, s_t2))
        a("s_lshl_b32 s%d, s%d, 6\ns_lshl_b32 s%d, s%d, 7\ns_add_u32 s%d, s%d, s%d" % (s_t1, s_t1, s_t2, s_w1, s_rbb, s_rx, s_t2))
        a("v_add_u32 v%d, v%d, v%d\nv_xor_b32 v%d, s%d, v%d" % (vC[0], vC[0], t1, vDW[0], s_t1, vC[0]))
        for t in range(1, 5):
            a("v_add_u32 v%d, %d, v%d" % (vDW[t], 10240 * t - (1024 * t if t < 4 else 0), vDW[0]))
        a("s_mul_i32 s%d, s%d, 40\nv_min_u32 v%d, 39, v%d\nv_add_lshl_u32 v%d, v%d, s%d, 1" % (s_t1, s_j, TT + 9, v_lane, t1, TT + 9, s_t1))
        a("global_load_ushort v%d, v%d, s[18:19]" % (TT, t1), tag="par")
        a("global_load_ushort v%d, v%d, s[20:21]" % (TT + 1, t1), tag="par")
        a("global_load_ushort v%d, v%d, s[30:31]" % (TT + 2, t1), tag="par")
        order = self.opt.get("order", 1)
        if order == 0: a.extend(self.dma_w(0))
        self.stamp(a, "iss0", level=2)
        c = a
        c("v_lshlrev_b32 v%d, 4, v%d\nv_and_b32 v%d, 15, v%d" % (v_l16, v_lane, v_n, v_lane))
        c(self.mk(sWS, 46, None, 0x10000000 if self.stamps else 0x1000000))
        c(self.mk(sDBG, 44, None, 256))
        c("s_and_b32 s%d, s%d, 7\ns_lshr_b32 s%d, s%d, 3\ns_mul_i32 s%d, s%d, 5120" % (s_ct, s_j, s_rb, s_j, s_wm0, s_w))
        kvo, qo = s_qb, s_wob
        c("s_lshl_b32 s%d, s%d, 1\ns_and_b32 s%d, s%d, 6\ns_bfe_u32 s%d, s%d, 0x10002\ns_or_b32 s%d, s%d, s%d\ns_andn2_b32 s%d, s%d, 7\ns_or_b32 s%d, s%d, s%d"
          % (s_t0, o_, s_t0, s_t0, s_t1, o_, s_t0, s_t0, s_t1, s_t1, o_, s_t0, s_t0, s_t1))
        c("s_mul_i32 s%d, s%d, 640\ns_add_u32 s%d, s%d, %d\ns_mul_i32 s%d, s%d, 1280\ns_add_u32 s%d, s%d, %d\ns_add_u32 s%d, s%d, %d"
          % (qo, s_t0, qo, qo, W_QI, kvo, o_, s_rd[3], kvo, W_WOI, kvo, kvo, W_KVI - 640))
        c("s_mul_i32 s%d, s%d, 3" % (s_t2, b_))
        for z in range(4):
            d_ = RV + 2 + z
            if z < 3:
                c("s_add_u32 s%d, s%d, %d\ns_mul_i32 s%d, s%d, 26\ns_lshr_b32 s%d, s%d, 8\ns_mul_i32 s%d, s%d, 640\ns_lshl_b32 s%d, s%d, 6\ns_sub_u32 s%d, s%d, s%d"
                  % (s_t0, s_t2, z, s_t1, s_t0, s_t1, s_t1, s_t1, s_t1, s_t0, s_t0, s_t0, s_t0, s_t1))
                c("s_add_u32 s%d, s%d, s%d\ns_cmp_eq_u32 s%d, 0\ns_cselect_b32 s%d, s%d, s%d\ns_cselect_b32 s%d, 0, 51200\ns_add_u32 s%d, s%d, %d"
                  % (s_rd[z], kvo, s_t1, s_t1, s_rd[z], qo, s_rd[z], s_t1, s_t1, s_t1, 51200 - 640))
                c("v_add_u32 v%d, s%d, v%d\nv_mul_u32_u24 v%d, 1639, v%d\nv_lshrrev_b32 v%d, 16, v%d\nv_lshlrev_b32 v%d, 4, v%d\nv_mad_u32_u24 v%d, v%d, s%d, v%d"
                  % (t0, s_t0, v_lane, t1, t0, t1, t1, t0, t0, d_, t1, s_t1, t0))
            else:
                c("s_lshl_b32 s%d, s%d, 6\ns_mov_b32 s%d, %d" % (s_t0, b_, s_t1, 102400 - 1280))
                c("v_add_u32 v%d, s%d, v%d\nv_mul_u32_u24 v%d, 1639, v%d\nv_lshrrev_b32 v%d, 17, v%d\nv_lshlrev_b32 v%d, 4, v%d\nv_mad_u32_u24 v%d, v%d, s%d, v%d"
                  % (t0, s_t0, v_lane, t1, t0, t1, t1, t0, t0, d_, t1, s_t1, t0))
        c("s_lshr_b32 s%d, s%d, 1\ns_lshl_b32 s%d, s%d, 7\ns_add_u32 s%d, s%d, %d" % (s_rsig, o_, s_rsig, s_rsig, s_rsig, s_rsig, C_IMG))
        c("s_cmp_lt_u32 s%d, 800" % g_)
        for r in s_rd + [s_rsig]: c("s_cselect_b32 s%d, s%d, 0x70000000" % (r, r))
        c("v_and_b32 v%d, 3, v%d\nv_lshl_add_u32 v%d, v%d, 2, v%d" % (t0, v_lane, t0, v_q, t0))
        c("v_bfe_u32 v%d, v%d, 2, 2\nv_lshlrev_b32 v%d, 7, v%d\nv_lshl_add_u32 v%d, v%d, 3, v%d" % (t1, v_lane, t1, t1, t0, t0, t1))
        c("v_add_u32 v%d, s%d, v%d\nv_mov_b32 v%d, 1" % (RT, s_rlds, t0, v_one))
        if order == 1: a.extend(self.dma_w(0))
        self.rsl = self.opt.get("rsl", 1)
        if not self.rsl:
            a.extend(self.rp_read()); a.extend(self.rp_store())
        c("v_lshrrev_b32 v%d, 1, v%d\nv_xor_b32 v%d, v%d, v%d\nv_lshlrev_b32 v%d, 4, v%d" % (t0, v_n, t0, t0, v_q, t0, t0))
        c("v_lshl_add_u32 v%d, v%d, 7, v%d" % (t1, v_n, t0))
        c("v_add_u32 v%d, s%d, v%d\nv_xor_b32 v%d, 64, v%d" % (vXA[0], s_priv, t1, vXA[1], vXA[0]))
        c("v_lshrrev_b32 v%d, 3, v%d\nv_mul_u32_u24 v%d, %d, v%d" % (t3, v_n, t3, 5120 - 1024, t3))
        c("v_add_u32 v%d, v%d, v%d\nv_xor_b32 v%d, 64, v%d" % (vBA[0], t1, t3, vBA[1], vBA[0]))
        c("v_add_u32 v%d, %d, v%d\nv_add_u32 v%d, %d, v%d" % (vBA[2], 2 * SLOT, vBA[0], vBA[3], 2 * SLOT, vBA[1]))
        c("s_lshl_b32 s%d, s%d, 1\ns_add_u32 s%d, s%d, s%d\ns_mul_i32 s%d, s%d, 1600\ns_mov_b32 s%d, 0x40000" % (s_t2, s_spin, s_t2, s_t2, s_w1, s_t2, s_t2, s_spin))
        c("v_min_u32 v%d, 12, v%d\nv_lshl_add_u32 v%d, v%d, 7, s%d" % (t0, v_lane, v_ct, t0, s_t2))
        c(self.mk(sT, 26, None, 819200))
        c = late2 = L()
        c("s_mov_b32 s%d, 0x%x\ns_mov_b32 s%d, 0x%x" % (s_log2e, LOG2E, s_eps, EPS))
        c("v_xor_b32 v%d, 64, v%d\nv_add_u32 v%d, %d, v%d" % (vC[1], vC[0], vC[1], 8 * 1280 - 1024, vC[1]))
        c("s_mul_i32 s%d, s%d, 51200\ns_add_u32 s%d, s%d, %d\ns_mul_i32 s%d, s%d, 102400\ns_add_u32 s%d, s%d, %d" % (s_qb, s_j, s_qb, s_qb, W_QI, s_wob, s_ct, s_wob, s_wob, W_WOI))
        c("s_mul_i32 s%d, s%d, 102400\ns_add_u32 s%d, s%d, %d" % (s_kvi, s_j, s_kvi, s_kvi, W_KVI))
        c("v_lshlrev_b32 v%d, 7, v%d\nv_add_u32 v%d, %d, v%d" % (v_pl, TT + 9, v_pl, C_IMG, v_pl))
        c("s_lshl_b32 s%d, s%d, 6\nv_add_u32 v%d, s%d, v%d\nv_add_u32 v%d, 64, v%d\nv_min_u32 v%d, v%d, v%d\nv_lshlrev_b32 v%d, 2, v%d" % (s_t2, s_w1, t2, s_t2, v_lane, t1, v_n, t2, t2, t1, v_col4, t2))
        c("s_lshl_b32 s%d, s%d, 13\ns_add_u32 s%d, s%d, %d" % (s_t1, s_j, s_t1, s_t1, W_AGG)); c.append(grp(self.mk(sAG, 46, s_t1, 8192)))
        c("s_sub_u32 s%d, 15, s%d\ns_lshl_b32 s%d, s%d, 9" % (s_aggst, s_i, s_aggst, s_aggst))
        c("s_lshl_b32 s%d, s%d, 2\ns_add_u32 s%d, s%d, s%d\ns_lshl_b32 s%d, s%d, 13\ns_add_u32 s%d, s%d, %d" % (s_kvpld, s_j, s_kvpld, s_kvpld, s_w, s_kvpld, s_kvpld, s_kvpld, s_kvpld, W_KVP))
        c("s_lshl_b32 s%d, s%d, 9\ns_add_u32 s%d, s%d, s%d" % (s_kvpst, s_i, s_kvpst, s_kvpst, s_kvpld))
        for k in range(4): c("v_mov_b32 v%d, -1" % (S0 + k))
        c("v_and_b32 v%d, 32, v%d\nv_mul_u32_u24 v%d, 240, v%d\nv_add_u32 v%d, v%d, v%d" % (S0 + 4, v_lane, S0 + 4, S0 + 4, S0 + 4, S0 + 4, v_l16))
        c("s_lshl_b32 s%d, s%d, 13\ns_add_u32 s%d, s%d, s%d" % (s_rstep, s_w, s_rstep, s_rstep, s_kvpst))
        c("s_lshl_b32 s%d, s%d, 7" % (s_cj, s_j))
        s2 = list(self.setup2())
        ip = [k for k, x in enumerate(s2) if not isinstance(x, G) and x.kind == "waitvm"][0]
        B1 = list(late2) + s2[:ip] + list(self.late_addr())
        self.partC = s2[ip:] + list(self.setup3())
        nb = len(B1) * self.opt.get("pb", 30) // 100
        a.extend(flat(B1[:nb])); self.partB = B1[nb:]
        self.stamp(a, "setup", level=2)
        self.first = L()
        if self.opt.get("ct", 0) == 0: self.first("buffer_load_dword v255, v%d, %s, 0 offen" % (v_ct, srd(sT)), tag="ct")
        self.first.extend(self.dma_x(1))
        self.pc = list(self.poll_issue(sDBG, "0", 0, "clr"))
        self.second = list(self.dma_x(2)) + list(self.dma_w(1)) + list(self.dma_x(3))
        return a

    def setup2(self):
        a = L()
        t0 = vt[0]
        a.append(grp("s_mul_i32 s%d, s%d, 640\ns_mul_i32 s%d, s%d, 102400\ns_add_u32 s%d, s%d, s%d\n" % (s_t2, s_w1, s_t1, s_ct, s_t1, s_t1, s_t2)
                     + self.mk(sC, 26, s_t1, "s_sub_u32 s%d, 102400, s%d" % (sC + 2, s_t2))))
        a("s_lshl_b32 s%d, s%d, 1\ns_add_u32 s%d, s%d, s%d\ns_mul_i32 s%d, s%d, 163840\ns_mul_i32 s%d, s%d, 320\ns_add_u32 s%d, s%d, s%d\n"
          % (s_t1, s_i, s_t1, s_t1, s_rb, s_t1, s_t1, s_t2, s_ct, s_t1, s_t1, s_t2))
        a.append(grp(self.mk(sOUT, 42, s_t1, "s_sub_u32 s%d, 163840, s%d" % (sOUT + 2, s_t2))))
        a("s_lshr_b32 s%d, s%d, 1\ns_mul_i32 s%d, s%d, 10240\ns_mul_i32 s%d, s%d, 80\ns_add_u32 s%d, s%d, s%d" % (s_t2, s_w, s_t2, s_t2, s_rk, s_rx, s_rk, s_rk, s_t2))
        a("s_mul_i32 s%d, s%d, 40\ns_add_u32 s%d, s%d, s%d" % (s_rq, s_rx, s_rq, s_rq, s_wm0))
        a("s_add_u32 s%d, s%d, 512\ns_add_u32 s%d, s%d, 4608" % (s_aggld, s_aggst, s_aggld2, s_aggst))
        a.append(grp("s_cmp_lt_u32 s%d, 2\ns_cselect_b32 s40, s40, s32\ns_cselect_b32 s41, s41, s33\n" % s_w + self.mk(sRP, 40, None, 1280)))
        a("s_lshl_b32 s%d, s%d, 10\ns_add_u32 s%d, s%d, s%d\ns_mul_i32 s%d, s%d, 160\ns_add_u32 s%d, s%d, %d" % (s_t2, s_w1, s_t1, s_t2, s_rx, s_t0, s_ct, s_rlds, s_t2, M_GATE))
        a.append(grp("s_add_u32 s%d, s%d, %d\ns_cmp_lt_u32 s%d, 2\ns_cselect_b32 s%d, s%d, s%d\ns_cselect_b32 s%d, s%d, s%d" % (s_t2, s_t2, M_DSK, s_w, s_t1, s_t1, s_t0, s_rlds, s_rlds, s_t2)))
        a("v_add_u32 v%d, s%d, v%d" % (RB, s_t1, v_l16))
        a("v_subrev_u32 v%d, 1280, v%d\nv_min_u32 v%d, v%d, v%d" % (t0, RB, RB, RB, t0))
        a("s_lshl_b32 s%d, s%d, 10\ns_add_u32 s%d, s%d, 8192" % (s_ci, s_i, s_ci, s_ci))
        a("s_lshr_b32 s%d, s%d, 1\ns_lshl_b32 s%d, s%d, 7\ns_add_u32 s%d, s%d, s%d" % (s_t2, s_w, s_t2, s_t2, s_hs, s_ci, s_t2))
        a("s_lshl_b32 s%d, s%d, 7\ns_add_u32 s%d, s%d, s%d" % (s_t1, s_rb, s_hp, s_ci, s_t1))
        a("s_add_u32 s%d, s%d, s%d\ns_add_u32 s%d, s%d, s%d\ns_add_u32 s%d, s%d, %d" % (s_op, s_hp, s_t1, s_op, s_op, s_t2, s_op, s_op, C_O))
        a("s_lshl_b32 s%d, s%d, 7\ns_add_u32 s%d, s%d, s%d\ns_add_u32 s%d, s%d, %d" % (s_t2, s_w, s_os, s_ci, s_t2, s_os, s_os, C_O))
        a("s_add_u32 s%d, s%d, s%d" % (s_woi, s_wob, s_wm0))
        a("s_mul_i32 s%d, s%d, 5120\ns_add_u32 s%d, s%d, s%d" % (s_t2, s_w1, s_kvi, s_kvi, s_t2))
        a("s_lshl_b32 s%d, s%d, 2\ns_add_u32 s%d, s%d, s%d\ns_mul_i32 s%d, s%d, %d\ns_mul_i32 s%d, s%d, 1280\ns_add_u32 s%d, s%d, s%d\ns_add_u32 s%d, s%d, %d"
          % (s_t2, s_i, s_t2, s_t2, s_w, s_t2, s_t2, 2 * TSTR, s_t1, s_j, s_t2, s_t2, s_t1, s_a2p, s_t2, W_A2))
        a.append(grp("s_cmp_lt_u32 s%d, 2\ns_cselect_b64 s[%d:%d], -1, 0" % (s_w, s_lo2, s_lo2 + 1)))
        a.wv("par")
        Lr, Li, dt, e1, c1, s1, x0, x1 = [TT + k for k in range(8)]
        pa, pb, pc1, pc2, zr, rv, a8, b8, a128, b128 = [TT + 10 + k for k in range(10)]
        a("v_lshlrev_b32 v%d, 16, v%d\nv_lshlrev_b32 v%d, 16, v%d\nv_lshlrev_b32 v%d, 16, v%d" % (Lr, Lr, Li, Li, dt, dt))
        a("v_mul_f32 v%d, s%d, v%d\nv_exp_f32 v%d, v%d" % (dt, s_log2e, dt, dt, dt))
        a("v_mul_u32_u24 v%d, 48, v%d\nv_add_u32 v%d, %d, v%d" % (t0, TT + 9, t0, M_PARAM, t0))
        a("v_cvt_pk_bf16_f32 v%d, v%d, v%d\nv_lshlrev_b32 v%d, 16, v%d" % (dt, dt, dt, dt, dt))
        a("v_mul_f32 v%d, v%d, v%d\nv_mul_f32 v%d, s%d, v%d" % (zr, dt, Lr, zr, s_log2e, zr))
        a("v_mul_f32 v%d, v%d, v%d\nv_mul_f32 v%d, 0.15915494, v%d" % (rv, dt, Li, rv, rv))
        def power(k, da, db):
            if k == 1:
                a("v_exp_f32 v%d, v%d\nv_fract_f32 v%d, v%d" % (e1, zr, x0, rv))
            else:
                a("v_mul_f32 v%d, 0x%x, v%d\nv_exp_f32 v%d, v%d" % (e1, f2u(float(k)), zr, e1, e1))
                a("v_mul_f32 v%d, 0x%x, v%d\nv_fract_f32 v%d, v%d" % (x0, f2u(float(k)), rv, x0, x0))
            a("v_cos_f32 v%d, v%d\nv_sin_f32 v%d, v%d" % (c1, x0, s1, x0))
            a("v_mul_f32 v%d, v%d, v%d\nv_mul_f32 v%d, v%d, v%d" % (da, e1, c1, db, e1, s1))
        power(8, a8, b8); power(128, a128, b128); power(1, pa, pb)
        a("v_add_f32 v%d, -1.0, v%d" % (x0, pa))
        a("v_mul_f32 v%d, v%d, v%d\nv_fmac_f32 v%d, v%d, v%d\nv_rcp_f32 v%d, v%d" % (x1, Lr, Lr, x1, Li, Li, x1, x1))
        a("v_mul_f32 v%d, v%d, v%d\nv_fmac_f32 v%d, v%d, v%d" % (pc1, x0, Lr, pc1, pb, Li))
        a("v_mul_f32 v%d, v%d, v%d\nv_fma_f32 v%d, -v%d, v%d, v%d" % (pc2, x0, Li, pc2, pb, Lr, pc2))
        a("v_add_f32 v%d, v%d, v%d" % (x1, x1, x1))
        a("v_mul_f32 v%d, v%d, v%d\nv_mul_f32 v%d, v%d, v%d" % (pc1, pc1, x1, pc2, pc2, x1))
        a("ds_write_b128 v%d, %s\nds_write_b128 v%d, %s offset:16\nds_write_b64 v%d, %s offset:32" % (t0, vr(pa), t0, vr(zr), t0, vr(a128, 2)), tag="pw")
        return a
    def setup3(self):
        a = L()
        t0, kf, sg, t3 = vt
        a("v_and_b32 v%d, 7, v%d\nv_mul_u32_u24 v%d, 48, v%d\nv_add_u32 v%d, %d, v%d" % (t0, v_n, t0, t0, t0, M_PARAM, t0))
        for t in range(5):
            a("ds_read_b128 %s, v%d offset:%d" % (vr(PR0 + 6 * t), t0, 384 * t), tag="pr")
            a("ds_read_b64 %s, v%d offset:%d" % (vr(PR0 + 6 * t + 4, 2), t0, 384 * t + 16), tag="pr")
        a("v_lshrrev_b32 v%d, 6, v%d\nv_mul_u32_u24 v%d, 384, v%d\nv_add_u32 v%d, v%d, v%d" % (t3, v_col4, t3, t3, t3, t3, t0))
        a("ds_read_b64 %s, v%d offset:24\nds_read_b64 %s, v%d offset:32" % (vr(vA8, 2), t3, vr(vA128, 2), t3), tag="pr")
        a.append(grp("s_lshl_b32 s%d, s%d, 5\nv_lshl_add_u32 v%d, v%d, 3, s%d" % (s_t0, s_w, kf, v_q, s_t0)))
        a("v_cvt_f32_u32 v%d, v%d" % (kf, kf))
        a("v_and_b32 v%d, 8, v%d\nv_lshlrev_b32 v%d, 28, v%d\nv_xor_b32 v%d, v%d, v%d" % (sg, v_n, sg, sg, t3, sg, kf))
        for k in range(4): a("v_mov_b32 v%d, s%d" % (EPSQ + k, s_eps))
        a("v_cmp_gt_u32 vcc, 8, v%d" % v_n)
        for k in range(4): a("v_cndmask_b32 v%d, 0, v%d, vcc" % (EPSX + k, EPSQ))
        a.wl("pr")
        R = range(5)
        z = lambda t: PR0 + 6 * t + 4
        for t in R: a("v_mul_f32 v%d, v%d, v%d\nv_mul_f32 v%d, v%d, v%d" % (z(t), z(t), kf, z(t) + 1, z(t) + 1, t3))
        for t in R: a("v_exp_f32 v%d, v%d\nv_fract_f32 v%d, v%d" % (z(t), z(t), z(t) + 1, z(t) + 1))
        for t in R: a("v_cos_f32 v%d, v%d\nv_sin_f32 v%d, v%d" % (TT + 2 * t, z(t) + 1, TT + 2 * t + 1, z(t) + 1))
        for t in R: a("v_xor_b32 v%d, v%d, v%d\nv_xor_b32 v%d, v%d, v%d" % (z(t) - 3, z(t) - 3, sg, z(t) - 2, z(t) - 2, sg))
        for t in R: a("v_mul_f32 v%d, v%d, v%d\nv_mul_f32 v%d, v%d, v%d" % (TT + 2 * t, TT + 2 * t, z(t), TT + 2 * t + 1, TT + 2 * t + 1, z(t)))
        for t in R: a("v_mul_f32 v%d, v%d, v%d\nv_mul_f32 v%d, v%d, v%d" % (z(t), z(t) - 2, TT + 2 * t, z(t) + 1, z(t) - 1, TT + 2 * t))
        for t in R: a("v_fmac_f32 v%d, v%d, v%d\nv_fma_f32 v%d, -v%d, v%d, v%d" % (z(t), z(t) - 1, TT + 2 * t + 1, z(t) + 1, z(t) - 2, TT + 2 * t + 1, z(t) + 1))
        a("v_xor_b32 v%d, v%d, v%d\nv_xor_b32 v%d, v%d, v%d" % (vB8, vB8, sg, vB128, vB128, sg))
        return a
    def calc_kvaddr(self):
        a = L(); t0 = vt[0]
        a("v_mul_u32_u24 v%d, 1280, v%d\nv_lshl_add_u32 v%d, v%d, 4, v%d" % (vBA[0], v_q, vBA[0], v_n, vBA[0]))
        a("v_and_b32 v%d, 8, v%d\nv_lshl_add_u32 v%d, v%d, 6, v%d\nv_add_u32 v%d, 256, v%d" % (t0, v_n, vBA[1], t0, vBA[0], vBA[1], vBA[1]))
        a("v_add_u32 v%d, %d, v%d\nv_add_u32 v%d, %d, v%d" % (vBA[2], 2 * SLOT, vBA[0], vBA[3], 2 * SLOT, vBA[1]))
        return a
    def late_addr(self):
        a = L()
        t0, t1, t2, t3 = vt
        a("v_mul_u32_u24 v%d, 80, v%d\nv_add_u32 v%d, %d, v%d" % (t0, v_n, v_crd, M_S + 8, t0))
        a("v_lshl_add_u32 v%d, v%d, 2, v%d" % (t0, v_q, t0))
        a("s_lshl_b32 s%d, s%d, 4\ns_add_u32 s%d, s%d, %d\nv_add_u32 v%d, s%d, v%d" % (s_t0, s_w, s_t0, s_t0, M_S + 12, v_sad, s_t0, t0))
        a("v_mul_u32_u24 v%d, 20, v%d\nv_add_u32 v%d, %d, v%d" % (v_srow, v_col4, v_srow, M_S, v_srow))
        a.append(grp("s_cmp_lt_u32 s%d, 2\ns_cselect_b32 s%d, 8, 4\nv_add_u32 v%d, s%d, v%d" % (s_w, s_t0, v_cwr, s_t0, v_srow)))
        a("v_and_b32 v%d, 3, v%d\nv_lshlrev_b32 v%d, 8, v%d" % (t1, v_lane, t1, t1))
        a("v_and_b32 v%d, 44, v%d\nv_lshl_add_u32 v%d, v%d, 2, v%d" % (t2, v_lane, t1, t2, t1))
        a("v_and_b32 v%d, 16, v%d\nv_lshrrev_b32 v%d, 1, v%d" % (t2, v_lane, t2, t2))
        a("s_add_u32 s%d, s%d, %d\nv_add_u32 v%d, s%d, v%d\nv_add3_u32 v%d, v%d, v%d, s%d" % (s_t0, s_priv, P_HT, v_htw, s_t0, v_l16, v_htr, t1, t2, s_t0))
        a("v_and_b32 v%d, 1, v%d\nv_mul_u32_u24 v%d, %d, v%d" % (t2, v_q, t2, TSTR, t2))
        a("v_lshrrev_b32 v%d, 1, v%d\nv_mul_u32_u24 v%d, 20480, v%d" % (t3, v_q, t3, t3))
        a("v_lshlrev_b32 v%d, 4, v%d\nv_add3_u32 v%d, v%d, v%d, v%d" % (t0, v_n, v_hst, t2, t3, t0))
        a("s_lshl_b32 s%d, s%d, 12\ns_add_u32 s%d, s%d, %d\nv_add_u32 v%d, s%d, v%d" % (s_t0, s_w, s_t0, s_t0, L_KVR, v_kvw, s_t0, v_l16))
        a("v_mov_b32 v%d, 0\nv_mov_b32 v%d, 0x%x" % (v_zero, v_nel, NEL))
        a("s_lshl_b32 s%d, s%d, 1\ns_add_u32 s%d, s%d, s%d\ns_mul_i32 s%d, s%d, %d\ns_add_u32 s%d, s%d, %d" % (s_t1, s_i, s_t1, s_t1, s_rb, s_t1, s_t1, 4 * TSTR, s_t1, s_t1, W_A2))
        a("s_mul_i32 s%d, s%d, %d\ns_add_u32 s%d, s%d, s%d\ns_add_u32 s%d, s%d, 40960\ns_add_u32 s%d, s%d, 16384" % (s_t2, s_w, TSTR, s_ao, s_t1, s_t2, s_ao, s_ao, s_ao2, s_ao))
        a("s_mul_i32 s%d, s%d, 10240\ns_add_u32 s%d, s%d, s%d" % (s_t2, s_w, s_t1, s_t1, s_t2))
        for ml in range(4):
            a("s_add_u32 s%d, s%d, %d\ns_and_b32 s%d, s%d, 3\ns_mul_i32 s%d, s%d, %d\ns_add_u32 s%d, s%d, s%d" % (s_t2, s_w, ml, s_t2, s_t2, s_t2, s_t2, TSTR, s_am + ml, s_t2, s_t1))
        a("v_cmp_gt_u32 vcc, 8, v%d" % v_n)
        a("v_mul_u32_u24 v%d, 1280, v%d\nv_add3_u32 v%d, v%d, v%d, v%d" % (t1, v_q, t1, t1, t0, v_zero))
        a("v_add_u32 v%d, %d, v%d\nv_lshlrev_b32 v%d, 4, v%d\nv_add_u32 v%d, %d, v%d" % (t1, 2 * SLOT + 256, t1, t2, v_q, t2, M_GATE, t2))
        a("v_cndmask_b32 v%d, v%d, v%d, vcc" % (vY, t2, t1))
        for r, val in ((vI0, 640), (vI1, 4480), (vI2, (4480 - 4 * SLOT) & 0xffffffff)):
            a("v_mov_b32 v%d, 0x%x\nv_cndmask_b32 v%d, 64, v%d, vcc" % (t1, val, r, t1))
        return a

    def pass1(self):
        a = L()
        prev = [U0 + 8 * t for t in range(5)]
        for j8 in range(1, 8):
            cur = [TT + 5 * (j8 & 1) + t for t in range(5)]
            for t in range(5): a("v_fma_f32 v%d, v%d, v%d, v%d" % (cur[t], PR0 + 6 * t, prev[t], U0 + 8 * t + j8))
            for t in range(5): a("v_fmac_f32_dpp v%d, -v%d, v%d %s" % (cur[t], prev[t], PR0 + 6 * t + 1, DPP))
            prev = cur
        for t in range(5): a("ds_write_b32 v%d, v%d offset:%d" % (v_sad, prev[t], 4 + 1280 * t), tag="sw")
        return a
    def sread(self):
        a = L()
        for k in range(4): a("ds_read_b128 %s, v%d offset:%d" % (vr(S0 + 4 * k), v_srow, 16 + 16 * k), tag="sr")
        return a
    def horner1(self):
        a = L()
        a.wl("sr")
        for k in range(1, 16):
            a.append(grp("v_fmac_f32 v%d, v%d, v%d\nv_fmac_f32_dpp v%d, -v%d, v%d %s" % (S0 + k, vA8, S0 + k - 1, S0 + k, S0 + k - 1, vB8, DPP)))
        a("v_min_u32 v%d, -2, v%d" % (S0 + 15, S0 + 15))
        a("buffer_store_dword v%d, v%d, %s, s%d offen sc1" % (S0 + 15, v_col4, srd(sAG), s_aggst), tag="aggst")
        return a
    def eback(self):
        b = L()
        b("ds_write_b32 v%d, v%d offset:12" % (v_srow, v_zero), tag="ew")
        for k in range(4): b("ds_write_b128 v%d, %s offset:%d" % (v_srow, vr(S0 + 4 * k), 16 + 16 * k), tag="ew")
        return [self.only("hi", b)]
    def coef(self):
        a = L()
        for j8 in range(8):
            for t in range(5): a("v_mul_f32_dpp v%d, v%d, v%d %s" % (TT + 16 + t, U0 + 8 * t + j8, PR0 + 6 * t + 3, DPP))
            for t in range(5):
                u = U0 + 8 * t + j8
                a("v_fma_f32 v%d, v%d, v%d, v%d" % (u, u, PR0 + 6 * t + 2, TT + 16 + t))
        return a
    def te_rd(self):
        a = L()
        for t in range(5): a("ds_read_b32 v%d, v%d offset:%d" % (TE + t, v_sad, 1280 * t), tag="er")
        return a
    def te(self):
        a = L()
        a.wl("er")
        for t in range(5): a("v_mul_f32_dpp v%d, v%d, v%d %s" % (TT + 16 + t, TE + t, PR0 + 6 * t + 3, DPP))
        for t in range(5): a("v_fma_f32 v%d, v%d, v%d, v%d" % (TE + t, TE + t, PR0 + 6 * t + 2, TT + 16 + t))
        return a
    def agg_loads(self, raw=False):
        a = L()
        for m in range(14, -1, -1):
            a("buffer_load_dword v%d, v%d, %s, s%d offen offset:%d sc1" % (TT + m, v_col4, srd(sAG), s_aggld if m < 8 else s_aggld2, 512 * (m & 7)), tag="ag", raw=raw)
        if raw: return a
        return [self.only("lo", a[:8]), self.only("lo", a[8:])]
    def agg_chk(self, raw=False):
        a = L(); c = TT + 15
        a("v_max3_u32 v%d, v%d, v%d, v%d" % (c, TT, TT + 1, TT + 2), raw=raw)
        for m in range(3, 15, 2): a("v_max3_u32 v%d, v%d, v%d, v%d" % (c, c, TT + m, TT + m + 1), raw=raw)
        return a
    def horner2(self):
        a = L()
        slow = self.label("slow"); back = self.label("back")
        a.wv("ag")
        a.extend(self.agg_chk())
        a.append(grp("v_cmp_eq_u32 vcc, -1, v%d\ns_and_b64 vcc, vcc, s[%d:%d]\ns_cbranch_scc1 %s\n%s:" % (TT + 15, s_lo2, s_lo2 + 1, slow, back)))
        s = self.slow
        self.spin_head(s, slow)
        s.extend(self.agg_loads(raw=True)); s("s_waitcnt vmcnt(0)", raw=True); s.extend(self.agg_chk(raw=True))
        s("v_cmp_eq_u32 vcc, -1, v%d\ns_cbranch_vccnz %s\ns_branch %s" % (TT + 15, slow, back), raw=True)
        for m in range(13, -1, -1):
            a.append(grp("v_fmac_f32 v%d, v%d, v%d\nv_fmac_f32_dpp v%d, -v%d, v%d %s" % (TT + m, vA128, TT + m + 1, TT + m, TT + m + 1, vB128, DPP)))
        a("ds_write_b32 v%d, v%d" % (v_cwr, TT), tag="cw")
        return a
    def pass2(self):
        a = L()
        for t in range(5): a("ds_read_b32 v%d, v%d offset:%d" % (TT + t, v_crd, 1280 * t), tag="ir")
        for k in range(1, 4): a("v_add_u32 v%d, %d, v%d" % (vL4[k], 4096 * k, v_l16))
        a("v_lshlrev_b32 v%d, 3, v%d" % (v_l8, v_lane))
        a.delay(3)
        a.wl("ir")
        for t in range(5): a("v_fmac_f32 v%d, v%d, v%d" % (TE + t, PR0 + 6 * t + 4, TT + t))
        for t in range(5): a("v_fmac_f32_dpp v%d, v%d, v%d %s" % (TE + t, TT + t, PR0 + 6 * t + 5, DPP))
        def chain(t):
            c = []
            prev = TE + t
            for j8 in range(8):
                cur = U0 + 8 * t + j8
                c.append("v_fmac_f32 v%d, v%d, v%d\nv_fmac_f32_dpp v%d, v%d, v%d %s" % (cur, PR0 + 6 * t, prev, cur, prev, PR0 + 6 * t + 1, DPP))
                prev = cur
            return c
        def fin(t):
            u0 = U0 + 8 * t; f = L()
            for k in range(4): f("v_cvt_pk_bf16_f32 v%d, v%d, v%d" % (u0 + k, u0 + 2 * k, u0 + 2 * k + 1))
            f("ds_write_b128 v%d, %s offset:%d" % (v_htw, vr(u0), 1024 * t), tag="hw")
            for e in range(2):
                f("ds_read_b64_tr_b16 %s, v%d offset:%d" % (vr(u0 + 4 + 2 * e, 2), v_htr, 1024 * t + 64 * e), tag="hr%d" % t)
            return f
        def st(t):
            f = L(); f.wl("hr%d" % t)
            f("buffer_store_dwordx4 %s, v%d, %s, s%d offen offset:%d sc1" % (vr(U0 + 8 * t + 4), v_hst, srd(sWS), s_a2p, 256 * t), tag="hst")
            return f
        for t in range(6):
            ch = [grp(x) for x in chain(t)] if t < 5 else []
            fi = list(fin(t - 1)) if t >= 1 else []
            if t >= 2: fi = fi[:4] + list(st(t - 2)) + fi[4:]
            a.extend(merge([ch, fi]))
        a.delay(4)
        a.extend(st(4))
        return a

    def kv1a(self):
        a = L()
        kA, kB, X, vA, vB = [KV0 + 8 * t for t in range(5)]
        PA, PB, PX, VA, VB, VX = [S0 + 4 * k for k in range(6)]
        t0 = vt[0]
        a("v_cmp_gt_u32 vcc, 8, v%d\nv_mov_b32 v%d, 0x3f803f80" % (v_n, t0))
        for (src, dst) in ((X, VX), (vA, VA), (vB, VB)):
            for k in range(4): a("v_cvt_pk_bf16_f32 v%d, v%d, v%d" % (dst + k, src + 2 * k, src + 2 * k + 1))
        for k in range(4): a("v_cndmask_b32 v%d, v%d, v%d, vcc" % (VX + k, VX + k, t0))
        T4a, T4b, T5, T1, T3a, T2, T3b = vA, vA + 4, vB, vB + 4, X, X + 4, kA
        a("s_mov_b32 s%d, 0x0f550f55\ns_mov_b32 s%d, 0x0f550f55" % (s_mask, s_mask + 1))
        a("v_cmp_gt_u32 vcc, 16, v%d" % v_lane)
        def part(src, dst, mm):
            self.phi8(a, src, TT)
            for k in range(4): a("v_cvt_pk_bf16_f32 v%d, v%d, v%d" % (dst + k, src + 2 * k, src + 2 * k + 1))
            for d, x, y in mm: a("%s %s, %s, %s, 0" % (M, vr(d), vr(x), vr(y)))
        part(X, PX, ((T4a, PX, VA), (T4b, PX, VB), (T5, PX, VX)))
        part(kA, PA, ((T1, PA, VA), (T3a, PA, VX)))
        for k in range(4): a("v_cndmask_b32 v%d, v%d, v%d, vcc" % (T4a + k, T4b + k, T4a + k))
        for k in range(4): a("v_permlane32_swap_b32 v%d, v%d" % (T4a + k, T5 + k))
        a("ds_write_b128 v%d, %s offset:3072" % (v_kvw, vr(T4a)), tag="kw")
        a("ds_write_b128 v%d, %s" % (v_kvw, vr(T1)), tag="kw")
        part(kB, PB, ((T3b, PB, VX), (T2, PB, VB)))
        a.delay(2)
        for k in range(4): a("v_cndmask_b32 v%d, v%d, v%d, s[%d:%d]" % (T3a + k, T3b + k, T3a + k, s_mask, s_mask + 1))
        a("ds_write_b128 v%d, %s offset:1024" % (v_kvw, vr(T2)), tag="kw")
        a("ds_write_b128 v%d, %s offset:2048" % (v_kvw, vr(T3a)), tag="kw")
        a.append(grp("s_lshl_b32 s%d, s%d, 10\ns_add_u32 s%d, s%d, %d\nv_add_u32 v%d, s%d, v%d" % (s_t0, s_w, s_t0, s_t0, L_KVR, v_kvw, s_t0, v_l16)))
        return a
    def kv1b(self):
        a = L(); K = KV0
        for k in range(4): a("ds_read_b128 %s, v%d offset:%d" % (vr(K + 4 * k), v_kvw, 4096 * k), tag="kr")
        a.delay(4)
        a.wl("kr")
        for k in range(4): a("v_add_f32 v%d, v%d, v%d\nv_add_f32 v%d, v%d, v%d" % (K + k, K + k, K + 4 + k, K + 8 + k, K + 8 + k, K + 12 + k))
        for k in range(4): a("v_add_f32 v%d, v%d, v%d" % (K + k, K + k, K + 8 + k))
        for k in range(2): a("v_cvt_pk_bf16_f32 v%d, v%d, v%d" % (K + k, K + 2 * k, K + 2 * k + 1))
        for k in range(2): a("v_min_u32 v%d, -2, v%d" % (K + k, K + k))
        a("buffer_store_dwordx2 %s, v%d, %s, s%d offen sc1" % (vr(K, 2), v_l8, srd(sWS), s_kvpst), tag="kvst")
        return a
    def phiq(self):
        a = L(); t0 = vt[2]
        Z = SEL
        a("v_and_b32 v%d, 12, v%d\nv_add_u32 v%d, v%d, v%d" % (t0, v_n, t0, t0, v_n))
        a.append(grp("s_lshl_b32 s%d, s%d, 7\ns_add_u32 s%d, s%d, %d\nv_lshl_add_u32 v%d, v%d, 2, s%d" % (s_t0, s_w, s_t0, s_t0, M_G, t0, t0, s_t0)))
        for i in range(2): a("v_fma_f32 v%d, v%d, s%d, v%d" % (Z + i, Q0 + 8 + 4 * i, s_log2e, v_nel))
        for i in range(2): a("v_exp_f32 v%d, -v%d" % (Z + i, Z + i))
        for i in range(2): a("v_add_f32 v%d, 1.0, v%d" % (Z + i, Z + i))
        for i in range(2): a("v_rcp_f32 v%d, v%d" % (Z + i, Z + i))
        for i in range(2): a("v_sub_f32 v%d, 1.0, v%d" % (Z + 2 + i, Z + i))
        a.append(grp("s_mov_b32 exec_lo, 0\nds_write_b32 v%d, v%d\nds_write_b32 v%d, v%d offset:16\ns_mov_b32 exec_lo, -1" % (t0, Z, t0, Z + 1), tag="gw"))
        for i in range(2): a("v_permlane32_swap_b32 v%d, v%d" % (Z + 2 + i, OMG + i))
        for t in range(3):
            self.phi8(a, Q0 + 8 * t, TT)
            for i in range(2):
                for k in range(2):
                    a("v_cvt_pk_bf16_f32 v%d, v%d, v%d" % (PQ + 6 * i + 2 * t + k, Q0 + 8 * t + 4 * i + 2 * k, Q0 + 8 * t + 4 * i + 2 * k + 1))
        return a
    def gather_loads(self, raw=False):
        a = L()
        for c in range(8):
            a("buffer_load_dwordx4 %s, v%d, %s, s%d offen offset:%d sc1" % (vr(KV0 + 4 * c), vL4[c // 4], srd(sWS), s_kvpld, 1024 * (c % 4)), tag="g%d" % c, raw=raw)
        return a
    def gsel(self):
        a = L()
        t1, t2, t3 = vt[1], vt[2], vt[3]
        a("v_lshrrev_b32 v%d, 3, v%d\nv_xor_b32 v%d, v%d, v%d\nv_and_b32 v%d, 1, v%d\nv_lshlrev_b32 v%d, 3, v%d" % (t1, v_n, t1, t1, v_q, t1, t1, t1, t1))
        a("v_bfe_u32 v%d, v%d, 1, 2\nv_or_b32 v%d, v%d, v%d" % (t2, v_n, t1, t1, t2))
        a("v_and_b32 v%d, 1, v%d\nv_lshlrev_b32 v%d, 4, v%d\nv_mov_b32 v%d, 0x3f80\nv_lshlrev_b32 v%d, v%d, v%d" % (t2, v_n, t2, t2, t3, t3, t2, t3))
        for k in range(4):
            a.append(grp("v_cmp_eq_u32 vcc, %d, v%d\nv_cndmask_b32 v%d, 0, v%d, vcc" % (k, t1, SEL + k, t3)))
        a("v_and_b32 v%d, 2, v%d\nv_lshlrev_b32 v%d, 7, v%d\nv_lshl_add_u32 v%d, v%d, 4, v%d\nv_and_b32 v%d, 1, v%d\nv_lshl_add_u32 v%d, v%d, 3, v%d" % (t1, v_q, t1, t1, t1, v_n, t1, t2, v_q, t1, t2, t1))
        a.append(grp("s_lshl_b32 s%d, s%d, 9\ns_add_u32 s%d, s%d, %d\nv_add_u32 v%d, s%d, v%d" % (s_t0, s_w, s_t0, s_t0, L_KVX, GD - 2, s_t0, t1)))
        return a
    def gsum(self, raw=False):
        a = L()
        for c in range(8):
            if not raw: a.wv("g%d" % c)
            a("%s %s, %s, %s, %s" % (M, vr(GD), vr(SEL), vr(KV0 + 4 * c), vr(GD) if c else "0"), raw=raw)
        return a
    def gather_sum(self):
        a = L()
        t0, t1 = vt[0], vt[1]
        slow = self.label("slow"); back = self.label("back")
        a.extend(self.gsum())
        a("v_xor_b32 v%d, 256, v%d\nv_add_u32 v%d, %d, v%d\nv_add_u32 v%d, %d, v%d" % (t1, v_l8, t1, L_KVX, t1, t0, L_KVX, v_l8))
        a.delay(2)
        a.append(grp("v_cmp_u_f32 vcc, v%d, v%d\ns_cbranch_vccnz %s\n%s:" % (GD, GD + 1, slow, back)))
        s = self.slow
        self.spin_head(s, slow)
        s.extend(self.gather_loads(raw=True)); s("s_waitcnt vmcnt(0)\nv_mov_b32 v%d, 0" % vt[2], raw=True)
        for m in range(0, 32, 2): s("v_max3_u32 v%d, v%d, v%d, v%d" % (vt[2], vt[2], KV0 + m, KV0 + m + 1), raw=True)
        s("v_cmp_eq_u32 vcc, -1, v%d\ns_cbranch_vccnz %s" % (vt[2], slow), raw=True)
        s.extend(self.gsum(raw=True)); s("s_nop 7\ns_branch %s" % back, raw=True)
        a("v_cvt_pk_bf16_f32 v%d, v%d, v%d\nv_cvt_pk_bf16_f32 v%d, v%d, v%d" % (GD + 4, GD, GD + 1, GD + 5, GD + 2, GD + 3))
        a("ds_write_b64 v%d, %s" % (GD - 2, vr(GD + 4, 2)), tag="xw")
        return a
    def attn2(self):
        a = L()
        t0, t1, t2, t3 = vt
        FA, FB_, FZA, FZB, R3, R4, R5 = GB, GB + 4, GB + 8, GB + 12, GD, GD + 2, GD + 4
        E = Q0; SC = SEL; O = GB
        a("ds_read_b64 %s, v%d offset:%d" % (vr(R3, 2), t0, 1024), tag="xr")
        a("ds_read_b64 %s, v%d offset:%d" % (vr(R5, 2), t1, 1536), tag="xr")
        a("ds_read_b64 %s, v%d offset:%d" % (vr(R4, 2), t0, 1536), tag="xr")
        a("ds_read_b64 %s, v%d offset:%d" % (vr(FA, 2), t0, 0), tag="xr")
        a("ds_read_b64 %s, v%d offset:%d" % (vr(FB_ + 2, 2), t0, 512), tag="xr")
        a.delay(4)
        a.wl("xr")
        def masked(dst, src, lo, hi):
            a("s_mov_b32 s%d, 0x%x\ns_mov_b32 s%d, 0x%x" % (s_mask, lo, s_mask + 1, hi))
            for k in range(2): a("v_cndmask_b32 v%d, 0, v%d, s[%d:%d]" % (dst + k, src + k, s_mask, s_mask + 1))
        masked(FZA, R3, 0x0f550f55, 0x0f550f55); masked(FZA + 2, R5, 0x00000f55, 0)
        masked(FZB + 2, R3, 0xf0aaf0aa, 0xf0aaf0aa); masked(FZB, R5, 0xf0aa0000, 0)
        masked(FA + 2, R4, 0x0000ffff, 0); masked(FB_, R4, 0xffff0000, 0)
        self.nf = len(a)
        for i in range(2): a("%s %s, %s, %s, 0" % (M, vr(E + 12 * i + 8), vr(FZA), vr(PQ + 6 * i)))
        for i in range(2): a("%s %s, %s, %s, %s" % (M, vr(E + 12 * i + 8), vr(FZB), vr(PQ + 6 * i + 2), vr(E + 12 * i + 8)))
        a("v_lshrrev_b32 v%d, 1, v%d\nv_mul_u32_u24 v%d, %d, v%d" % (t2, v_q, t2, TSTR, t2))
        a("v_and_b32 v%d, 1, v%d\nv_lshl_add_u32 v%d, v%d, 3, v%d\nv_lshl_add_u32 v%d, v%d, 4, v%d" % (t3, v_q, t2, t3, t2, t2, v_n, t2))
        a("s_add_u32 s%d, s%d, %d\ns_add_u32 s%d, s%d, %d" % (s_t1, s_a2p, 160 * 256, s_t2, s_a2p, 160 * 256 + TSTR))
        for i in range(2):
            a("%s %s, %s, %s, 0" % (M, vr(E + 12 * i), vr(FA), vr(PQ + 6 * i)))
            a("%s %s, %s, %s, 0" % (M, vr(E + 12 * i + 4), vr(FB_), vr(PQ + 6 * i + 2)))
        a("s_mov_b32 s%d, 0\ns_mov_b32 s%d, 0x0000ffff" % (s_mask, s_mask + 1))
        ih = [(i, h) for i in range(2) for h in range(2)]
        for i, h in ih: a("v_add_f32 v%d, s%d, v%d" % (SC + 6 * i + 2 * h, s_eps, E + 12 * i + 8 + h))
        for i, h in ih: a("v_rcp_f32 v%d, v%d" % (SC + 6 * i + 2 * h, SC + 6 * i + 2 * h))
        for i, h in ih: a("v_mul_f32 v%d, v%d, v%d" % (SC + 6 * i + 2 * h, SC + 6 * i + 2 * h, OMG + i))
        for i, h in ih: a("v_mov_b32 v%d, v%d" % (SC + 6 * i + 2 * h + 1, SC + 6 * i + 2 * h))
        for i, h in ih: a("v_permlane32_swap_b32 v%d, v%d" % (SC + 6 * i + 2 * h, SC + 6 * i + 2 * h + 1))
        for i in range(2):
            sc = SC + 6 * i
            a("v_cndmask_b32 v%d, v%d, v%d, s[%d:%d]" % (sc + 4, sc + 2, sc, s_mask, s_mask + 1))
            for k in range(4):
                a("v_mul_f32 v%d, v%d, v%d" % (E + 12 * i + k, E + 12 * i + k, sc))
                a("v_mul_f32 v%d, v%d, v%d" % (E + 12 * i + 4 + k, E + 12 * i + 4 + k, sc + 2))
            for k in range(4): a("v_cvt_pk_bf16_f32 v%d, v%d, v%d" % (O + 4 * i + k, E + 12 * i + 2 * k, E + 12 * i + 2 * k + 1))
            a("buffer_store_dwordx4 %s, v%d, %s, s%d offen sc1" % (vr(O + 4 * i), v_l16, srd(sWS), (s_t1, s_t2)[i]), tag="ost")
        for i in range(2):
            ez = E + 12 * i + 8; sc = SC + 6 * i
            for k in range(4): a("v_mul_f32 v%d, v%d, v%d" % (ez + k, ez + k, sc + 4))
            for k in range(2): a("v_cvt_pk_bf16_f32 v%d, v%d, v%d" % (O + 8 + 2 * i + k, ez + 2 * k, ez + 2 * k + 1))
        for k in range(2): a("v_permlane32_swap_b32 v%d, v%d" % (O + 8 + k, O + 10 + k))
        a("buffer_store_dwordx2 %s, v%d, %s, s%d offen offset:1024 sc1" % (vr(O + 10, 2), t2, srd(sWS), s_t1), tag="ost")
        return a

    def dma_wo(self, blk):
        a = L(); tag = "wo%d" % blk if blk < 4 else "woE"
        base, off = (s_wm0, WSLOT[blk] * SLOT) if blk < 4 else (s_priv, P_HT)
        if blk == 4: a.wl("sx")
        a("s_add_u32 s%d, s%d, %d\ns_add_u32 m0, s%d, %d" % (s_so, s_woi, blk * SLOT, base, off), tag=tag)
        for ph in range(4):
            a("buffer_load_dwordx4 v%d, %s, s%d offen offset:%d sc1 lds" % (v_l16, srd(sWS), s_so, 1024 * ph), tag=tag)
        a("s_add_u32 m0, s%d, %d" % (base, off + 4096), tag=tag)
        a("buffer_load_dwordx4 v%d, %s, s%d offen sc1 lds" % (vL4[1], srd(sWS), s_so), tag=tag)
        return a
    def rd_we(self):
        a = L()
        a("v_add_u32 v%d, %d, v%d" % (vWE, PRIV + P_HT, vBA[0]))
        for f in range(20):
            kk, nt = divmod(f, 5)
            a("ds_read_b128 %s, v%d offset:%d" % (ar(WE[f]), vWE, kk * PRIV_SZ + 256 * nt), tag="we")
        return a
    KORD = [16, 17, 18, 19] + list(range(16))
    def ao_loads(self):
        a = L()
        for kk in self.KORD:
            a("buffer_load_dwordx4 %s, v%d, %s, s%d offen offset:%d sc1" % (ar(AO + 4 * kk), vL4[(kk // 4) % 4], srd(sWS), s_ao if kk < 16 else s_ao2, 1024 * (kk % 4)), tag="ao%d" % kk)
        return a
    GG = GB; DS = ACC + 20; SKV = [vDX[2], vDX[3], vDW[4]]; v_ga = v_col4
    def skip_addr(self):
        a = L()
        t0, t1, t2 = vt[1], vt[2], vt[3]
        a("s_lshr_b32 s%d, s%d, 1\ns_lshl_b32 s%d, s%d, 5\ns_lshl_b32 s%d, s%d, 2\ns_add_u32 s%d, s%d, s%d" % (s_t1, s_w, s_t1, s_t1, s_t2, s_w1, s_t1, s_t1, s_t2))
        a("v_lshl_add_u32 v%d, v%d, 3, s%d" % (t0, v_q, s_t1))
        a("v_mul_u32_u24 v%d, 2560, v%d\nv_lshl_add_u32 v%d, v%d, 2, v%d\nv_add_u32 v%d, 5120, v%d" % (v_o0, t0, v_o0, v_n, v_o0, v_o1, v_o0))
        a("s_lshl_b32 s%d, s%d, 6\ns_add_u32 s%d, s%d, s%d\ns_lshl_b32 s%d, s%d, 2\ns_add_u32 s%d, s%d, %d" % (s_t2, s_rb, s_t1, s_t1, s_t2, s_rstep, s_t1, s_rstep, s_rstep, M_G))
        a("s_mul_i32 s%d, s%d, 1280\ns_mul_i32 s%d, s%d, 160\ns_add_u32 s%d, s%d, s%d" % (s_t1, s_t1, s_t2, s_ct, s_t1, s_t1, s_t2))
        for ph in range(3):
            a("v_add_u32 v%d, %d, v%d\nv_mul_u32_u24 v%d, 6554, v%d\nv_lshrrev_b32 v%d, 16, v%d" % (t0, 64 * ph, v_lane, t1, t0, t1, t1))
            a("v_mul_u32_u24 v%d, 10, v%d\nv_sub_u32 v%d, v%d, v%d" % (t2, t1, t0, t0, t2))
            a("v_and_b32 v%d, 28, v%d\nv_add_u32 v%d, v%d, v%d\nv_mul_u32_u24 v%d, 1280, v%d" % (t2, t1, t1, t1, t2, t1, t1))
            a("v_lshl_add_u32 v%d, v%d, 4, v%d\nv_add_u32 v%d, s%d, v%d" % (t1, t0, t1, self.SKV[ph], s_t1, t1))
            if ph < 2: a("s_sub_u32 s%d, s%d, 1024" % (s_t1, s_t1))
        a("v_add_u32 v%d, s%d, v%d" % (vRX[0], s_priv, v_l16))
        for ml in range(1, 4):
            a("s_sub_u32 s%d, s%d, %d\ns_and_b32 s%d, s%d, 3\ns_mul_i32 s%d, s%d, %d\ns_add_u32 s%d, s%d, %d\nv_add_u32 v%d, s%d, v%d"
              % (s_t1, s_w, ml, s_t1, s_t1, s_t1, s_t1, PRIV_SZ, s_t1, s_t1, PRIV, vRX[ml], s_t1, v_l16))
        a("v_lshrrev_b32 v%d, 2, v%d\nv_mul_u32_u24 v%d, 160, v%d\nv_and_b32 v%d, 3, v%d\nv_lshl_add_u32 v%d, v%d, 3, v%d" % (t0, v_lane, t0, t0, t1, v_lane, t0, t1, t0))
        a("v_add_u32 v%d, s%d, v%d\nv_lshlrev_b32 v%d, 1, v%d\nv_add_u32 v%d, %d, v%d" % (230, s_priv, t0, 231, v_n, 231, M_DSK, 231))
        return a
    def skip_dma(self):
        a = L()
        a.wl("hr4")
        a("s_add_u32 m0, s%d, %d" % (s_priv, P_HT), tag="sk")
        for ph in range(3):
            a("buffer_load_dwordx4 v%d, %s, 0 offen offset:%d lds" % (self.SKV[ph], srd(sX), 1024 * ph), tag="sk")
        return a
    def skip_rd(self):
        a = L()
        a.wv("sk")
        for nt in range(5): a("ds_read_b64_tr_b16 %s, v%d offset:%d" % (vr(ACC + 4 * nt + 2, 2), 230, P_HT + 32 * nt), tag="sx")
        for nt in range(5): a("ds_read_u16 v%d, v%d offset:%d" % (self.DS + nt, 231, 32 * nt), tag="sd")
        return a
    def skip_calc(self):
        a = L()
        a.wl("sd")
        for nt in range(5): a("v_lshlrev_b32 v%d, 16, v%d" % (self.DS + nt, self.DS + nt))
        for nt in range(5):
            c = ACC + 4 * nt
            a("v_lshlrev_b32 v%d, 16, v%d\nv_and_b32 v%d, 0xffff0000, v%d\nv_lshlrev_b32 v%d, 16, v%d\nv_and_b32 v%d, 0xffff0000, v%d" % (c, c + 2, c + 1, c + 2, c + 2, c + 3, c + 3, c + 3))
            for r in range(4): a("v_mul_f32 v%d, v%d, v%d" % (c + r, c + r, self.DS + nt))
        return a
    def aload(self, k):
        b = L(); kk = k
        for ml in range(4):
            b("buffer_load_dwordx4 %s, v%d, %s, s%d offen offset:%d sc1" % (vr(AF + 16 * (k % NAF) + 4 * ml), vL4[kk // 4], srd(sWS), s_am + ml, 1024 * (kk % 4)), tag="a%d" % k)
        return b

    def build(self):
        o = self.opt
        a = L()
        t0, t1, t2, t3 = vt
        a.extend(self.prologue())
        NS = 71
        S = Sched([10] * 40 + [6] * 20 + [16] + [20] * 10)
        pre = [L() for _ in range(NS)]; post = [L() for _ in range(NS)]
        cj, ci_, cct = "s%d" % s_cj, "s%d" % s_ci, "s%d" % s_cct
        n3 = [0, 8, 18, 99][o.get("n3", 2)]
        rsig = o.get("rsig", 2)
        stl = list(self.rp_store()) + self.clears() + self.pc
        d = list(self.first) + list(self.second[:n3]) + [G(self.rp_read())]
        if self.rsl == 1: d += stl; stl = []
        fill = list(self.partB) + list(self.partC)
        nf = len(fill) * o.get("pf", 70) // 100
        nv = sum(1 for x in d if not isinstance(x, G) and x.kind == "vmem")
        sh = split(fill[:nf], nv); k = 0
        for x in d:
            a.extend(flat([x]))
            if not isinstance(x, G) and x.kind == "vmem":
                a.extend(flat(sh[k])); k += 1
        self.fill = fill[nf:]
        self.stamp(a, "prol")
        a.wv("x1")
        self.stamp(a, "st0", level=2); a("s_barrier")
        a.extend(self.x_reads(0)); a.extend(self.frag_reads(0))
        S.at(self.rp_signal(), rsig)
        for g in range(59):
            st1, kk1 = self.stage_of(g + 1)
            rd = list(self.frag_reads(g + 1))
            if g + 1 < 20 and kk1 == 0: rd = list(self.x_reads(2 * st1)) + rd
            if g + 1 < 20 and kk1 == 1: rd = rd + list(self.x_reads(2 * st1 + 1))
            for k, x in enumerate(rd):
                S.gap[S.start[g] + k].append(x); S.load[S.start[g] + k] += wcost(x)
        for g in range(60):
            for t in ((1, 3) if g < 40 else (1,)) if o.get("w2", 1) else range(1, 5 if g < 40 else 3):
                S.gap[S.start[g] + 2 * t - 1].append(WL("f%d_%d" % (g, t + o.get("w2", 1))))
        X = self.dma_x; W = self.dma_w
        gate = list(L()("s_mov_b32 m0, s%d\nbuffer_load_dwordx4 v%d, %s, 0 offen lds" % (s_rlds, RB, srd(sRP)), tag="gate"))
        S.spread(stl + list(self.second[n3:]) + list(X(4)) + list(X(5)), 0, 2)
        S.spread(list(W(2)) + list(X(6)) + list(X(7)), 3, 6)
        pi_ = [self.only("w0", self.vpoll_issue("pI"))]
        gi = o.get("gi", 15)
        S.spread(list(W(3)) + (pi_ if gi == 11 else []) + list(X(8)) + list(X(9)), 7, 10)
        S.spread(list(W(4)) + (pi_ if gi == 15 else []) + gate, 11, 12)
        pre[gi].append(self.only("w0", self.vpoll_check("pI", 20)))
        if self.fill: S.place(self.fill, 0, 10)
        S.place(self.skip_addr(), 13, 18)
        hp, op_ = "s%d" % s_hp, "s%d" % s_op
        co = self.coef(); ga = o.get("ga", 29)
        if o.get("xb", 0):
            S.place(self.pass1(), 20, 21); post[21].wl("sw"); post[21]("s_barrier")
            S.place(self.sread(), 22, 22.4); pre[23].wl("sr")
            S.place(co[:20], 22, 22)
            S.place(self.horner1(), 23, 24.6)
            S.place(self.eback(), 24.6, 25); pre[27].wl("ew")
            S.place(co[20:], 24.6, 28)
            S.place(self.te_rd(), 28.5, 28); S.place(self.te(), 29.5, ga + 2)
        else:
            S.place(self.pass1(), 20, 22); pre[23].wl("sw")
            S.place(self.sread(), 23.5, 23); S.place(co[:20], 23, 23)
            S.place(self.horner1(), 24.3, 25); pre[27].wl("sr")
            S.place(self.eback(), 27.5, 27); pre[31].wl("ew")
            S.place(co[20:], 26, 29)
            S.place(self.te_rd(), 31.5, 31); S.place(self.te(), 32.3, 32)
            ga = o.get("ga", 29)
        S.spread(self.agg_loads(), ga, ga)
        S.place(self.horner2(), ga + 3, 34); pre[35].wl("cw")
        S.place(self.pass2(), 35, 39)
        ke = o.get("ke", 40)
        S.at(self.wsignal("hst", s_hs), o.get("hs", ke + 1))
        S.place(self.kv1a(), 40, ke)
        post[ke].wl("kw"); post[ke]("s_barrier")
        S.place(self.kv1b(), ke + 1, ke + 2)
        pre[47].wl("kr")
        S.place(self.gsel(), 45, 48); S.place(self.skip_calc(), 49, 55)
        B = 61
        gsw = o.get("gsw", 57)
        S.place(self.gather_sum(), gsw, 59)
        post[59].wl("xw"); post[59].wv("woE"); post[59]("s_barrier")
        at2 = list(self.attn2())
        S.place(at2[:self.nf], 60, 60); S.place(self.phiq(), 60, 60)
        ge = o.get("ge", 9) / 10.0
        S.place(at2[self.nf:], B, B + ge)
        S.at(self.wsignal("ost", s_os), B + o.get("os", 3))
        S.spread(list(self.rd_we()), B + 6, B + 7)
        post[B + 7].wl("we"); post[B + 7]("s_barrier")
        S.gap[S.start[B + 9] + 2].extend(L()("v_lshl_add_u32 v%d, v%d, 5, s%d\nds_read_b128 %s, v%d" % (self.v_ga, v_q, s_rstep, vr(self.GG), self.v_ga), tag="g2"))
        for z in range(15):
            k = S.start[B + 8] + 10 + 10 * (z // 5) + 2 * (z % 5)
            S.gap[k].append(I("ds_write_b128 v%d, %s offset:%d" % (vRX[0], vr(ACC + 20 * (1 + z // 5) + 4 * (z % 5)), z * 1024), tag="rw"))
        S.gap[S.start[B + 8] + 4].append(WV("a9"))
        st_ = lambda g: S.rng(g, int(g))[0]
        T = o.get("T", 72); LAT = o.get("lat", 800); PL = o.get("pl", 1000)
        P = []
        gl = self.gather_loads(); aol = self.ao_loads()
        P.append(Pkt("pH", self.poll_issue(sWS, hp, 0, "pH"), st_(o.get("ph", 47))))
        P.append(Pkt("cH", self.poll_check(sWS, hp, 0, "pH", 32), after=["pH"], lag=PL))
        P.append(Pkt("pO", self.poll_issue(sWS, op_, 0, "pO"), st_(B + o.get("po", 50) / 10.0), after=["cH"]))
        P.append(Pkt("cO", self.poll_check(sWS, op_, 0, "pO", 16), after=["pO"], lag=o.get("plo", PL)))
        for c in range(8): P.append(Pkt("g%d" % c, [gl[c]], st_(o.get("gg", 51))))
        for st in range(5, 13):
            fr = max(gi, 4 * st - 13) if st > 5 else gi
            P.append(Pkt("w%d" % st, W(st), st_(fr)))
        P.append(Pkt("sk", self.skip_dma(), st_(40)))
        P.append(Pkt("skr", self.skip_rd(), after=["sk"], lag=LAT))
        for k in range(10):
            P.append(Pkt("a%d" % k, self.aload(k), st_(ke + 3) if k < 2 else st_(60) if k < 4 else st_(B + k - 3), after=["cH"]))
        for u in range(25):
            P.append(Pkt("c%d" % u, self.dma_c(u), st_(17), after=["cr%d" % (u - self.NCU)] if u >= self.NCU else [], lag=60))
            P.append(Pkt("cr%d" % u, self.rd_c(u), 0 if u < 12 else st_(41 + u - 12), after=["c%d" % u], lag=LAT))
        P.append(Pkt("woE", self.dma_wo(4), after=["skr"], lag=60))
        P.append(Pkt("wo0", self.dma_wo(0), st_(o.get("w0", 47))))
        P.append(Pkt("wo1", self.dma_wo(1), st_(o.get("w1", 58))))
        if o.get("w2e", 1): P.append(Pkt("wo2", self.dma_wo(2), st_(o.get("w1", 58))))
        for z in range(8): P.append(Pkt("ao%d" % z, [aol[z]], after=["cO"]))
        if not o.get("w2e", 1): P.append(Pkt("wo2", self.dma_wo(2), st_(55), after=["cO"]))
        for z in range(8, 12): P.append(Pkt("ao%d" % z, [aol[z]], after=["cO"]))
        P.append(Pkt("wo3", self.dma_wo(3), st_(60)))
        for z in range(12, 20): P.append(Pkt("ao%d" % z, [aol[z]], after=["cO"]))
        extra = {g: 110 for g in range(60) if g + 1 < 60 and self.stage_of(g + 1)[1] == 0}
        extra[ke + 1] = 110; extra[B + 8] = 110; extra[60] = 110
        left, tend = pace(S, st_(13), S.start[B + 10], P, T, nomf=(60,), step_extra=extra)
        if o.get("v", 0):
            stepof = lambda k: max(g for g in range(len(S.counts)) if S.start[g] <= k)
            print("model end", int(tend), " ".join("%s@%d" % (p.name, stepof(p.done_gap)) for p in P if p.done_gap is not None), "| left:", [p.name for p in left])
        tailq = [x for p in left for x in p.ins]
        def take(n):
            out = []
            while tailq and n > 0:
                x = tailq.pop(0); out.append(x)
                if not isinstance(x, G) and x.kind == "vmem": n -= 1
            return out
        for g in range(60):
            p = L()
            nt_ = 5 if g < 40 else 3
            p.wl("f%d_0" % g)
            if g + 1 < 60:
                st1, kk1 = self.stage_of(g + 1)
                if kk1 == 0:
                    p.wl("f%d_%d" % (g, nt_ - 1))
                    fine = o.get("f0", 99) <= g <= o.get("f1", -1)
                    p.extend(pre[g]); p.wv("w%d" % st1)
                    if st1 < 5: p.wv("x%d" % (2 * st1 + 1))
                    if fine: self.stamp(p, "wv%d" % g)
                    p("s_barrier")
                    if fine: self.stamp(p, "bar%d" % g)
                    if st1 == 5: p.extend(self.calc_kvaddr())
                else:
                    assert not pre[g], g
            a.extend(flat(p))
            a.extend(S.emit(g, self.mfmas(g)))
            a.extend(post[g])
            if g in (19, 39, 59) or o.get("f0", 99) <= g <= o.get("f1", -1): self.stamp(a, "g%d" % g)
            elif g % 4 == 3: self.stamp(a, "g%d" % g, level=2)
        a.extend(S.emit(60, [None] * 16))
        self.stamp(a, "phiq")
        for k in range(10):
            a.wv("a%d" % k)
            a.wl("cr%d" % ((k >> 1) * 5 + 4))
            a.extend(S.emit(B + k, self.mfmas(60 + k)))
            a.extend(post[B + k])
            self.stamp(a, "k%d" % k, level=2 if k != 9 else 1)
        late_wo = any((not isinstance(y, G)) and y.tag in ("wo2", "wo3") for y in tailq) or o.get("midbar", 0)
        a.wl("rw"); a.wv("wo1" if late_wo else "wo3"); a("s_barrier")
        x = L()
        P = ACC + 20
        for nt in range(5):
            for ml in range(1, 4):
                x("ds_read_b128 %s, v%d offset:%d" % (vr(P + 12 * nt + 4 * (ml - 1)), vRX[ml], ((ml - 1) * 5 + nt) * 1024), tag="rr%d" % nt)
        for nt in range(5):
            x.wl("rr%d" % nt)
            b = P + 12 * nt; c = ACC + 4 * nt
            for h in (0, 2):
                x("v_pk_add_f32 %s, %s, %s" % (vr(b + h, 2), vr(b + h, 2), vr(b + 4 + h, 2)))
                x("v_pk_add_f32 %s, %s, %s" % (vr(c + h, 2), vr(c + h, 2), vr(b + 8 + h, 2)))
            for h in (0, 2): x("v_pk_add_f32 %s, %s, %s" % (vr(c + h, 2), vr(c + h, 2), vr(b + h, 2)))
            for h in (0, 2): x("v_pk_mul_f32 %s, %s, %s" % (vr(c + h, 2), vr(c + h, 2), vr(self.GG + h, 2)))
        KO = self.KORD
        ksw = o.get("ksw", 4)
        if late_wo: ksw = 12
        order = [(kk, nt) for kk in KO[:ksw] for nt in range(5)] + [(kk, nt) for nt in range(5) for kk in KO[ksw:]]
        NB = 16; LA = o.get("la", 12)
        stream = [f for f in order if f[0] < 16]
        def rd(z):
            kk, nt = stream[z]
            slot = WSLOT[kk // 4]; hi = slot >= 2
            return I("ds_read_b128 %s, v%d offset:%d" % (vr(AF + 4 * (z % NB)), vBA[2 * hi], (slot - 2 * hi) * SLOT + 5120 * (kk % 4) + 256 * nt), tag="wf%d" % z)
        a.extend(flat(merge([x, take(o.get("nx", 8))])))
        self.stamp(a, "xchg")
        nr = 0; pend = []; vsp = o.get("vsp", 3)
        for idx, (kk, nt) in enumerate(order):
            a.wv("ao%d" % kk)
            if kk < 16:
                z = stream.index((kk, nt)); a.wl("wf%d" % z); w = vr(AF + 4 * (z % NB))
            else:
                w = ar(WE[(kk - 16) * 5 + nt])
            c = ACC + 4 * nt
            a("%s %s, %s, %s, %s" % (M, vr(c), ar(AO + 4 * kk), w, vr(c)))
            used = sum(1 for f in order[:idx + 1] if f[0] < 16)
            if nr < len(stream) and nr - used < LA and nr - NB < used - 1:
                if nr == 40 and late_wo:
                    a.extend(flat(take(99))) if any((not isinstance(y, G)) and y.tag == "wo3" for y in tailq) else None
                    a.wv("wo3"); a("s_barrier")
                a.append(rd(nr)); nr += 1
            if idx % vsp == 0: a.extend(flat(take(1)))
            if pend and idx >= pend[0][0]:
                a.append(pend.pop(0)[1])
            if kk == KO[-1]:
                for r in range(4):
                    pend.append((idx + 3 + 2 * r, I("buffer_store_dword v%d, v%d, %s, 0 offen offset:%d %s" % (c + r, (v_o0, v_o1)[r >> 1], srd(sOUT), 2560 * (r & 1) + 64 * nt, self.outflag), tag="out")))
        for _, s_ in pend: a.append(s_)
        self.stamp(a, "end")
        if self.stamps:
            a("s_waitcnt vmcnt(0)")
            self.stamp(a, "drain")
            a("s_sub_u32 s%d, 0x40000, s%d\nv_writelane_b32 v0, s%d, 62" % (s_t0, s_spin, s_t0))
            self.stamp(a, "rt1", real=True)
            a("v_readlane_b32 s%d, v0, 63\ns_nop 3\ns_lshl_b32 s%d, s%d, 2\ns_add_u32 s%d, s%d, s%d\ns_lshl_b32 s%d, s%d, 8\ns_add_u32 s%d, s%d, %d"
              % (s_t0, s_t0, s_t0, s_t0, s_t0, s_w, s_t0, s_t0, s_t0, s_t0, STAMP_OFF))
            a("v_lshlrev_b32 v2, 2, v%d\nbuffer_store_dword v0, v2, %s, s%d offen" % (v_lane, srd(sWS), s_t0))
        if self.padat != "-":
            a("s_waitcnt vmcnt(0)\nL_pad:\ns_memrealtime s[16:17]\ns_waitcnt lgkmcnt(0)\ns_sub_u32 s16, s16, s100\ns_cmp_lt_u32 s16, 4000\ns_cbranch_scc1 L_pad")
        a("L_end:\ns_endpgm")
        a.extend(self.slow)
        self.S = S
        return flat(a)

def make(verbose=False, **kw):
    g = Gen(**kw)
    ins = g.build()
    check_m0(ins, {"s%d" % s_so})
    o = g.opt
    if o.get("noc"):
        import re
        ins = [i for i in ins if not (i.tag and re.fullmatch(r"cr?\d+", str(i.tag)))]
    if o.get("now"):
        import re
        ins = [i for i in ins if not (i.tag in ("w8", "w9", "w10", "w11", "w12"))]
    if o.get("noval"):
        nm = 0; out = []
        for i in ins:
            if i.kind == "mfma": nm += 1
            if 240 < nm < 440 and i.kind == "valu" and i.text.startswith(("v_fma", "v_mul_f32", "v_exp", "v_rcp", "v_add_f32", "v_cvt_pk")): continue
            out.append(i)
        ins = out
    if o.get("nocomp"):
        ins = [i for i in ins if i.raw or not (i.kind == "mfma" or (i.kind == "valu" and i.text.startswith(("v_fma", "v_mul_f32", "v_exp", "v_rcp", "v_add_f32", "v_cvt_pk", "v_max_f32", "v_pk_", "v_sin", "v_cos", "v_fract", "v_permlane"))))]
        ins = [i for i in ins if not (i.kind == "branch" and ("scc1 L_slow" in i.text or ("vccnz L_slow" in i.text and not i.opt and not i.raw)))]
    if o.get("nomem"):
        import re
        ins = [i for i in ins if not (i.kind in ("vmem", "waitvm") and i.tag and re.fullmatch(r"(x|w|c|a|g|ao|wo)\d+|woE|sk|tx|tb|ct", str(i.tag)))]
        ins = [i for i in ins if not (i.kind == "branch" and ("scc1 L_slow" in i.text or ("vccnz L_slow" in i.text and not i.opt and not i.raw)))]
    if o.get("norp"):
        drop = {1: ("rp", "rs"), 2: ("rs",), 3: ("rp",), 4: ("rp", "rs", "ct")}[o["norp"]]
        ins = [i for i in ins if not (i.kind in ("vmem", "waitvm") and i.tag in drop)]
        ins = [i for i in ins if not (i.kind == "branch" and ("scc1 L_slow" in i.text or ("vccnz L_slow" in i.text and not i.opt and not i.raw)))]
    if o.get("drop"):
        import re
        pat = {1: r"c\d+", 2: r"wo\d|woE", 3: r"a\d", 4: r"ao\d+", 5: r"hst", 6: r"w([5-9]|1\d)", 7: r"x\d|w[0-4]", 8: r"out", 9: r"cr?\d+", 10: r"ag", 11: r"ost", 12: r"rp|rs", 13: r"g\d|kvst", 14: r"sk|ct|par|gate"}[o["drop"]]
        ins = [i for i in ins if not ((i.kind in ("vmem", "waitvm") or o["drop"] == 9) and i.tag and re.fullmatch(pat, str(i.tag)))]
        ins = [i for i in ins if not (i.kind == "branch" and ("scc1 L_slow" in i.text or ("vccnz L_slow" in i.text and not i.opt and not i.raw)))]
    if o.get("nomf"):
        ins = [i for i in ins if i.raw or i.kind != "mfma"]
        ins = [i for i in ins if not (i.kind == "branch" and ("scc1 L_slow" in i.text or ("vccnz L_slow" in i.text and not i.opt and not i.raw)))]
    if o.get("nofr"):
        import re
        ins = [i for i in ins if not (i.tag and re.fullmatch(r"f(2[1-9]|3\d)_\d", str(i.tag)))]
    ins = resolve_waits(ins)
    ins = hazards(ins, verbose=True)
    if verbose:
        S = g.S
        print("load per gap by step:", " ".join("%d:%.1f" % (k, sum(S.load[S.start[k]:S.start[k + 1]]) / S.counts[k]) for k in range(71)))
    K = NAME + "_kernel"
    txt = header([(K, 256, 256, 163840)]) + kernel_begin(K) + render(ins) + "L_codeend:\n" + rodata() + descriptor(K, 512, 102, 256)
    if o.get("al", 0):
        txt, n, left = align_pass(txt, o.get("nc", 0))
        if verbose: print("re-encoded", n, "misaligned left about", left)
    if g.stamps: txt += "; STAMPS " + " ".join(g.names) + "\n"
    return txt, g.nst

if __name__ == "__main__":
    out = sys.argv[1]
    kw = {}; opt = {}
    for x in sys.argv[2:]:
        k, v = x.split("=")
        if k == "stamps": kw[k] = int(v)
        elif k in ("mapping", "rot", "outflag"): kw[k] = v
        else: opt[k] = int(v)
    txt, nst = make(verbose=True, opt=opt, **kw)
    open(out, "w").write(txt)
```

```python
import sys, struct
from asmgen import NAME, header, kernel_begin, descriptor, rodata, STAMP_OFF
from ir import *

def f2u(x): return struct.unpack("<I", struct.pack("<f", x))[0]
SLOT = 20480
PRIV = 81920; PRIV_SZ = 17408; P_HT = 12288
L_KVR = SLOT; L_RP0 = 3 * SLOT
MISC = PRIV + 4 * PRIV_SZ
M_G = MISC; M_GATE = MISC + 512; M_S = MISC + 2560; M_PARAM = M_S; L_KVX = M_S; M_DSK = MISC + 8960
C_R = 0; C_IMG = 2048
C_H, C_O = 0, 256
W_AGG = 0x10000; W_KVP = 0x40000; W_A2 = 0x200000
W_KVI = 0xA00000; W_QI = 0xC00000; W_WOI = 0xD00000
TSTR = 61440
LOG2E = 0x3fb8aa3b; EPS = f2u(1e-6); NEL = f2u(-1e-6 * 1.4426950408889634)
OOB = 0x7ffffff0

sX, sB, sRP, sC, sWS, sOUT, sDBG, sAG, sT = 48, 52, 56, 60, 64, 68, 72, 76, 80
sDSK = sB
def srd(b): return "s[%d:%d]" % (b, b + 3)
s_w, s_i, s_j, s_ct, s_rb, s_priv, s_wm0, s_bm0 = 3, 4, 5, 6, 7, 8, 9, 10
s_t0, s_t1, s_t2, s_t3, s_so = 11, 12, 13, 14, 15
s_cj, s_ci, s_rstep, s_rlds, s_w1, s_cct = 84, 85, 86, 87, 88, 89
s_am = 90; s_log2e, s_eps, s_a2p, s_spin, s_mask = 94, 95, 96, 97, 98
s_aggst, s_kvpst = 34, 35
s_kvi, s_aggld, s_aggld2, s_kvpld, s_woi, s_pt = 16, 17, 24, 25, 28, 29
s_qb, s_wob = 36, 37
s_rx, s_rbb, s_rk, s_rq = 0, 1, 2, 38
s_hs, s_hp, s_os, s_op = 39, 40, 41, 45
s_so2 = 31
s_lo2 = 46
s_rd = [18, 19, 20, 21]; s_rsig = 30
sR2 = 76
s_ao, s_ao2 = 22, 23

v_lane, v_n, v_q = 1, 2, 3
vXA = [4, 5]; vBA = [6, 7, 8, 9]; vGA = 10; vDX = [11, 12, 13, 14]; vDW = [15, 16, 17, 18, 19]
v_l16, v_col4 = 20, 21
vA8, vB8, vA128, vB128 = 22, 23, 24, 25
v_poll, v_one = 26, 27
vt = [28, 29, 30, 31]
v_nel = vGA
U0 = 32; KV0 = 80; Q0 = 192; S0 = 120; TE = 136; FB0 = 144; PR0 = 192
v_zero, v_crd, v_cwr = TE + 5, TE + 6, TE + 7
RB, RT, v_ct, v_pl = 73, 74, 75, 72
RV = KV0 + 16
vY, vI0, vI1, vI2, vWE = 76, 77, 78, 79, 9
RD1 = 236
EPSQ = 222; EPSX = 226; TT = 232
vC = [184, 185]; v_srow, v_htw, v_htr, v_hst, v_sad, v_kvw = 186, 187, 188, 189, 190, 191
vL4 = [v_l16, vA8, vB8, vA128]
v_o0, v_o1 = vDX[0], vDX[1]
vRX = [vDW[0], vDW[1], vDW[2], vDW[3]]
ACC = 32; AF = 112; NAF = 4; GB = 176; PQ = 240; OMG = 252
GA = 104; SEL = 216; GD = 224; v_l8 = vB128
AO = 104
WE = list(range(184, 256, 4)) + [0, 4]
WSLOT = [2, 1, 3, 0]
def vr(b, n=4): return "v[%d:%d]" % (b, b + n - 1)
def ar(b, n=4): return "a[%d:%d]" % (b, b + n - 1)
DPP = "row_ror:8 row_mask:0xf bank_mask:0xf"
M = "v_mfma_f32_16x16x32_bf16"
def grp(s, tag=None): return G(L()(s, tag=tag))

class Gen:
    def __init__(self, stamps=0, mapping="8x4", rot="ij", outflag="sc1", opt=None):
        self.stamps = stamps; self.mapping = mapping; self.rot = rot; self.outflag = outflag
        self.opt = opt or {}
        self.padat = ["-", "start", "karg2", "st0", "g19", "g39", "g59", "k9", "end"][self.opt.get("pad", 0)]
        self.slow = L(); self.nst = 2; self.nl = 0; self.names = ["rt0", "start"]
    def label(self, b):
        self.nl += 1
        return "L_%s_%d" % (b, self.nl)
    def stamp(self, a, name="", level=1, real=False):
        if self.padat == name: a.append(grp("s_memrealtime s[100:101]\ns_waitcnt lgkmcnt(0)"))
        if self.stamps and self.stamps >= level:
            k = self.nst; self.nst += 1
            assert k < 62
            self.names.append(name)
            a.append(grp("%s s[100:101]\ns_waitcnt lgkmcnt(0)\nv_writelane_b32 v0, s100, %d" % ("s_memrealtime" if real else "s_memtime", k)))
    def only(self, cond, body):
        lab = self.label("skip")
        g = L()
        g({"w0": "s_cmp_eq_u32 s%d, 0", "lo": "s_cmp_lt_u32 s%d, 2", "hi": "s_cmp_ge_u32 s%d, 2", "n3": "s_cmp_lt_u32 s%d, 3", "w3": "s_cmp_eq_u32 s%d, 3", "rp": "s_cmp_lt_u32 s%d, 640"}[cond] % (s_unit if cond == "rp" else s_w))
        g("s_cbranch_scc0 %s" % lab)
        for i in flat(body):
            i.opt = lab; g.append(i)
        g(lab + ":")
        return G(g)
    def spin_head(self, s, slow):
        s(slow + ":", raw=True)
        s("s_sub_u32 s%d, s%d, 1\ns_cmp_eq_u32 s%d, 0\ns_cbranch_scc1 L_end" % (s_spin, s_spin, s_spin), raw=True)
        if self.opt.get("sleep", 0): s("s_sleep %d" % self.opt["sleep"], raw=True)
    def poll_issue(self, srdb, soff, imm, tag):
        return L()("buffer_load_dword v%d, off, %s, %s offset:%d sc1" % (v_poll, srd(srdb), soff, imm), tag=tag)
    def poll_check(self, srdb, soff, imm, tag, target):
        slow = self.label("slow"); back = self.label("back")
        g = L()
        g.wv(tag)
        g("v_readfirstlane_b32 s%d, v%d" % (s_pt, v_poll))
        g("s_cmp_ge_u32 s%d, %d\ns_cbranch_scc0 %s" % (s_pt, target, slow))
        g(back + ":")
        s = self.slow
        self.spin_head(s, slow)
        s("buffer_load_dword v%d, off, %s, %s offset:%d sc1" % (v_poll, srd(srdb), soff, imm), raw=True)
        s("s_waitcnt vmcnt(0)\nv_readfirstlane_b32 s%d, v%d\ns_nop 1\ns_cmp_ge_u32 s%d, %d" % (s_pt, v_poll, s_pt, target), raw=True)
        s("s_cbranch_scc0 %s\ns_branch %s" % (slow, back), raw=True)
        return [G(g)]
    def signal(self, pairs, pre=None):
        b = L()
        if pre: b.extend(pre)
        b("s_mov_b64 exec, 1")
        for sreg, imm in pairs: b("buffer_atomic_add v%d, off, %s, s%d offset:%d sc1" % (v_one, srd(sWS), sreg, imm), tag="at")
        b("s_mov_b64 exec, -1")
        return [self.only("w0", b)]

    def rotso(self, a, base, c, lim, tag, add=None):
        a("s_add_u32 s%d, s%d, %d\ns_sub_u32 s%d, s%d, %d\ns_min_u32 s%d, s%d, s%d" % (s_so, base, c, s_so2, s_so, lim, s_so, s_so, s_so2), tag=tag)
        if add is not None: a("s_add_u32 s%d, s%d, s%d" % (s_so, s_so, add), tag=tag)
    def dma_x(self, sg):
        a = L(); tag = "x%d" % sg
        if sg >= 4: a.wl("xr%d" % (sg - 4))
        a("s_add_u32 m0, s%d, %d" % (s_priv, 4096 * (sg & 3)), tag=tag)
        if sg: self.rotso(a, s_rx, 128 * sg, 1280, tag)
        for ph in range(4):
            a("buffer_load_dwordx4 v%d, %s, s%d offen offset:%d lds" % (vDX[ph], srd(sX), s_so if sg else s_rx, 1024 * ph), tag=tag)
        return a
    def dma_w(self, st):
        a = L()
        slot = st % 4; tag = "w%d" % st
        if st < 5:
            a("s_add_u32 m0, s%d, %d" % (s_bm0, slot * SLOT), tag=tag)
            self.rotso(a, s_rbb, 256 * st, 1280, tag)
            for ph in range(4):
                a("buffer_load_dwordx4 v%d, %s, s%d offen offset:%d lds" % (vDW[ph], srd(sB), s_so, 1024 * ph), tag=tag)
            a("s_add_u32 m0, s%d, %d" % (s_bm0, slot * SLOT + 4096), tag=tag)
            a("buffer_load_dwordx4 v%d, %s, s%d offen lds" % (vDW[4], srd(sB), s_so), tag=tag)
            return a
        a("s_add_u32 m0, s%d, %d" % (s_wm0, slot * SLOT), tag=tag)
        if st < 10: self.rotso(a, s_rk, 20480 * (st - 5), 102400, tag, s_kvi)
        else: self.rotso(a, s_rq, 20480 * (st - 10), 51200, tag, s_qb)
        for ph in range(4):
            a("buffer_load_dwordx4 v%d, %s, s%d offen offset:%d sc1 lds" % (v_l16, srd(sWS), s_so, 1024 * ph), tag=tag)
        a("s_add_u32 m0, s%d, %d\ns_add_u32 s%d, s%d, 4096" % (s_wm0, slot * SLOT + 4096, s_so, s_so), tag=tag)
        a("buffer_load_dwordx4 v%d, %s, s%d offen sc1 lds" % (v_l16, srd(sWS), s_so), tag=tag)
        if st == 12: return [self.only("lo", a)]
        return a
    NCU = 6
    def c_un(self, u):
        return (u % 5, u // 5) if self.opt.get("crow", 0) else divmod(u, 5)
    def c_reg(self, kap, nt):
        u = (kap >> 1) * 5 + nt
        return (160 + 8 * u if u < 12 else 8 * (u - 12)) + 4 * (kap & 1)
    def dma_c(self, u):
        a = L(); sg, nt = divmod(u, 5); tag = "c%d" % u
        if u >= self.NCU: a.wl("cr%d" % (u - self.NCU))
        if u == 0: a.wl("xr9")
        a("s_add_u32 m0, s%d, %d" % (s_priv, 2048 * (u % self.NCU)), tag=tag)
        a("s_mov_b32 s%d, %d" % (s_so, nt * 20480 + 128 * sg), tag=tag)
        for h in range(2):
            a("buffer_load_dwordx4 v%d, %s, s%d offen offset:%d lds" % (vC[h], srd(sC), s_so, 1024 * h), tag=tag)
        return a
    def rd_c(self, u):
        a = L(); sg, nt = divmod(u, 5)
        a.wv("c%d" % u)
        for e in range(2):
            a("ds_read_b128 %s, v%d offset:%d" % (ar(self.c_reg(2 * sg + e, nt)), vXA[e], 2048 * (u % self.NCU)), tag="cr%d" % u)
        return a
    def rp_issue(self):
        b = L(); tag = "rp"
        for k in range(3):
            b("s_add_u32 m0, s%d, %d" % (s_rlds, 896 * k), tag=tag)
            b("buffer_load_dwordx4 v%d, %s, 0 offen offset:%d lds" % (RV, srd(sRP), 128 * k), tag=tag)
        b("s_add_u32 m0, s%d, 3072" % s_rlds, tag=tag)
        b("buffer_load_dwordx4 v%d, %s, 0 offen lds" % (RV + 1, srd(sR2)), tag=tag)
        return b
    def rp_read(self):
        b = L()
        b.wv("rp")
        for z in range(4):
            for e in range(2):
                b("ds_read_b64_tr_b16 %s, v%d offset:%d" % (vr(KV0 + 4 * z + 2 * e, 2), RT, 1024 * z + 512 * e), tag="rr")
        return b
    def rp_store(self):
        b = L()
        b.wl("rr")
        for z in range(4):
            b("buffer_store_dwordx4 %s, v%d, %s, s%d offen sc1" % (vr(KV0 + 4 * z), RV + 2 + z, srd(sWS), s_rd[z]), tag="rs")
        return b
    def rp_signal(self):
        b = L(flat(self.poll_check(sDBG, "0", 0, "clr", 1)))
        b("s_mov_b64 exec, 1\nbuffer_atomic_add v%d, off, %s, s%d sc1\ns_mov_b64 exec, -1" % (v_one, srd(sWS), s_rsig), tag="at")
        return [G(b)]
    def clears(self):
        b = L()
        b("buffer_store_dwordx4 %s, v%d, %s, s%d offen sc1" % (vr(S0), S0 + 4, srd(sWS), s_rstep), tag="rs")
        b("buffer_store_dword v%d, v%d, %s, s%d offen sc1" % (S0, v_col4, srd(sAG), s_aggst), tag="rs")
        return [self.only("lo", b)]
    def vpoll_issue(self, tag, raw=False):
        return L()("buffer_load_dword v%d, v%d, %s, 0 offen sc1" % (v_poll, v_pl, srd(sWS)), tag=tag, raw=raw)
    def vpoll_check(self, tag, target):
        slow = self.label("slow"); back = self.label("back")
        chk = "v_cmp_gt_u32 vcc, %d, v%d\n" % (target, v_poll)
        g = L(); g.wv(tag); g(chk + "s_cbranch_vccnz %s\n%s:" % (slow, back))
        s = self.slow
        self.spin_head(s, slow)
        s.extend(self.vpoll_issue(tag, raw=True))
        s("s_waitcnt vmcnt(0)\n" + chk + "s_cbranch_vccnz %s\ns_branch %s" % (slow, back), raw=True)
        return g
    def wsignal(self, tag, sreg):
        g = L(); g.wv(tag)
        g("s_mov_b64 exec, 1\nbuffer_atomic_add v%d, off, %s, s%d sc1\ns_mov_b64 exec, -1" % (v_one, srd(sWS), sreg), tag="at")
        return [G(g)]

    def stage_of(self, g):
        if g < 40: return g // 4, g % 4
        return 10 + (g - 40) // 8, (g - 40) % 8
    def fb(self, g): return FB0 + (20 if g < 40 else 12) * (g & 1)
    def frag_reads(self, g):
        a = L()
        st, kk = self.stage_of(g)
        slot = st % 4; hi = slot >= 2; off = (slot - 2 * hi) * SLOT
        fb = self.fb(g); tag = "f%d" % g
        if g < 20:
            adr = vBA[(kk & 1) + 2 * hi]
            for t in range(5):
                a("ds_read_b128 %s, v%d offset:%d" % (vr(fb + 4 * t), adr, off + 10240 * (kk >> 1) + 1024 * t), tag=tag + "_%d" % t)
        elif g < 40:
            o = off + 5120 * kk
            for t, (adr, to) in enumerate([(0, 0), (0, 384), (1, 0), (0, 640), (0, 1024)]):
                a("ds_read_b128 %s, v%d offset:%d" % (vr(fb + 4 * t), vBA[adr + 2 * hi], o + to), tag=tag + "_%d" % t)
        else:
            o = off + 5120 * (kk >> 1) + 640 * (kk & 1)
            a("ds_read_b128 %s, v%d offset:%d" % (vr(fb), vBA[2 * hi], o), tag=tag + "_0")
            y = L()("ds_read_b128 %s, v%d" % (vr(fb + 4), vY), tag=tag + "_1")
            if g < 59: y("v_add_u32 v%d, v%d, v%d" % (vY, vY, vI2 if g == 55 else vI1 if g & 1 else vI0))
            a.append(G(y))
            a("ds_read_b128 %s, v%d offset:%d" % (vr(fb + 8), vBA[2 * hi], o + 384), tag=tag + "_2")
        return a
    def x_reads(self, sg):
        a = L(); tag = "xr%d" % sg
        for e in range(2):
            for i in range(2):
                a("ds_read_b128 %s, v%d offset:%d" % (ar(8 * (2 * sg + e) + 4 * i), vXA[e], 4096 * (sg & 3) + 2048 * i), tag=tag)
        return a
    def mfmas(self, g):
        a = L()
        if g >= 60:
            k = g - 60
            if k < 8: lst = [(ml, k, nt) for ml in range(4) for nt in range(5)]
            else: lst = [(ml, kk, nt) for ml in (1, 2, 3, 0) for kk in (8, 9) for nt in range(5)][20 * (k - 8):20 * (k - 8) + 20]
            for ml, kk, nt in lst:
                dd = ACC + 20 * ml + 4 * nt
                a("%s %s, %s, %s, %s" % (M, vr(dd), vr(AF + 16 * (kk % NAF) + 4 * ml), ar(self.c_reg(kk, nt)), vr(dd) if (kk or ml == 0) else "0"))
            return a
        ks = g % 20; fb = self.fb(g)
        if g < 20:
            for t in range(5):
                for i in range(2):
                    d = U0 + 8 * t + 4 * i
                    a("%s %s, %s, %s, %s" % (M, vr(d), ar(8 * ks + 4 * i), vr(fb + 4 * t), vr(d) if ks else "0"))
        elif g < 40:
            for t in range(5):
                for i in range(2):
                    d = KV0 + 8 * t + 4 * i
                    c0 = [vr(EPSQ), vr(EPSQ), vr(EPSX), "0", "0"][t]
                    a("%s %s, %s, %s, %s" % (M, vr(d), ar(8 * ks + 4 * i), vr(fb + 4 * t), vr(d) if ks else c0))
        else:
            for t in range(3):
                for i in range(2):
                    d = Q0 + 8 * t + 4 * i
                    a("%s %s, %s, %s, %s" % (M, vr(d), vr(fb + 4 * t), ar(8 * ks + 4 * i), vr(d) if ks else vr(EPSQ)))
        return a
    def phi8(self, a, r, tmp):
        for k in range(8): a("v_fma_f32 v%d, v%d, s%d, v%d" % (tmp + k, r + k, s_log2e, v_nel))
        for k in range(8):
            a("v_exp_f32 v%d, v%d clamp" % (tmp + k, tmp + k))
            a("v_max_f32 v%d, s%d, v%d" % (r + k, s_eps, r + k))
        for k in range(8): a("v_add_f32 v%d, v%d, v%d" % (r + k, r + k, tmp + k))
    def mk(self, b, lo, add_reg, nrec):
        if add_reg is None: t = "s_mov_b32 s%d, s%d\ns_mov_b32 s%d, s%d\n" % (b, lo, b + 1, lo + 1)
        else: t = "s_add_u32 s%d, s%d, s%d\ns_addc_u32 s%d, s%d, 0\n" % (b, lo, add_reg, b + 1, lo + 1)
        if isinstance(nrec, int): t += "s_mov_b32 s%d, 0x%x\n" % (b + 2, nrec)
        elif nrec: t += nrec + "\n"
        return t + "s_mov_b32 s%d, 0x20000\n" % (b + 3)
    def prologue(self):
        a = L()
        t0, t1, t2, t3 = vt
        a("s_cmp_ge_u32 s2, 256\ns_cbranch_scc1 L_end")
        a("s_load_dwordx16 s[16:31], s[0:1], 0\ns_load_dwordx16 s[32:47], s[0:1], 64")
        if self.stamps: a("s_memrealtime s[98:99]\ns_memtime s[100:101]")
        if self.padat == "start": a("s_memrealtime s[100:101]")
        a("s_getpc_b64 s[%d:%d]\nL_pc0:" % (sT, sT + 1))
        a("s_mov_b32 s%d, L_codeend-L_pc0\ns_mov_b32 s%d, 0x20000" % (sT + 2, sT + 3))
        a("s_lshr_b32 s%d, s2, 3\ns_lshl_b32 s%d, s%d, 10" % (s_t1, s_t2, s_t1))
        a("v_lshrrev_b32 v%d, 5, v0\nv_lshlrev_b32 v%d, 7, v%d" % (t1, t1, t1))
        a("buffer_load_dword v255, v%d, %s, s%d offen" % (t1, srd(sT), s_t2), tag="pf")
        a("v_lshrrev_b32 v%d, 6, v0\nv_and_b32 v%d, 63, v0" % (t0, v_lane))
        a("v_readfirstlane_b32 s%d, v%d" % (s_w, t0))
        tl = self.opt.get("tlb", 0)
        if tl:
            TI, TO, TA = U0 + 8, U0 + 9, U0 + 10
            a("v_min_u32 v%d, 15, v%d\nv_subrev_u32 v%d, 15, v%d\nv_max_i32 v%d, 0, v%d" % (TI, v_lane, TO, v_lane, TO, TO))
            a("v_cmp_lt_u32 vcc, 21, v%d\nv_subrev_u32 v%d, 6, v%d\nv_cndmask_b32 v%d, v%d, v%d, vcc\nv_mov_b32 v%d, 13\nv_cndmask_b32 v%d, v%d, v%d, vcc" % (v_lane, TA, TO, TO, TO, TA, TA, TI, TI, TA))
            a("v_cmp_lt_u32 vcc, 23, v%d\nv_mov_b32 v%d, 1\nv_cndmask_b32 v%d, v%d, v%d, vcc\nv_and_b32 v%d, 1, v%d\nv_mul_u32_u24 v%d, 10, v%d\nv_cndmask_b32 v%d, v%d, v%d, vcc" % (v_lane, TA, TO, TO, TA, TA, v_lane, TA, TA, TI, TI, TA))
            a("v_lshlrev_b32 v%d, 3, v%d\nv_lshlrev_b32 v%d, 21, v%d" % (TI, TI, TO, TO))
            a("global_load_dwordx2 %s, v%d, s[0:1]" % (vr(TA, 2), TI), tag="kp")
        g_, o_, b_ = s_cj, s_ci, s_cct
        a("s_lshl_b32 s%d, s%d, 8\ns_add_u32 s%d, s%d, s2\ns_mul_i32 s%d, s%d, 6554\ns_lshr_b32 s%d, s%d, 16\ns_mul_i32 s%d, s%d, 10\ns_sub_u32 s%d, s%d, s%d"
          % (g_, s_w, g_, g_, o_, g_, o_, o_, s_t0, o_, b_, g_, s_t0))
        a("s_lshl_b32 s%d, s%d, 12\ns_add_u32 s%d, s%d, %d" % (s_rlds, s_w, s_rlds, s_rlds, L_RP0))
        a("s_mul_i32 s%d, s%d, %d\ns_mul_i32 s%d, s%d, 384\ns_add_u32 s%d, s%d, s%d" % (s_am, o_, 8 * 3840, s_t0, b_, s_am, s_am, s_t0))
        a("s_mul_i32 s%d, s%d, 205\ns_lshr_b32 s%d, s%d, 10\ns_mul_i32 s%d, s%d, 5\ns_sub_u32 s%d, s%d, s%d" % (s_t0, o_, s_t0, s_t0, s_t0, s_t0, s_t2, o_, s_t0))
        a("s_add_u32 s%d, s%d, s%d\ns_mul_i32 s%d, s%d, 5120\ns_lshl_b32 s%d, s%d, 7\ns_add_u32 s%d, s%d, s%d" % (s_t0, s_t0, o_, s_t0, s_t0, s_t3, b_, s_am + 1, s_t0, s_t3))
        a("s_cmp_lt_u32 s%d, 4\ns_cselect_b32 s%d, %d, 0" % (s_t2, s_t2, 20 * 1280))
        a("s_cmp_lt_u32 s%d, 800\ns_cselect_b32 s%d, %d, 0\ns_cselect_b32 s%d, %d, 0" % (g_, sRP + 2, 7 * 3840 + 384, sR2 + 2, 27 * 1280 + 128))
        a("s_mov_b32 s%d, 0x20000\ns_mov_b32 s%d, 0x20000" % (sRP + 3, sR2 + 3))
        a("v_lshrrev_b32 v%d, 3, v%d\nv_and_b32 v%d, 7, v%d\nv_lshlrev_b32 v%d, 4, v%d" % (t0, v_lane, t3, v_lane, t1, t3))
        a("v_mul_u32_u24 v%d, 3840, v%d\nv_add_u32 v%d, v%d, v%d\nv_mul_u32_u24 v%d, 1280, v%d\nv_add_u32 v%d, v%d, v%d" % (RV, t0, RV, RV, t1, vC[0], t0, RV + 1, vC[0], t1))
        a("v_lshrrev_b32 v%d, 2, v%d\nv_mad_u32_u24 v%d, v%d, s%d, v%d" % (t1, t0, RV + 1, t1, s_t2, RV + 1))
        a("s_or_b32 s%d, s2, s%d\ns_mov_b32 s%d, s2\ns_and_b32 s%d, s%d, 1\ns_and_b32 s%d, s2, 7" % (s_a2p, s_w, s_spin, s_w1, s_w, s_t0))
        a("s_waitcnt lgkmcnt(0)")
        if self.stamps:
            a("v_writelane_b32 v0, s98, 0\nv_writelane_b32 v0, s100, 1\nv_writelane_b32 v0, s2, 63")
            self.stamp(a, "karg", level=2)
        self.stamp(a, "karg2", level=9)
        lsk = self.label("noclear")
        a("s_cmp_lg_u32 s%d, 800\ns_cbranch_scc1 %s" % (g_, lsk))
        a("v_lshlrev_b32 v%d, 7, v%d\nv_mov_b32 v%d, 0\nv_add_u32 v%d, 8192, v%d\nv_add_u32 v%d, 16384, v%d" % (U0, v_lane, U0 + 1, U0 + 2, U0, U0 + 3, U0), raw=True)
        a("global_store_dword v%d, v%d, s[46:47] sc1\nglobal_store_dword v%d, v%d, s[46:47] sc1\nglobal_store_dword v%d, v%d, s[46:47] sc1" % (U0, U0 + 1, U0 + 2, U0 + 1, U0 + 3, U0 + 1), raw=True)
        a("v_mov_b32 v%d, 1\ns_waitcnt vmcnt(0)" % v_one, raw=True)
        a("global_store_dword v%d, v%d, s[44:45] sc1" % (U0 + 1, v_one), raw=True)
        a(lsk + ":")
        a("s_add_u32 s%d, s36, s%d\ns_addc_u32 s%d, s37, 0\ns_add_u32 s%d, s38, s%d\ns_addc_u32 s%d, s39, 0" % (sRP, s_am, sRP + 1, sR2, s_am + 1, sR2 + 1))
        def touch():
            q = L(); q.wv("kp")
            q("v_add_co_u32 v%d, vcc, v%d, v%d\nv_addc_co_u32 v%d, vcc, 0, v%d, vcc\nglobal_load_dword v255, %s, off" % (TA, TA, TO, TA + 1, TA + 1, vr(TA, 2)), tag="tl")
            return q
        if tl == 1: a.extend(touch())
        if tl == 3: a.append(self.only("w3", touch()))
        a.extend(self.rp_issue())
        if tl == 2: a.extend(touch())
        if self.mapping == "8x4":
            a("s_and_b32 s%d, s%d, 1\ns_lshl_b32 s%d, s%d, 3\ns_and_b32 s%d, s%d, 7\ns_add_u32 s%d, s%d, s%d" % (s_i, s_t0, s_i, s_i, s_t2, s_t1, s_i, s_i, s_t2))
            a("s_lshr_b32 s%d, s%d, 1\ns_lshl_b32 s%d, s%d, 2\ns_lshr_b32 s%d, s%d, 3\ns_add_u32 s%d, s%d, s%d" % (s_j, s_t0, s_j, s_j, s_t2, s_t1, s_j, s_j, s_t2))
        else:
            a("s_and_b32 s%d, s%d, 3\ns_lshl_b32 s%d, s%d, 2\ns_and_b32 s%d, s%d, 3\ns_add_u32 s%d, s%d, s%d" % (s_i, s_t0, s_i, s_i, s_t2, s_t1, s_i, s_i, s_t2))
            a("s_lshr_b32 s%d, s%d, 2\ns_lshl_b32 s%d, s%d, 3\ns_lshr_b32 s%d, s%d, 2\ns_add_u32 s%d, s%d, s%d" % (s_j, s_t0, s_j, s_j, s_t2, s_t1, s_j, s_j, s_t2))
        if self.rot == "none":
            a("s_mov_b32 s%d, 0" % s_t3)
        elif self.rot == "xcd":
            tab = [0, 2, 5, 7, 5, 7, 0, 2] if self.mapping == "4x8" else [0, 5, 2, 7, 5, 0, 7, 2]
            K = sum(v << (4 * k) for k, v in enumerate(tab))
            a("s_lshl_b32 s%d, s%d, 2\ns_lshr_b32 s%d, 0x%x, s%d\ns_and_b32 s%d, s%d, 15" % (s_t3, s_t0, s_t3, K, s_t3, s_t3, s_t3))
        elif self.rot.startswith("jx"):
            mj = int(self.rot[2:] or 1)
            sh, mu = (2, 3) if self.mapping == "4x8" else (3, 5)
            if self.mapping == "4x8": a("s_lshr_b32 s%d, s%d, 2\ns_mul_i32 s%d, s%d, 5\ns_lshr_b32 s%d, s%d, 1" % (s_t3, s_i, s_t3, s_t3, s_t3, s_t3))
            else: a("s_lshr_b32 s%d, s%d, 3\ns_mul_i32 s%d, s%d, 5" % (s_t3, s_i, s_t3, s_t3))
            a("s_mul_i32 s%d, s%d, %d\ns_add_u32 s%d, s%d, s%d\ns_mul_i32 s%d, s%d, 205\ns_lshr_b32 s%d, s%d, 11\ns_mul_i32 s%d, s%d, 10\ns_sub_u32 s%d, s%d, s%d"
              % (s_t2, s_j, mj, s_t3, s_t3, s_t2, s_t2, s_t3, s_t2, s_t2, s_t2, s_t2, s_t3, s_t3, s_t2))
        elif self.rot == "r4":
            a("s_xor_b32 s%d, s%d, s%d\ns_and_b32 s%d, s%d, 1\ns_mul_i32 s%d, s%d, 5" % (s_t3, s_i, s_j, s_t3, s_t3, s_t3, s_t3))
            a("s_lshr_b32 s%d, s%d, 2\ns_xor_b32 s%d, s%d, s%d\ns_and_b32 s%d, s%d, 1\ns_lshl_b32 s%d, s%d, 1\ns_add_u32 s%d, s%d, s%d" % (s_t2, s_t0, s_t2, s_t2, s_t0, s_t2, s_t2, s_t2, s_t2, s_t3, s_t3, s_t2))
        else:
            mul = {"ij": 1, "ij2": 2, "ij3": 3}[self.rot]
            a("s_add_u32 s%d, s%d, s%d\ns_mul_i32 s%d, s%d, %d\ns_mul_i32 s%d, s%d, 205\ns_lshr_b32 s%d, s%d, 11\ns_mul_i32 s%d, s%d, 10\ns_sub_u32 s%d, s%d, s%d"
              % (s_t3, s_i, s_j, s_t3, s_t3, mul, s_t2, s_t3, s_t2, s_t2, s_t2, s_t2, s_t3, s_t3, s_t2))
        a("v_lshrrev_b32 v%d, 4, v%d" % (v_q, v_lane))
        a("s_mul_i32 s%d, s%d, %d\ns_add_u32 s%d, s%d, %d" % (s_priv, s_w, PRIV_SZ, s_priv, s_priv, PRIV))
        a("v_xor_b32 v%d, v%d, v%d\nv_lshlrev_b32 v%d, 4, v%d" % (t1, t3, v_q, t1, t1))
        a("v_and_b32 v%d, 4, v%d\ns_lshl_b32 s%d, s%d, 5\nv_add3_u32 v%d, v%d, v%d, s%d" % (t2, t0, s_t2, s_w, t2, t2, t0, s_t2))
        a("v_mul_u32_u24 v%d, 1280, v%d\nv_add_u32 v%d, v%d, v%d" % (t2, t2, vDX[0], t2, t1))
        a("v_xor_b32 v%d, 64, v%d\nv_add_u32 v%d, %d, v%d" % (vDX[1], vDX[0], vDX[1], 16 * 1280 - 1024, vDX[1]))
        a("v_add_u32 v%d, %d, v%d\nv_add_u32 v%d, %d, v%d" % (vDX[2], 4 * 1280 - 2048, vDX[0], vDX[3], 4 * 1280 - 2048, vDX[1]))
        a("s_mul_i32 s%d, s%d, 163840\ns_lshl_b32 s%d, s%d, 7" % (s_t0, s_i, s_rx, s_t3)); a(self.mk(sX, 16, s_t0, 163840))
        a.extend(self.dma_x(0))
        a("s_cmp_lt_u32 s%d, 2\ns_cselect_b32 s22, s22, s24\ns_cselect_b32 s23, s23, s25\ns_cselect_b32 s26, s26, s28\ns_cselect_b32 s27, s27, s29" % s_w)
        a("s_mul_i32 s%d, s%d, 51200" % (s_t1, s_j)); a(self.mk(sB, 22, s_t1, 51200))
        a("s_mul_i32 s%d, s%d, 10240\ns_lshr_b32 s%d, s%d, 1\ns_mul_i32 s%d, s%d, 5120\ns_add_u32 s%d, s%d, s%d"
          % (s_bm0, s_w1, s_t1, s_w, s_t2, s_t1, s_bm0, s_bm0, s_t2))
        a("s_lshl_b32 s%d, s%d, 6\ns_lshl_b32 s%d, s%d, 7\ns_add_u32 s%d, s%d, s%d" % (s_t1, s_t1, s_t2, s_w1, s_rbb, s_rx, s_t2))
        a("v_add_u32 v%d, v%d, v%d\nv_xor_b32 v%d, s%d, v%d" % (vC[0], vC[0], t1, vDW[0], s_t1, vC[0]))
        for t in range(1, 5):
            a("v_add_u32 v%d, %d, v%d" % (vDW[t], 10240 * t - (1024 * t if t < 4 else 0), vDW[0]))
        a("s_mul_i32 s%d, s%d, 40\nv_min_u32 v%d, 39, v%d\nv_add_lshl_u32 v%d, v%d, s%d, 1" % (s_t1, s_j, TT + 9, v_lane, t1, TT + 9, s_t1))
        a("global_load_ushort v%d, v%d, s[18:19]" % (TT, t1), tag="par")
        a("global_load_ushort v%d, v%d, s[20:21]" % (TT + 1, t1), tag="par")
        a("global_load_ushort v%d, v%d, s[30:31]" % (TT + 2, t1), tag="par")
        order = self.opt.get("order", 1)
        if order == 0: a.extend(self.dma_w(0))
        self.stamp(a, "iss0", level=2)
        c = a
        c("v_lshlrev_b32 v%d, 4, v%d\nv_and_b32 v%d, 15, v%d" % (v_l16, v_lane, v_n, v_lane))
        c(self.mk(sWS, 46, None, 0x10000000 if self.stamps else 0x1000000))
        c(self.mk(sDBG, 44, None, 256))
        c("s_and_b32 s%d, s%d, 7\ns_lshr_b32 s%d, s%d, 3\ns_mul_i32 s%d, s%d, 5120" % (s_ct, s_j, s_rb, s_j, s_wm0, s_w))
        kvo, qo = s_qb, s_wob
        c("s_lshl_b32 s%d, s%d, 1\ns_and_b32 s%d, s%d, 6\ns_bfe_u32 s%d, s%d, 0x10002\ns_or_b32 s%d, s%d, s%d\ns_andn2_b32 s%d, s%d, 7\ns_or_b32 s%d, s%d, s%d"
          % (s_t0, o_, s_t0, s_t0, s_t1, o_, s_t0, s_t0, s_t1, s_t1, o_, s_t0, s_t0, s_t1))
        c("s_mul_i32 s%d, s%d, 640\ns_add_u32 s%d, s%d, %d\ns_mul_i32 s%d, s%d, 1280\ns_add_u32 s%d, s%d, %d\ns_add_u32 s%d, s%d, %d"
          % (qo, s_t0, qo, qo, W_QI, kvo, o_, s_rd[3], kvo, W_WOI, kvo, kvo, W_KVI - 640))
        c("s_mul_i32 s%d, s%d, 3" % (s_t2, b_))
        for z in range(4):
            d_ = RV + 2 + z
            if z < 3:
                c("s_add_u32 s%d, s%d, %d\ns_mul_i32 s%d, s%d, 26\ns_lshr_b32 s%d, s%d, 8\ns_mul_i32 s%d, s%d, 640\ns_lshl_b32 s%d, s%d, 6\ns_sub_u32 s%d, s%d, s%d"
                  % (s_t0, s_t2, z, s_t1, s_t0, s_t1, s_t1, s_t1, s_t1, s_t0, s_t0, s_t0, s_t0, s_t1))
                c("s_add_u32 s%d, s%d, s%d\ns_cmp_eq_u32 s%d, 0\ns_cselect_b32 s%d, s%d, s%d\ns_cselect_b32 s%d, 0, 51200\ns_add_u32 s%d, s%d, %d"
                  % (s_rd[z], kvo, s_t1, s_t1, s_rd[z], qo, s_rd[z], s_t1, s_t1, s_t1, 51200 - 640))
                c("v_add_u32 v%d, s%d, v%d\nv_mul_u32_u24 v%d, 1639, v%d\nv_lshrrev_b32 v%d, 16, v%d\nv_lshlrev_b32 v%d, 4, v%d\nv_mad_u32_u24 v%d, v%d, s%d, v%d"
                  % (t0, s_t0, v_lane, t1, t0, t1, t1, t0, t0, d_, t1, s_t1, t0))
            else:
                c("s_lshl_b32 s%d, s%d, 6\ns_mov_b32 s%d, %d" % (s_t0, b_, s_t1, 102400 - 1280))
                c("v_add_u32 v%d, s%d, v%d\nv_mul_u32_u24 v%d, 1639, v%d\nv_lshrrev_b32 v%d, 17, v%d\nv_lshlrev_b32 v%d, 4, v%d\nv_mad_u32_u24 v%d, v%d, s%d, v%d"
                  % (t0, s_t0, v_lane, t1, t0, t1, t1, t0, t0, d_, t1, s_t1, t0))
        c("s_lshr_b32 s%d, s%d, 1\ns_lshl_b32 s%d, s%d, 7\ns_add_u32 s%d, s%d, %d" % (s_rsig, o_, s_rsig, s_rsig, s_rsig, s_rsig, C_IMG))
        c("s_cmp_lt_u32 s%d, 800" % g_)
        for r in s_rd + [s_rsig]: c("s_cselect_b32 s%d, s%d, 0x70000000" % (r, r))
        c("v_and_b32 v%d, 3, v%d\nv_lshl_add_u32 v%d, v%d, 2, v%d" % (t0, v_lane, t0, v_q, t0))
        c("v_bfe_u32 v%d, v%d, 2, 2\nv_lshlrev_b32 v%d, 7, v%d\nv_lshl_add_u32 v%d, v%d, 3, v%d" % (t1, v_lane, t1, t1, t0, t0, t1))
        c("v_add_u32 v%d, s%d, v%d\nv_mov_b32 v%d, 1" % (RT, s_rlds, t0, v_one))
        if order == 1: a.extend(self.dma_w(0))
        self.rsl = self.opt.get("rsl", 1)
        if not self.rsl:
            a.extend(self.rp_read()); a.extend(self.rp_store())
        c("v_lshrrev_b32 v%d, 1, v%d\nv_xor_b32 v%d, v%d, v%d\nv_lshlrev_b32 v%d, 4, v%d" % (t0, v_n, t0, t0, v_q, t0, t0))
        c("v_lshl_add_u32 v%d, v%d, 7, v%d" % (t1, v_n, t0))
        c("v_add_u32 v%d, s%d, v%d\nv_xor_b32 v%d, 64, v%d" % (vXA[0], s_priv, t1, vXA[1], vXA[0]))
        c("v_lshrrev_b32 v%d, 3, v%d\nv_mul_u32_u24 v%d, %d, v%d" % (t3, v_n, t3, 5120 - 1024, t3))
        c("v_add_u32 v%d, v%d, v%d\nv_xor_b32 v%d, 64, v%d" % (vBA[0], t1, t3, vBA[1], vBA[0]))
        c("v_add_u32 v%d, %d, v%d\nv_add_u32 v%d, %d, v%d" % (vBA[2], 2 * SLOT, vBA[0], vBA[3], 2 * SLOT, vBA[1]))
        c("s_lshl_b32 s%d, s%d, 1\ns_add_u32 s%d, s%d, s%d\ns_mul_i32 s%d, s%d, 1600\ns_mov_b32 s%d, 0x40000" % (s_t2, s_spin, s_t2, s_t2, s_w1, s_t2, s_t2, s_spin))
        c("v_min_u32 v%d, 12, v%d\nv_lshl_add_u32 v%d, v%d, 7, s%d" % (t0, v_lane, v_ct, t0, s_t2))
        c(self.mk(sT, 26, None, 819200))
        c = late2 = L()
        c("s_mov_b32 s%d, 0x%x\ns_mov_b32 s%d, 0x%x" % (s_log2e, LOG2E, s_eps, EPS))
        c("v_xor_b32 v%d, 64, v%d\nv_add_u32 v%d, %d, v%d" % (vC[1], vC[0], vC[1], 8 * 1280 - 1024, vC[1]))
        c("s_mul_i32 s%d, s%d, 51200\ns_add_u32 s%d, s%d, %d\ns_mul_i32 s%d, s%d, 102400\ns_add_u32 s%d, s%d, %d" % (s_qb, s_j, s_qb, s_qb, W_QI, s_wob, s_ct, s_wob, s_wob, W_WOI))
        c("s_mul_i32 s%d, s%d, 102400\ns_add_u32 s%d, s%d, %d" % (s_kvi, s_j, s_kvi, s_kvi, W_KVI))
        c("v_lshlrev_b32 v%d, 7, v%d\nv_add_u32 v%d, %d, v%d" % (v_pl, TT + 9, v_pl, C_IMG, v_pl))
        c("s_lshl_b32 s%d, s%d, 6\nv_add_u32 v%d, s%d, v%d\nv_add_u32 v%d, 64, v%d\nv_min_u32 v%d, v%d, v%d\nv_lshlrev_b32 v%d, 2, v%d" % (s_t2, s_w1, t2, s_t2, v_lane, t1, v_n, t2, t2, t1, v_col4, t2))
        c("s_lshl_b32 s%d, s%d, 13\ns_add_u32 s%d, s%d, %d" % (s_t1, s_j, s_t1, s_t1, W_AGG)); c.append(grp(self.mk(sAG, 46, s_t1, 8192)))
        c("s_sub_u32 s%d, 15, s%d\ns_lshl_b32 s%d, s%d, 9" % (s_aggst, s_i, s_aggst, s_aggst))
        c("s_lshl_b32 s%d, s%d, 2\ns_add_u32 s%d, s%d, s%d\ns_lshl_b32 s%d, s%d, 13\ns_add_u32 s%d, s%d, %d" % (s_kvpld, s_j, s_kvpld, s_kvpld, s_w, s_kvpld, s_kvpld, s_kvpld, s_kvpld, W_KVP))
        c("s_lshl_b32 s%d, s%d, 9\ns_add_u32 s%d, s%d, s%d" % (s_kvpst, s_i, s_kvpst, s_kvpst, s_kvpld))
        for k in range(4): c("v_mov_b32 v%d, -1" % (S0 + k))
        c("v_and_b32 v%d, 32, v%d\nv_mul_u32_u24 v%d, 240, v%d\nv_add_u32 v%d, v%d, v%d" % (S0 + 4, v_lane, S0 + 4, S0 + 4, S0 + 4, S0 + 4, v_l16))
        c("s_lshl_b32 s%d, s%d, 13\ns_add_u32 s%d, s%d, s%d" % (s_rstep, s_w, s_rstep, s_rstep, s_kvpst))
        c("s_lshl_b32 s%d, s%d, 7" % (s_cj, s_j))
        s2 = list(self.setup2())
        ip = [k for k, x in enumerate(s2) if not isinstance(x, G) and x.kind == "waitvm"][0]
        B1 = list(late2) + s2[:ip] + list(self.late_addr())
        self.partC = s2[ip:] + list(self.setup3())
        nb = len(B1) * self.opt.get("pb", 30) // 100
        a.extend(flat(B1[:nb])); self.partB = B1[nb:]
        self.stamp(a, "setup", level=2)
        self.first = L()
        if self.opt.get("ct", 0) == 0: self.first("buffer_load_dword v255, v%d, %s, 0 offen" % (v_ct, srd(sT)), tag="ct")
        self.first.extend(self.dma_x(1))
        self.pc = list(self.poll_issue(sDBG, "0", 0, "clr"))
        self.second = list(self.dma_x(2)) + list(self.dma_w(1)) + list(self.dma_x(3))
        return a

    def setup2(self):
        a = L()
        t0 = vt[0]
        a.append(grp("s_mul_i32 s%d, s%d, 640\ns_mul_i32 s%d, s%d, 102400\ns_add_u32 s%d, s%d, s%d\n" % (s_t2, s_w1, s_t1, s_ct, s_t1, s_t1, s_t2)
                     + self.mk(sC, 26, s_t1, "s_sub_u32 s%d, 102400, s%d" % (sC + 2, s_t2))))
        a("s_lshl_b32 s%d, s%d, 1\ns_add_u32 s%d, s%d, s%d\ns_mul_i32 s%d, s%d, 163840\ns_mul_i32 s%d, s%d, 320\ns_add_u32 s%d, s%d, s%d\n"
          % (s_t1, s_i, s_t1, s_t1, s_rb, s_t1, s_t1, s_t2, s_ct, s_t1, s_t1, s_t2))
        a.append(grp(self.mk(sOUT, 42, s_t1, "s_sub_u32 s%d, 163840, s%d" % (sOUT + 2, s_t2))))
        a("s_lshr_b32 s%d, s%d, 1\ns_mul_i32 s%d, s%d, 10240\ns_mul_i32 s%d, s%d, 80\ns_add_u32 s%d, s%d, s%d" % (s_t2, s_w, s_t2, s_t2, s_rk, s_rx, s_rk, s_rk, s_t2))
        a("s_mul_i32 s%d, s%d, 40\ns_add_u32 s%d, s%d, s%d" % (s_rq, s_rx, s_rq, s_rq, s_wm0))
        a("s_add_u32 s%d, s%d, 512\ns_add_u32 s%d, s%d, 4608" % (s_aggld, s_aggst, s_aggld2, s_aggst))
        a.append(grp("s_cmp_lt_u32 s%d, 2\ns_cselect_b32 s40, s40, s32\ns_cselect_b32 s41, s41, s33\n" % s_w + self.mk(sRP, 40, None, 1280)))
        a("s_lshl_b32 s%d, s%d, 10\ns_add_u32 s%d, s%d, s%d\ns_mul_i32 s%d, s%d, 160\ns_add_u32 s%d, s%d, %d" % (s_t2, s_w1, s_t1, s_t2, s_rx, s_t0, s_ct, s_rlds, s_t2, M_GATE))
        a.append(grp("s_add_u32 s%d, s%d, %d\ns_cmp_lt_u32 s%d, 2\ns_cselect_b32 s%d, s%d, s%d\ns_cselect_b32 s%d, s%d, s%d" % (s_t2, s_t2, M_DSK, s_w, s_t1, s_t1, s_t0, s_rlds, s_rlds, s_t2)))
        a("v_add_u32 v%d, s%d, v%d" % (RB, s_t1, v_l16))
        a("v_subrev_u32 v%d, 1280, v%d\nv_min_u32 v%d, v%d, v%d" % (t0, RB, RB, RB, t0))
        a("s_lshl_b32 s%d, s%d, 10\ns_add_u32 s%d, s%d, 8192" % (s_ci, s_i, s_ci, s_ci))
        a("s_lshr_b32 s%d, s%d, 1\ns_lshl_b32 s%d, s%d, 7\ns_add_u32 s%d, s%d, s%d" % (s_t2, s_w, s_t2, s_t2, s_hs, s_ci, s_t2))
        a("s_lshl_b32 s%d, s%d, 7\ns_add_u32 s%d, s%d, s%d" % (s_t1, s_rb, s_hp, s_ci, s_t1))
        a("s_add_u32 s%d, s%d, s%d\ns_add_u32 s%d, s%d, s%d\ns_add_u32 s%d, s%d, %d" % (s_op, s_hp, s_t1, s_op, s_op, s_t2, s_op, s_op, C_O))
        a("s_lshl_b32 s%d, s%d, 7\ns_add_u32 s%d, s%d, s%d\ns_add_u32 s%d, s%d, %d" % (s_t2, s_w, s_os, s_ci, s_t2, s_os, s_os, C_O))
        a("s_add_u32 s%d, s%d, s%d" % (s_woi, s_wob, s_wm0))
        a("s_mul_i32 s%d, s%d, 5120\ns_add_u32 s%d, s%d, s%d" % (s_t2, s_w1, s_kvi, s_kvi, s_t2))
        a("s_lshl_b32 s%d, s%d, 2\ns_add_u32 s%d, s%d, s%d\ns_mul_i32 s%d, s%d, %d\ns_mul_i32 s%d, s%d, 1280\ns_add_u32 s%d, s%d, s%d\ns_add_u32 s%d, s%d, %d"
          % (s_t2, s_i, s_t2, s_t2, s_w, s_t2, s_t2, 2 * TSTR, s_t1, s_j, s_t2, s_t2, s_t1, s_a2p, s_t2, W_A2))
        a.append(grp("s_cmp_lt_u32 s%d, 2\ns_cselect_b64 s[%d:%d], -1, 0" % (s_w, s_lo2, s_lo2 + 1)))
        a.wv("par")
        Lr, Li, dt, e1, c1, s1, x0, x1 = [TT + k for k in range(8)]
        pa, pb, pc1, pc2, zr, rv, a8, b8, a128, b128 = [TT + 10 + k for k in range(10)]
        a("v_lshlrev_b32 v%d, 16, v%d\nv_lshlrev_b32 v%d, 16, v%d\nv_lshlrev_b32 v%d, 16, v%d" % (Lr, Lr, Li, Li, dt, dt))
        a("v_mul_f32 v%d, s%d, v%d\nv_exp_f32 v%d, v%d" % (dt, s_log2e, dt, dt, dt))
        a("v_mul_u32_u24 v%d, 48, v%d\nv_add_u32 v%d, %d, v%d" % (t0, TT + 9, t0, M_PARAM, t0))
        a("v_cvt_pk_bf16_f32 v%d, v%d, v%d\nv_lshlrev_b32 v%d, 16, v%d" % (dt, dt, dt, dt, dt))
        a("v_mul_f32 v%d, v%d, v%d\nv_mul_f32 v%d, s%d, v%d" % (zr, dt, Lr, zr, s_log2e, zr))
        a("v_mul_f32 v%d, v%d, v%d\nv_mul_f32 v%d, 0.15915494, v%d" % (rv, dt, Li, rv, rv))
        def power(k, da, db):
            if k == 1:
                a("v_exp_f32 v%d, v%d\nv_fract_f32 v%d, v%d" % (e1, zr, x0, rv))
            else:
                a("v_mul_f32 v%d, 0x%x, v%d\nv_exp_f32 v%d, v%d" % (e1, f2u(float(k)), zr, e1, e1))
                a("v_mul_f32 v%d, 0x%x, v%d\nv_fract_f32 v%d, v%d" % (x0, f2u(float(k)), rv, x0, x0))
            a("v_cos_f32 v%d, v%d\nv_sin_f32 v%d, v%d" % (c1, x0, s1, x0))
            a("v_mul_f32 v%d, v%d, v%d\nv_mul_f32 v%d, v%d, v%d" % (da, e1, c1, db, e1, s1))
        power(8, a8, b8); power(128, a128, b128); power(1, pa, pb)
        a("v_add_f32 v%d, -1.0, v%d" % (x0, pa))
        a("v_mul_f32 v%d, v%d, v%d\nv_fmac_f32 v%d, v%d, v%d\nv_rcp_f32 v%d, v%d" % (x1, Lr, Lr, x1, Li, Li, x1, x1))
        a("v_mul_f32 v%d, v%d, v%d\nv_fmac_f32 v%d, v%d, v%d" % (pc1, x0, Lr, pc1, pb, Li))
        a("v_mul_f32 v%d, v%d, v%d\nv_fma_f32 v%d, -v%d, v%d, v%d" % (pc2, x0, Li, pc2, pb, Lr, pc2))
        a("v_add_f32 v%d, v%d, v%d" % (x1, x1, x1))
        a("v_mul_f32 v%d, v%d, v%d\nv_mul_f32 v%d, v%d, v%d" % (pc1, pc1, x1, pc2, pc2, x1))
        a("ds_write_b128 v%d, %s\nds_write_b128 v%d, %s offset:16\nds_write_b64 v%d, %s offset:32" % (t0, vr(pa), t0, vr(zr), t0, vr(a128, 2)), tag="pw")
        return a
    def setup3(self):
        a = L()
        t0, kf, sg, t3 = vt
        a("v_and_b32 v%d, 7, v%d\nv_mul_u32_u24 v%d, 48, v%d\nv_add_u32 v%d, %d, v%d" % (t0, v_n, t0, t0, t0, M_PARAM, t0))
        for t in range(5):
            a("ds_read_b128 %s, v%d offset:%d" % (vr(PR0 + 6 * t), t0, 384 * t), tag="pr")
            a("ds_read_b64 %s, v%d offset:%d" % (vr(PR0 + 6 * t + 4, 2), t0, 384 * t + 16), tag="pr")
        a("v_lshrrev_b32 v%d, 6, v%d\nv_mul_u32_u24 v%d, 384, v%d\nv_add_u32 v%d, v%d, v%d" % (t3, v_col4, t3, t3, t3, t3, t0))
        a("ds_read_b64 %s, v%d offset:24\nds_read_b64 %s, v%d offset:32" % (vr(vA8, 2), t3, vr(vA128, 2), t3), tag="pr")
        a.append(grp("s_lshl_b32 s%d, s%d, 5\nv_lshl_add_u32 v%d, v%d, 3, s%d" % (s_t0, s_w, kf, v_q, s_t0)))
        a("v_cvt_f32_u32 v%d, v%d" % (kf, kf))
        a("v_and_b32 v%d, 8, v%d\nv_lshlrev_b32 v%d, 28, v%d\nv_xor_b32 v%d, v%d, v%d" % (sg, v_n, sg, sg, t3, sg, kf))
        for k in range(4): a("v_mov_b32 v%d, s%d" % (EPSQ + k, s_eps))
        a("v_cmp_gt_u32 vcc, 8, v%d" % v_n)
        for k in range(4): a("v_cndmask_b32 v%d, 0, v%d, vcc" % (EPSX + k, EPSQ))
        a.wl("pr")
        R = range(5)
        z = lambda t: PR0 + 6 * t + 4
        for t in R: a("v_mul_f32 v%d, v%d, v%d\nv_mul_f32 v%d, v%d, v%d" % (z(t), z(t), kf, z(t) + 1, z(t) + 1, t3))
        for t in R: a("v_exp_f32 v%d, v%d\nv_fract_f32 v%d, v%d" % (z(t), z(t), z(t) + 1, z(t) + 1))
        for t in R: a("v_cos_f32 v%d, v%d\nv_sin_f32 v%d, v%d" % (TT + 2 * t, z(t) + 1, TT + 2 * t + 1, z(t) + 1))
        for t in R: a("v_xor_b32 v%d, v%d, v%d\nv_xor_b32 v%d, v%d, v%d" % (z(t) - 3, z(t) - 3, sg, z(t) - 2, z(t) - 2, sg))
        for t in R: a("v_mul_f32 v%d, v%d, v%d\nv_mul_f32 v%d, v%d, v%d" % (TT + 2 * t, TT + 2 * t, z(t), TT + 2 * t + 1, TT + 2 * t + 1, z(t)))
        for t in R: a("v_mul_f32 v%d, v%d, v%d\nv_mul_f32 v%d, v%d, v%d" % (z(t), z(t) - 2, TT + 2 * t, z(t) + 1, z(t) - 1, TT + 2 * t))
        for t in R: a("v_fmac_f32 v%d, v%d, v%d\nv_fma_f32 v%d, -v%d, v%d, v%d" % (z(t), z(t) - 1, TT + 2 * t + 1, z(t) + 1, z(t) - 2, TT + 2 * t + 1, z(t) + 1))
        a("v_xor_b32 v%d, v%d, v%d\nv_xor_b32 v%d, v%d, v%d" % (vB8, vB8, sg, vB128, vB128, sg))
        return a
    def calc_kvaddr(self):
        a = L(); t0 = vt[0]
        a("v_mul_u32_u24 v%d, 1280, v%d\nv_lshl_add_u32 v%d, v%d, 4, v%d" % (vBA[0], v_q, vBA[0], v_n, vBA[0]))
        a("v_and_b32 v%d, 8, v%d\nv_lshl_add_u32 v%d, v%d, 6, v%d\nv_add_u32 v%d, 256, v%d" % (t0, v_n, vBA[1], t0, vBA[0], vBA[1], vBA[1]))
        a("v_add_u32 v%d, %d, v%d\nv_add_u32 v%d, %d, v%d" % (vBA[2], 2 * SLOT, vBA[0], vBA[3], 2 * SLOT, vBA[1]))
        return a
    def late_addr(self):
        a = L()
        t0, t1, t2, t3 = vt
        a("v_mul_u32_u24 v%d, 80, v%d\nv_add_u32 v%d, %d, v%d" % (t0, v_n, v_crd, M_S + 8, t0))
        a("v_lshl_add_u32 v%d, v%d, 2, v%d" % (t0, v_q, t0))
        a("s_lshl_b32 s%d, s%d, 4\ns_add_u32 s%d, s%d, %d\nv_add_u32 v%d, s%d, v%d" % (s_t0, s_w, s_t0, s_t0, M_S + 12, v_sad, s_t0, t0))
        a("v_mul_u32_u24 v%d, 20, v%d\nv_add_u32 v%d, %d, v%d" % (v_srow, v_col4, v_srow, M_S, v_srow))
        a.append(grp("s_cmp_lt_u32 s%d, 2\ns_cselect_b32 s%d, 8, 4\nv_add_u32 v%d, s%d, v%d" % (s_w, s_t0, v_cwr, s_t0, v_srow)))
        a("v_and_b32 v%d, 3, v%d\nv_lshlrev_b32 v%d, 8, v%d" % (t1, v_lane, t1, t1))
        a("v_and_b32 v%d, 44, v%d\nv_lshl_add_u32 v%d, v%d, 2, v%d" % (t2, v_lane, t1, t2, t1))
        a("v_and_b32 v%d, 16, v%d\nv_lshrrev_b32 v%d, 1, v%d" % (t2, v_lane, t2, t2))
        a("s_add_u32 s%d, s%d, %d\nv_add_u32 v%d, s%d, v%d\nv_add3_u32 v%d, v%d, v%d, s%d" % (s_t0, s_priv, P_HT, v_htw, s_t0, v_l16, v_htr, t1, t2, s_t0))
        a("v_and_b32 v%d, 1, v%d\nv_mul_u32_u24 v%d, %d, v%d" % (t2, v_q, t2, TSTR, t2))
        a("v_lshrrev_b32 v%d, 1, v%d\nv_mul_u32_u24 v%d, 20480, v%d" % (t3, v_q, t3, t3))
        a("v_lshlrev_b32 v%d, 4, v%d\nv_add3_u32 v%d, v%d, v%d, v%d" % (t0, v_n, v_hst, t2, t3, t0))
        a("s_lshl_b32 s%d, s%d, 12\ns_add_u32 s%d, s%d, %d\nv_add_u32 v%d, s%d, v%d" % (s_t0, s_w, s_t0, s_t0, L_KVR, v_kvw, s_t0, v_l16))
        a("v_mov_b32 v%d, 0\nv_mov_b32 v%d, 0x%x" % (v_zero, v_nel, NEL))
        a("s_lshl_b32 s%d, s%d, 1\ns_add_u32 s%d, s%d, s%d\ns_mul_i32 s%d, s%d, %d\ns_add_u32 s%d, s%d, %d" % (s_t1, s_i, s_t1, s_t1, s_rb, s_t1, s_t1, 4 * TSTR, s_t1, s_t1, W_A2))
        a("s_mul_i32 s%d, s%d, %d\ns_add_u32 s%d, s%d, s%d\ns_add_u32 s%d, s%d, 40960\ns_add_u32 s%d, s%d, 16384" % (s_t2, s_w, TSTR, s_ao, s_t1, s_t2, s_ao, s_ao, s_ao2, s_ao))
        a("s_mul_i32 s%d, s%d, 10240\ns_add_u32 s%d, s%d, s%d" % (s_t2, s_w, s_t1, s_t1, s_t2))
        for ml in range(4):
            a("s_add_u32 s%d, s%d, %d\ns_and_b32 s%d, s%d, 3\ns_mul_i32 s%d, s%d, %d\ns_add_u32 s%d, s%d, s%d" % (s_t2, s_w, ml, s_t2, s_t2, s_t2, s_t2, TSTR, s_am + ml, s_t2, s_t1))
        a("v_cmp_gt_u32 vcc, 8, v%d" % v_n)
        a("v_mul_u32_u24 v%d, 1280, v%d\nv_add3_u32 v%d, v%d, v%d, v%d" % (t1, v_q, t1, t1, t0, v_zero))
        a("v_add_u32 v%d, %d, v%d\nv_lshlrev_b32 v%d, 4, v%d\nv_add_u32 v%d, %d, v%d" % (t1, 2 * SLOT + 256, t1, t2, v_q, t2, M_GATE, t2))
        a("v_cndmask_b32 v%d, v%d, v%d, vcc" % (vY, t2, t1))
        for r, val in ((vI0, 640), (vI1, 4480), (vI2, (4480 - 4 * SLOT) & 0xffffffff)):
            a("v_mov_b32 v%d, 0x%x\nv_cndmask_b32 v%d, 64, v%d, vcc" % (t1, val, r, t1))
        return a

    def pass1(self):
        a = L()
        prev = [U0 + 8 * t for t in range(5)]
        for j8 in range(1, 8):
            cur = [TT + 5 * (j8 & 1) + t for t in range(5)]
            for t in range(5): a("v_fma_f32 v%d, v%d, v%d, v%d" % (cur[t], PR0 + 6 * t, prev[t], U0 + 8 * t + j8))
            for t in range(5): a("v_fmac_f32_dpp v%d, -v%d, v%d %s" % (cur[t], prev[t], PR0 + 6 * t + 1, DPP))
            prev = cur
        for t in range(5): a("ds_write_b32 v%d, v%d offset:%d" % (v_sad, prev[t], 4 + 1280 * t), tag="sw")
        return a
    def sread(self):
        a = L()
        for k in range(4): a("ds_read_b128 %s, v%d offset:%d" % (vr(S0 + 4 * k), v_srow, 16 + 16 * k), tag="sr")
        return a
    def horner1(self):
        a = L()
        a.wl("sr")
        for k in range(1, 16):
            a.append(grp("v_fmac_f32 v%d, v%d, v%d\nv_fmac_f32_dpp v%d, -v%d, v%d %s" % (S0 + k, vA8, S0 + k - 1, S0 + k, S0 + k - 1, vB8, DPP)))
        a("v_min_u32 v%d, -2, v%d" % (S0 + 15, S0 + 15))
        a("buffer_store_dword v%d, v%d, %s, s%d offen sc1" % (S0 + 15, v_col4, srd(sAG), s_aggst), tag="aggst")
        return a
    def eback(self):
        b = L()
        b("ds_write_b32 v%d, v%d offset:12" % (v_srow, v_zero), tag="ew")
        for k in range(4): b("ds_write_b128 v%d, %s offset:%d" % (v_srow, vr(S0 + 4 * k), 16 + 16 * k), tag="ew")
        return [self.only("hi", b)]
    def coef(self):
        a = L()
        for j8 in range(8):
            for t in range(5): a("v_mul_f32_dpp v%d, v%d, v%d %s" % (TT + 16 + t, U0 + 8 * t + j8, PR0 + 6 * t + 3, DPP))
            for t in range(5):
                u = U0 + 8 * t + j8
                a("v_fma_f32 v%d, v%d, v%d, v%d" % (u, u, PR0 + 6 * t + 2, TT + 16 + t))
        return a
    def te_rd(self):
        a = L()
        for t in range(5): a("ds_read_b32 v%d, v%d offset:%d" % (TE + t, v_sad, 1280 * t), tag="er")
        return a
    def te(self):
        a = L()
        a.wl("er")
        for t in range(5): a("v_mul_f32_dpp v%d, v%d, v%d %s" % (TT + 16 + t, TE + t, PR0 + 6 * t + 3, DPP))
        for t in range(5): a("v_fma_f32 v%d, v%d, v%d, v%d" % (TE + t, TE + t, PR0 + 6 * t + 2, TT + 16 + t))
        return a
    def agg_loads(self, raw=False):
        a = L()
        for m in range(14, -1, -1):
            a("buffer_load_dword v%d, v%d, %s, s%d offen offset:%d sc1" % (TT + m, v_col4, srd(sAG), s_aggld if m < 8 else s_aggld2, 512 * (m & 7)), tag="ag", raw=raw)
        if raw: return a
        return [self.only("lo", a[:8]), self.only("lo", a[8:])]
    def agg_chk(self, raw=False):
        a = L(); c = TT + 15
        a("v_max3_u32 v%d, v%d, v%d, v%d" % (c, TT, TT + 1, TT + 2), raw=raw)
        for m in range(3, 15, 2): a("v_max3_u32 v%d, v%d, v%d, v%d" % (c, c, TT + m, TT + m + 1), raw=raw)
        return a
    def horner2(self):
        a = L()
        slow = self.label("slow"); back = self.label("back")
        a.wv("ag")
        a.extend(self.agg_chk())
        a.append(grp("v_cmp_eq_u32 vcc, -1, v%d\ns_and_b64 vcc, vcc, s[%d:%d]\ns_cbranch_scc1 %s\n%s:" % (TT + 15, s_lo2, s_lo2 + 1, slow, back)))
        s = self.slow
        self.spin_head(s, slow)
        s.extend(self.agg_loads(raw=True)); s("s_waitcnt vmcnt(0)", raw=True); s.extend(self.agg_chk(raw=True))
        s("v_cmp_eq_u32 vcc, -1, v%d\ns_cbranch_vccnz %s\ns_branch %s" % (TT + 15, slow, back), raw=True)
        for m in range(13, -1, -1):
            a.append(grp("v_fmac_f32 v%d, v%d, v%d\nv_fmac_f32_dpp v%d, -v%d, v%d %s" % (TT + m, vA128, TT + m + 1, TT + m, TT + m + 1, vB128, DPP)))
        a("ds_write_b32 v%d, v%d" % (v_cwr, TT), tag="cw")
        return a
    def pass2(self):
        a = L()
        for t in range(5): a("ds_read_b32 v%d, v%d offset:%d" % (TT + t, v_crd, 1280 * t), tag="ir")
        for k in range(1, 4): a("v_add_u32 v%d, %d, v%d" % (vL4[k], 4096 * k, v_l16))
        a("v_lshlrev_b32 v%d, 3, v%d" % (v_l8, v_lane))
        a.delay(3)
        a.wl("ir")
        for t in range(5): a("v_fmac_f32 v%d, v%d, v%d" % (TE + t, PR0 + 6 * t + 4, TT + t))
        for t in range(5): a("v_fmac_f32_dpp v%d, v%d, v%d %s" % (TE + t, TT + t, PR0 + 6 * t + 5, DPP))
        def chain(t):
            c = []
            prev = TE + t
            for j8 in range(8):
                cur = U0 + 8 * t + j8
                c.append("v_fmac_f32 v%d, v%d, v%d\nv_fmac_f32_dpp v%d, v%d, v%d %s" % (cur, PR0 + 6 * t, prev, cur, prev, PR0 + 6 * t + 1, DPP))
                prev = cur
            return c
        def fin(t):
            u0 = U0 + 8 * t; f = L()
            for k in range(4): f("v_cvt_pk_bf16_f32 v%d, v%d, v%d" % (u0 + k, u0 + 2 * k, u0 + 2 * k + 1))
            f("ds_write_b128 v%d, %s offset:%d" % (v_htw, vr(u0), 1024 * t), tag="hw")
            for e in range(2):
                f("ds_read_b64_tr_b16 %s, v%d offset:%d" % (vr(u0 + 4 + 2 * e, 2), v_htr, 1024 * t + 64 * e), tag="hr%d" % t)
            return f
        def st(t):
            f = L(); f.wl("hr%d" % t)
            f("buffer_store_dwordx4 %s, v%d, %s, s%d offen offset:%d sc1" % (vr(U0 + 8 * t + 4), v_hst, srd(sWS), s_a2p, 256 * t), tag="hst")
            return f
        for t in range(6):
            ch = [grp(x) for x in chain(t)] if t < 5 else []
            fi = list(fin(t - 1)) if t >= 1 else []
            if t >= 2: fi = fi[:4] + list(st(t - 2)) + fi[4:]
            a.extend(merge([ch, fi]))
        a.delay(4)
        a.extend(st(4))
        return a

    def kv1a(self):
        a = L()
        kA, kB, X, vA, vB = [KV0 + 8 * t for t in range(5)]
        PA, PB, PX, VA, VB, VX = [S0 + 4 * k for k in range(6)]
        t0 = vt[0]
        a("v_cmp_gt_u32 vcc, 8, v%d\nv_mov_b32 v%d, 0x3f803f80" % (v_n, t0))
        for (src, dst) in ((X, VX), (vA, VA), (vB, VB)):
            for k in range(4): a("v_cvt_pk_bf16_f32 v%d, v%d, v%d" % (dst + k, src + 2 * k, src + 2 * k + 1))
        for k in range(4): a("v_cndmask_b32 v%d, v%d, v%d, vcc" % (VX + k, VX + k, t0))
        T4a, T4b, T5, T1, T3a, T2, T3b = vA, vA + 4, vB, vB + 4, X, X + 4, kA
        a("s_mov_b32 s%d, 0x0f550f55\ns_mov_b32 s%d, 0x0f550f55" % (s_mask, s_mask + 1))
        a("v_cmp_gt_u32 vcc, 16, v%d" % v_lane)
        def part(src, dst, mm):
            self.phi8(a, src, TT)
            for k in range(4): a("v_cvt_pk_bf16_f32 v%d, v%d, v%d" % (dst + k, src + 2 * k, src + 2 * k + 1))
            for d, x, y in mm: a("%s %s, %s, %s, 0" % (M, vr(d), vr(x), vr(y)))
        part(X, PX, ((T4a, PX, VA), (T4b, PX, VB), (T5, PX, VX)))
        part(kA, PA, ((T1, PA, VA), (T3a, PA, VX)))
        for k in range(4): a("v_cndmask_b32 v%d, v%d, v%d, vcc" % (T4a + k, T4b + k, T4a + k))
        for k in range(4): a("v_permlane32_swap_b32 v%d, v%d" % (T4a + k, T5 + k))
        a("ds_write_b128 v%d, %s offset:3072" % (v_kvw, vr(T4a)), tag="kw")
        a("ds_write_b128 v%d, %s" % (v_kvw, vr(T1)), tag="kw")
        part(kB, PB, ((T3b, PB, VX), (T2, PB, VB)))
        a.delay(2)
        for k in range(4): a("v_cndmask_b32 v%d, v%d, v%d, s[%d:%d]" % (T3a + k, T3b + k, T3a + k, s_mask, s_mask + 1))
        a("ds_write_b128 v%d, %s offset:1024" % (v_kvw, vr(T2)), tag="kw")
        a("ds_write_b128 v%d, %s offset:2048" % (v_kvw, vr(T3a)), tag="kw")
        a.append(grp("s_lshl_b32 s%d, s%d, 10\ns_add_u32 s%d, s%d, %d\nv_add_u32 v%d, s%d, v%d" % (s_t0, s_w, s_t0, s_t0, L_KVR, v_kvw, s_t0, v_l16)))
        return a
    def kv1b(self):
        a = L(); K = KV0
        for k in range(4): a("ds_read_b128 %s, v%d offset:%d" % (vr(K + 4 * k), v_kvw, 4096 * k), tag="kr")
        a.delay(4)
        a.wl("kr")
        for k in range(4): a("v_add_f32 v%d, v%d, v%d\nv_add_f32 v%d, v%d, v%d" % (K + k, K + k, K + 4 + k, K + 8 + k, K + 8 + k, K + 12 + k))
        for k in range(4): a("v_add_f32 v%d, v%d, v%d" % (K + k, K + k, K + 8 + k))
        for k in range(2): a("v_cvt_pk_bf16_f32 v%d, v%d, v%d" % (K + k, K + 2 * k, K + 2 * k + 1))
        for k in range(2): a("v_min_u32 v%d, -2, v%d" % (K + k, K + k))
        a("buffer_store_dwordx2 %s, v%d, %s, s%d offen sc1" % (vr(K, 2), v_l8, srd(sWS), s_kvpst), tag="kvst")
        return a
    def phiq(self):
        a = L(); t0 = vt[2]
        Z = SEL
        a("v_and_b32 v%d, 12, v%d\nv_add_u32 v%d, v%d, v%d" % (t0, v_n, t0, t0, v_n))
        a.append(grp("s_lshl_b32 s%d, s%d, 7\ns_add_u32 s%d, s%d, %d\nv_lshl_add_u32 v%d, v%d, 2, s%d" % (s_t0, s_w, s_t0, s_t0, M_G, t0, t0, s_t0)))
        for i in range(2): a("v_fma_f32 v%d, v%d, s%d, v%d" % (Z + i, Q0 + 8 + 4 * i, s_log2e, v_nel))
        for i in range(2): a("v_exp_f32 v%d, -v%d" % (Z + i, Z + i))
        for i in range(2): a("v_add_f32 v%d, 1.0, v%d" % (Z + i, Z + i))
        for i in range(2): a("v_rcp_f32 v%d, v%d" % (Z + i, Z + i))
        for i in range(2): a("v_sub_f32 v%d, 1.0, v%d" % (Z + 2 + i, Z + i))
        a.append(grp("s_mov_b32 exec_lo, 0\nds_write_b32 v%d, v%d\nds_write_b32 v%d, v%d offset:16\ns_mov_b32 exec_lo, -1" % (t0, Z, t0, Z + 1), tag="gw"))
        for i in range(2): a("v_permlane32_swap_b32 v%d, v%d" % (Z + 2 + i, OMG + i))
        for t in range(3):
            self.phi8(a, Q0 + 8 * t, TT)
            for i in range(2):
                for k in range(2):
                    a("v_cvt_pk_bf16_f32 v%d, v%d, v%d" % (PQ + 6 * i + 2 * t + k, Q0 + 8 * t + 4 * i + 2 * k, Q0 + 8 * t + 4 * i + 2 * k + 1))
        return a
    def gather_loads(self, raw=False):
        a = L()
        for c in range(8):
            a("buffer_load_dwordx4 %s, v%d, %s, s%d offen offset:%d sc1" % (vr(KV0 + 4 * c), vL4[c // 4], srd(sWS), s_kvpld, 1024 * (c % 4)), tag="g%d" % c, raw=raw)
        return a
    def gsel(self):
        a = L()
        t1, t2, t3 = vt[1], vt[2], vt[3]
        a("v_lshrrev_b32 v%d, 3, v%d\nv_xor_b32 v%d, v%d, v%d\nv_and_b32 v%d, 1, v%d\nv_lshlrev_b32 v%d, 3, v%d" % (t1, v_n, t1, t1, v_q, t1, t1, t1, t1))
        a("v_bfe_u32 v%d, v%d, 1, 2\nv_or_b32 v%d, v%d, v%d" % (t2, v_n, t1, t1, t2))
        a("v_and_b32 v%d, 1, v%d\nv_lshlrev_b32 v%d, 4, v%d\nv_mov_b32 v%d, 0x3f80\nv_lshlrev_b32 v%d, v%d, v%d" % (t2, v_n, t2, t2, t3, t3, t2, t3))
        for k in range(4):
            a.append(grp("v_cmp_eq_u32 vcc, %d, v%d\nv_cndmask_b32 v%d, 0, v%d, vcc" % (k, t1, SEL + k, t3)))
        a("v_and_b32 v%d, 2, v%d\nv_lshlrev_b32 v%d, 7, v%d\nv_lshl_add_u32 v%d, v%d, 4, v%d\nv_and_b32 v%d, 1, v%d\nv_lshl_add_u32 v%d, v%d, 3, v%d" % (t1, v_q, t1, t1, t1, v_n, t1, t2, v_q, t1, t2, t1))
        a.append(grp("s_lshl_b32 s%d, s%d, 9\ns_add_u32 s%d, s%d, %d\nv_add_u32 v%d, s%d, v%d" % (s_t0, s_w, s_t0, s_t0, L_KVX, GD - 2, s_t0, t1)))
        return a
    def gsum(self, raw=False):
        a = L()
        for c in range(8):
            if not raw: a.wv("g%d" % c)
            a("%s %s, %s, %s, %s" % (M, vr(GD), vr(SEL), vr(KV0 + 4 * c), vr(GD) if c else "0"), raw=raw)
        return a
    def gather_sum(self):
        a = L()
        t0, t1 = vt[0], vt[1]
        slow = self.label("slow"); back = self.label("back")
        a.extend(self.gsum())
        a("v_xor_b32 v%d, 256, v%d\nv_add_u32 v%d, %d, v%d\nv_add_u32 v%d, %d, v%d" % (t1, v_l8, t1, L_KVX, t1, t0, L_KVX, v_l8))
        a.delay(2)
        a.append(grp("v_cmp_u_f32 vcc, v%d, v%d\ns_cbranch_vccnz %s\n%s:" % (GD, GD + 1, slow, back)))
        s = self.slow
        self.spin_head(s, slow)
        s.extend(self.gather_loads(raw=True)); s("s_waitcnt vmcnt(0)\nv_mov_b32 v%d, 0" % vt[2], raw=True)
        for m in range(0, 32, 2): s("v_max3_u32 v%d, v%d, v%d, v%d" % (vt[2], vt[2], KV0 + m, KV0 + m + 1), raw=True)
        s("v_cmp_eq_u32 vcc, -1, v%d\ns_cbranch_vccnz %s" % (vt[2], slow), raw=True)
        s.extend(self.gsum(raw=True)); s("s_nop 7\ns_branch %s" % back, raw=True)
        a("v_cvt_pk_bf16_f32 v%d, v%d, v%d\nv_cvt_pk_bf16_f32 v%d, v%d, v%d" % (GD + 4, GD, GD + 1, GD + 5, GD + 2, GD + 3))
        a("ds_write_b64 v%d, %s" % (GD - 2, vr(GD + 4, 2)), tag="xw")
        return a
    def attn2(self):
        a = L()
        t0, t1, t2, t3 = vt
        FA, FB_, FZA, FZB, R3, R4, R5 = GB, GB + 4, GB + 8, GB + 12, GD, GD + 2, GD + 4
        E = Q0; SC = SEL; O = GB
        a("ds_read_b64 %s, v%d offset:%d" % (vr(R3, 2), t0, 1024), tag="xr")
        a("ds_read_b64 %s, v%d offset:%d" % (vr(R5, 2), t1, 1536), tag="xr")
        a("ds_read_b64 %s, v%d offset:%d" % (vr(R4, 2), t0, 1536), tag="xr")
        a("ds_read_b64 %s, v%d offset:%d" % (vr(FA, 2), t0, 0), tag="xr")
        a("ds_read_b64 %s, v%d offset:%d" % (vr(FB_ + 2, 2), t0, 512), tag="xr")
        a.delay(4)
        a.wl("xr")
        def masked(dst, src, lo, hi):
            a("s_mov_b32 s%d, 0x%x\ns_mov_b32 s%d, 0x%x" % (s_mask, lo, s_mask + 1, hi))
            for k in range(2): a("v_cndmask_b32 v%d, 0, v%d, s[%d:%d]" % (dst + k, src + k, s_mask, s_mask + 1))
        masked(FZA, R3, 0x0f550f55, 0x0f550f55); masked(FZA + 2, R5, 0x00000f55, 0)
        masked(FZB + 2, R3, 0xf0aaf0aa, 0xf0aaf0aa); masked(FZB, R5, 0xf0aa0000, 0)
        masked(FA + 2, R4, 0x0000ffff, 0); masked(FB_, R4, 0xffff0000, 0)
        self.nf = len(a)
        for i in range(2): a("%s %s, %s, %s, 0" % (M, vr(E + 12 * i + 8), vr(FZA), vr(PQ + 6 * i)))
        for i in range(2): a("%s %s, %s, %s, %s" % (M, vr(E + 12 * i + 8), vr(FZB), vr(PQ + 6 * i + 2), vr(E + 12 * i + 8)))
        a("v_lshrrev_b32 v%d, 1, v%d\nv_mul_u32_u24 v%d, %d, v%d" % (t2, v_q, t2, TSTR, t2))
        a("v_and_b32 v%d, 1, v%d\nv_lshl_add_u32 v%d, v%d, 3, v%d\nv_lshl_add_u32 v%d, v%d, 4, v%d" % (t3, v_q, t2, t3, t2, t2, v_n, t2))
        a("s_add_u32 s%d, s%d, %d\ns_add_u32 s%d, s%d, %d" % (s_t1, s_a2p, 160 * 256, s_t2, s_a2p, 160 * 256 + TSTR))
        for i in range(2):
            a("%s %s, %s, %s, 0" % (M, vr(E + 12 * i), vr(FA), vr(PQ + 6 * i)))
            a("%s %s, %s, %s, 0" % (M, vr(E + 12 * i + 4), vr(FB_), vr(PQ + 6 * i + 2)))
        a("s_mov_b32 s%d, 0\ns_mov_b32 s%d, 0x0000ffff" % (s_mask, s_mask + 1))
        ih = [(i, h) for i in range(2) for h in range(2)]
        for i, h in ih: a("v_add_f32 v%d, s%d, v%d" % (SC + 6 * i + 2 * h, s_eps, E + 12 * i + 8 + h))
        for i, h in ih: a("v_rcp_f32 v%d, v%d" % (SC + 6 * i + 2 * h, SC + 6 * i + 2 * h))
        for i, h in ih: a("v_mul_f32 v%d, v%d, v%d" % (SC + 6 * i + 2 * h, SC + 6 * i + 2 * h, OMG + i))
        for i, h in ih: a("v_mov_b32 v%d, v%d" % (SC + 6 * i + 2 * h + 1, SC + 6 * i + 2 * h))
        for i, h in ih: a("v_permlane32_swap_b32 v%d, v%d" % (SC + 6 * i + 2 * h, SC + 6 * i + 2 * h + 1))
        for i in range(2):
            sc = SC + 6 * i
            a("v_cndmask_b32 v%d, v%d, v%d, s[%d:%d]" % (sc + 4, sc + 2, sc, s_mask, s_mask + 1))
            for k in range(4):
                a("v_mul_f32 v%d, v%d, v%d" % (E + 12 * i + k, E + 12 * i + k, sc))
                a("v_mul_f32 v%d, v%d, v%d" % (E + 12 * i + 4 + k, E + 12 * i + 4 + k, sc + 2))
            for k in range(4): a("v_cvt_pk_bf16_f32 v%d, v%d, v%d" % (O + 4 * i + k, E + 12 * i + 2 * k, E + 12 * i + 2 * k + 1))
            a("buffer_store_dwordx4 %s, v%d, %s, s%d offen sc1" % (vr(O + 4 * i), v_l16, srd(sWS), (s_t1, s_t2)[i]), tag="ost")
        for i in range(2):
            ez = E + 12 * i + 8; sc = SC + 6 * i
            for k in range(4): a("v_mul_f32 v%d, v%d, v%d" % (ez + k, ez + k, sc + 4))
            for k in range(2): a("v_cvt_pk_bf16_f32 v%d, v%d, v%d" % (O + 8 + 2 * i + k, ez + 2 * k, ez + 2 * k + 1))
        for k in range(2): a("v_permlane32_swap_b32 v%d, v%d" % (O + 8 + k, O + 10 + k))
        a("buffer_store_dwordx2 %s, v%d, %s, s%d offen offset:1024 sc1" % (vr(O + 10, 2), t2, srd(sWS), s_t1), tag="ost")
        return a

    def dma_wo(self, blk):
        a = L(); tag = "wo%d" % blk if blk < 4 else "woE"
        base, off = (s_wm0, WSLOT[blk] * SLOT) if blk < 4 else (s_priv, P_HT)
        if blk == 4: a.wl("sx")
        a("s_add_u32 s%d, s%d, %d\ns_add_u32 m0, s%d, %d" % (s_so, s_woi, blk * SLOT, base, off), tag=tag)
        for ph in range(4):
            a("buffer_load_dwordx4 v%d, %s, s%d offen offset:%d sc1 lds" % (v_l16, srd(sWS), s_so, 1024 * ph), tag=tag)
        a("s_add_u32 m0, s%d, %d" % (base, off + 4096), tag=tag)
        a("buffer_load_dwordx4 v%d, %s, s%d offen sc1 lds" % (vL4[1], srd(sWS), s_so), tag=tag)
        return a
    def rd_we(self):
        a = L()
        a("v_add_u32 v%d, %d, v%d" % (vWE, PRIV + P_HT, vBA[0]))
        for f in range(20):
            kk, nt = divmod(f, 5)
            a("ds_read_b128 %s, v%d offset:%d" % (ar(WE[f]), vWE, kk * PRIV_SZ + 256 * nt), tag="we")
        return a
    KORD = [16, 17, 18, 19] + list(range(16))
    def ao_loads(self):
        a = L()
        for kk in self.KORD:
            a("buffer_load_dwordx4 %s, v%d, %s, s%d offen offset:%d sc1" % (ar(AO + 4 * kk), vL4[(kk // 4) % 4], srd(sWS), s_ao if kk < 16 else s_ao2, 1024 * (kk % 4)), tag="ao%d" % kk)
        return a
    GG = GB; DS = ACC + 20; SKV = [vDX[2], vDX[3], vDW[4]]; v_ga = v_col4
    def skip_addr(self):
        a = L()
        t0, t1, t2 = vt[1], vt[2], vt[3]
        a("s_lshr_b32 s%d, s%d, 1\ns_lshl_b32 s%d, s%d, 5\ns_lshl_b32 s%d, s%d, 2\ns_add_u32 s%d, s%d, s%d" % (s_t1, s_w, s_t1, s_t1, s_t2, s_w1, s_t1, s_t1, s_t2))
        a("v_lshl_add_u32 v%d, v%d, 3, s%d" % (t0, v_q, s_t1))
        a("v_mul_u32_u24 v%d, 2560, v%d\nv_lshl_add_u32 v%d, v%d, 2, v%d\nv_add_u32 v%d, 5120, v%d" % (v_o0, t0, v_o0, v_n, v_o0, v_o1, v_o0))
        a("s_lshl_b32 s%d, s%d, 6\ns_add_u32 s%d, s%d, s%d\ns_lshl_b32 s%d, s%d, 2\ns_add_u32 s%d, s%d, %d" % (s_t2, s_rb, s_t1, s_t1, s_t2, s_rstep, s_t1, s_rstep, s_rstep, M_G))
        a("s_mul_i32 s%d, s%d, 1280\ns_mul_i32 s%d, s%d, 160\ns_add_u32 s%d, s%d, s%d" % (s_t1, s_t1, s_t2, s_ct, s_t1, s_t1, s_t2))
        for ph in range(3):
            a("v_add_u32 v%d, %d, v%d\nv_mul_u32_u24 v%d, 6554, v%d\nv_lshrrev_b32 v%d, 16, v%d" % (t0, 64 * ph, v_lane, t1, t0, t1, t1))
            a("v_mul_u32_u24 v%d, 10, v%d\nv_sub_u32 v%d, v%d, v%d" % (t2, t1, t0, t0, t2))
            a("v_and_b32 v%d, 28, v%d\nv_add_u32 v%d, v%d, v%d\nv_mul_u32_u24 v%d, 1280, v%d" % (t2, t1, t1, t1, t2, t1, t1))
            a("v_lshl_add_u32 v%d, v%d, 4, v%d\nv_add_u32 v%d, s%d, v%d" % (t1, t0, t1, self.SKV[ph], s_t1, t1))
            if ph < 2: a("s_sub_u32 s%d, s%d, 1024" % (s_t1, s_t1))
        a("v_add_u32 v%d, s%d, v%d" % (vRX[0], s_priv, v_l16))
        for ml in range(1, 4):
            a("s_sub_u32 s%d, s%d, %d\ns_and_b32 s%d, s%d, 3\ns_mul_i32 s%d, s%d, %d\ns_add_u32 s%d, s%d, %d\nv_add_u32 v%d, s%d, v%d"
              % (s_t1, s_w, ml, s_t1, s_t1, s_t1, s_t1, PRIV_SZ, s_t1, s_t1, PRIV, vRX[ml], s_t1, v_l16))
        a("v_lshrrev_b32 v%d, 2, v%d\nv_mul_u32_u24 v%d, 160, v%d\nv_and_b32 v%d, 3, v%d\nv_lshl_add_u32 v%d, v%d, 3, v%d" % (t0, v_lane, t0, t0, t1, v_lane, t0, t1, t0))
        a("v_add_u32 v%d, s%d, v%d\nv_lshlrev_b32 v%d, 1, v%d\nv_add_u32 v%d, %d, v%d" % (230, s_priv, t0, 231, v_n, 231, M_DSK, 231))
        return a
    def skip_dma(self):
        a = L()
        a.wl("hr4")
        a("s_add_u32 m0, s%d, %d" % (s_priv, P_HT), tag="sk")
        for ph in range(3):
            a("buffer_load_dwordx4 v%d, %s, 0 offen offset:%d lds" % (self.SKV[ph], srd(sX), 1024 * ph), tag="sk")
        return a
    def skip_rd(self):
        a = L()
        a.wv("sk")
        for nt in range(5): a("ds_read_b64_tr_b16 %s, v%d offset:%d" % (vr(ACC + 4 * nt + 2, 2), 230, P_HT + 32 * nt), tag="sx")
        for nt in range(5): a("ds_read_u16 v%d, v%d offset:%d" % (self.DS + nt, 231, 32 * nt), tag="sd")
        return a
    def skip_calc(self):
        a = L()
        a.wl("sd")
        for nt in range(5): a("v_lshlrev_b32 v%d, 16, v%d" % (self.DS + nt, self.DS + nt))
        for nt in range(5):
            c = ACC + 4 * nt
            a("v_lshlrev_b32 v%d, 16, v%d\nv_and_b32 v%d, 0xffff0000, v%d\nv_lshlrev_b32 v%d, 16, v%d\nv_and_b32 v%d, 0xffff0000, v%d" % (c, c + 2, c + 1, c + 2, c + 2, c + 3, c + 3, c + 3))
            for r in range(4): a("v_mul_f32 v%d, v%d, v%d" % (c + r, c + r, self.DS + nt))
        return a
    def aload(self, k):
        b = L(); kk = k
        for ml in range(4):
            b("buffer_load_dwordx4 %s, v%d, %s, s%d offen offset:%d sc1" % (vr(AF + 16 * (k % NAF) + 4 * ml), vL4[kk // 4], srd(sWS), s_am + ml, 1024 * (kk % 4)), tag="a%d" % k)
        return b

    def build(self):
        o = self.opt
        a = L()
        t0, t1, t2, t3 = vt
        a.extend(self.prologue())
        NS = 71
        S = Sched([10] * 40 + [6] * 20 + [16] + [20] * 10)
        pre = [L() for _ in range(NS)]; post = [L() for _ in range(NS)]
        cj, ci_, cct = "s%d" % s_cj, "s%d" % s_ci, "s%d" % s_cct
        n3 = [0, 8, 18, 99][o.get("n3", 2)]
        rsig = o.get("rsig", 2)
        stl = list(self.rp_store()) + self.clears() + self.pc
        d = list(self.first) + list(self.second[:n3]) + [G(self.rp_read())]
        if self.rsl == 1: d += stl; stl = []
        fill = list(self.partB) + list(self.partC)
        nf = len(fill) * o.get("pf", 70) // 100
        nv = sum(1 for x in d if not isinstance(x, G) and x.kind == "vmem")
        sh = split(fill[:nf], nv); k = 0
        for x in d:
            a.extend(flat([x]))
            if not isinstance(x, G) and x.kind == "vmem":
                a.extend(flat(sh[k])); k += 1
        self.fill = fill[nf:]
        self.stamp(a, "prol")
        a.wv("x1")
        self.stamp(a, "st0", level=2); a("s_barrier")
        a.extend(self.x_reads(0)); a.extend(self.frag_reads(0))
        S.at(self.rp_signal(), rsig)
        for g in range(59):
            st1, kk1 = self.stage_of(g + 1)
            rd = list(self.frag_reads(g + 1))
            if g + 1 < 20 and kk1 == 0: rd = list(self.x_reads(2 * st1)) + rd
            if g + 1 < 20 and kk1 == 1: rd = rd + list(self.x_reads(2 * st1 + 1))
            for k, x in enumerate(rd):
                S.gap[S.start[g] + k].append(x); S.load[S.start[g] + k] += wcost(x)
        for g in range(60):
            for t in ((1, 3) if g < 40 else (1,)) if o.get("w2", 1) else range(1, 5 if g < 40 else 3):
                S.gap[S.start[g] + 2 * t - 1].append(WL("f%d_%d" % (g, t + o.get("w2", 1))))
        X = self.dma_x; W = self.dma_w
        gate = list(L()("s_mov_b32 m0, s%d\nbuffer_load_dwordx4 v%d, %s, 0 offen lds" % (s_rlds, RB, srd(sRP)), tag="gate"))
        S.spread(stl + list(self.second[n3:]) + list(X(4)) + list(X(5)), 0, 2)
        S.spread(list(W(2)) + list(X(6)) + list(X(7)), 3, 6)
        pi_ = [self.only("w0", self.vpoll_issue("pI"))]
        gi = o.get("gi", 15)
        S.spread(list(W(3)) + (pi_ if gi == 11 else []) + list(X(8)) + list(X(9)), 7, 10)
        S.spread(list(W(4)) + (pi_ if gi == 15 else []) + gate, 11, 12)
        pre[gi].append(self.only("w0", self.vpoll_check("pI", 20)))
        if self.fill: S.place(self.fill, 0, 10)
        S.place(self.skip_addr(), 13, 18)
        hp, op_ = "s%d" % s_hp, "s%d" % s_op
        co = self.coef(); ga = o.get("ga", 29)
        if o.get("xb", 0):
            S.place(self.pass1(), 20, 21); post[21].wl("sw"); post[21]("s_barrier")
            S.place(self.sread(), 22, 22.4); pre[23].wl("sr")
            S.place(co[:20], 22, 22)
            S.place(self.horner1(), 23, 24.6)
            S.place(self.eback(), 24.6, 25); pre[27].wl("ew")
            S.place(co[20:], 24.6, 28)
            S.place(self.te_rd(), 28.5, 28); S.place(self.te(), 29.5, ga + 2)
        else:
            S.place(self.pass1(), 20, 22); pre[23].wl("sw")
            S.place(self.sread(), 23.5, 23); S.place(co[:20], 23, 23)
            S.place(self.horner1(), 24.3, 25); pre[27].wl("sr")
            S.place(self.eback(), 27.5, 27); pre[31].wl("ew")
            S.place(co[20:], 26, 29)
            S.place(self.te_rd(), 31.5, 31); S.place(self.te(), 32.3, 32)
            ga = o.get("ga", 29)
        S.spread(self.agg_loads(), ga, ga)
        S.place(self.horner2(), ga + 3, 34); pre[35].wl("cw")
        S.place(self.pass2(), 35, 39)
        ke = o.get("ke", 40)
        S.at(self.wsignal("hst", s_hs), o.get("hs", ke + 1))
        S.place(self.kv1a(), 40, ke)
        post[ke].wl("kw"); post[ke]("s_barrier")
        S.place(self.kv1b(), ke + 1, ke + 2)
        pre[47].wl("kr")
        S.place(self.gsel(), 45, 48); S.place(self.skip_calc(), 49, 55)
        B = 61
        gsw = o.get("gsw", 57)
        S.place(self.gather_sum(), gsw, 59)
        post[59].wl("xw"); post[59].wv("woE"); post[59]("s_barrier")
        at2 = list(self.attn2())
        S.place(at2[:self.nf], 60, 60); S.place(self.phiq(), 60, 60)
        ge = o.get("ge", 9) / 10.0
        S.place(at2[self.nf:], B, B + ge)
        S.at(self.wsignal("ost", s_os), B + o.get("os", 3))
        S.spread(list(self.rd_we()), B + 6, B + 7)
        post[B + 7].wl("we"); post[B + 7]("s_barrier")
        S.gap[S.start[B + 9] + 2].extend(L()("v_lshl_add_u32 v%d, v%d, 5, s%d\nds_read_b128 %s, v%d" % (self.v_ga, v_q, s_rstep, vr(self.GG), self.v_ga), tag="g2"))
        for z in range(15):
            k = S.start[B + 8] + 10 + 10 * (z // 5) + 2 * (z % 5)
            S.gap[k].append(I("ds_write_b128 v%d, %s offset:%d" % (vRX[0], vr(ACC + 20 * (1 + z // 5) + 4 * (z % 5)), z * 1024), tag="rw"))
        S.gap[S.start[B + 8] + 4].append(WV("a9"))
        st_ = lambda g: S.rng(g, int(g))[0]
        T = o.get("T", 72); LAT = o.get("lat", 800); PL = o.get("pl", 1000)
        P = []
        gl = self.gather_loads(); aol = self.ao_loads()
        P.append(Pkt("pH", self.poll_issue(sWS, hp, 0, "pH"), st_(o.get("ph", 47))))
        P.append(Pkt("cH", self.poll_check(sWS, hp, 0, "pH", 32), after=["pH"], lag=PL))
        P.append(Pkt("pO", self.poll_issue(sWS, op_, 0, "pO"), st_(B + o.get("po", 50) / 10.0), after=["cH"]))
        P.append(Pkt("cO", self.poll_check(sWS, op_, 0, "pO", 16), after=["pO"], lag=o.get("plo", PL)))
        for c in range(8): P.append(Pkt("g%d" % c, [gl[c]], st_(o.get("gg", 51))))
        for st in range(5, 13):
            fr = max(gi, 4 * st - 13) if st > 5 else gi
            P.append(Pkt("w%d" % st, W(st), st_(fr)))
        P.append(Pkt("sk", self.skip_dma(), st_(40)))
        P.append(Pkt("skr", self.skip_rd(), after=["sk"], lag=LAT))
        for k in range(10):
            P.append(Pkt("a%d" % k, self.aload(k), st_(ke + 3) if k < 2 else st_(60) if k < 4 else st_(B + k - 3), after=["cH"]))
        for u in range(25):
            P.append(Pkt("c%d" % u, self.dma_c(u), st_(17), after=["cr%d" % (u - self.NCU)] if u >= self.NCU else [], lag=60))
            P.append(Pkt("cr%d" % u, self.rd_c(u), 0 if u < 12 else st_(41 + u - 12), after=["c%d" % u], lag=LAT))
        P.append(Pkt("woE", self.dma_wo(4), after=["skr"], lag=60))
        P.append(Pkt("wo0", self.dma_wo(0), st_(o.get("w0", 47))))
        P.append(Pkt("wo1", self.dma_wo(1), st_(o.get("w1", 58))))
        if o.get("w2e", 1): P.append(Pkt("wo2", self.dma_wo(2), st_(o.get("w1", 58))))
        for z in range(8): P.append(Pkt("ao%d" % z, [aol[z]], after=["cO"]))
        if not o.get("w2e", 1): P.append(Pkt("wo2", self.dma_wo(2), st_(55), after=["cO"]))
        for z in range(8, 12): P.append(Pkt("ao%d" % z, [aol[z]], after=["cO"]))
        P.append(Pkt("wo3", self.dma_wo(3), st_(60)))
        for z in range(12, 20): P.append(Pkt("ao%d" % z, [aol[z]], after=["cO"]))
        extra = {g: 110 for g in range(60) if g + 1 < 60 and self.stage_of(g + 1)[1] == 0}
        extra[ke + 1] = 110; extra[B + 8] = 110; extra[60] = 110
        left, tend = pace(S, st_(13), S.start[B + 10], P, T, nomf=(60,), step_extra=extra)
        if o.get("v", 0):
            stepof = lambda k: max(g for g in range(len(S.counts)) if S.start[g] <= k)
            print("model end", int(tend), " ".join("%s@%d" % (p.name, stepof(p.done_gap)) for p in P if p.done_gap is not None), "| left:", [p.name for p in left])
        tailq = [x for p in left for x in p.ins]
        def take(n):
            out = []
            while tailq and n > 0:
                x = tailq.pop(0); out.append(x)
                if not isinstance(x, G) and x.kind == "vmem": n -= 1
            return out
        for g in range(60):
            p = L()
            nt_ = 5 if g < 40 else 3
            p.wl("f%d_0" % g)
            if g + 1 < 60:
                st1, kk1 = self.stage_of(g + 1)
                if kk1 == 0:
                    p.wl("f%d_%d" % (g, nt_ - 1))
                    fine = o.get("f0", 99) <= g <= o.get("f1", -1)
                    p.extend(pre[g]); p.wv("w%d" % st1)
                    if st1 < 5: p.wv("x%d" % (2 * st1 + 1))
                    if fine: self.stamp(p, "wv%d" % g)
                    p("s_barrier")
                    if fine: self.stamp(p, "bar%d" % g)
                    if st1 == 5: p.extend(self.calc_kvaddr())
                else:
                    assert not pre[g], g
            a.extend(flat(p))
            a.extend(S.emit(g, self.mfmas(g)))
            a.extend(post[g])
            if g in (19, 39, 59) or o.get("f0", 99) <= g <= o.get("f1", -1): self.stamp(a, "g%d" % g)
            elif g % 4 == 3: self.stamp(a, "g%d" % g, level=2)
        a.extend(S.emit(60, [None] * 16))
        self.stamp(a, "phiq")
        for k in range(10):
            a.wv("a%d" % k)
            a.wl("cr%d" % ((k >> 1) * 5 + 4))
            a.extend(S.emit(B + k, self.mfmas(60 + k)))
            a.extend(post[B + k])
            self.stamp(a, "k%d" % k, level=2 if k != 9 else 1)
        late_wo = any((not isinstance(y, G)) and y.tag in ("wo2", "wo3") for y in tailq) or o.get("midbar", 0)
        a.wl("rw"); a.wv("wo1" if late_wo else "wo3"); a("s_barrier")
        x = L()
        P = ACC + 20
        for nt in range(5):
            for ml in range(1, 4):
                x("ds_read_b128 %s, v%d offset:%d" % (vr(P + 12 * nt + 4 * (ml - 1)), vRX[ml], ((ml - 1) * 5 + nt) * 1024), tag="rr%d" % nt)
        for nt in range(5):
            x.wl("rr%d" % nt)
            b = P + 12 * nt; c = ACC + 4 * nt
            for h in (0, 2):
                x("v_pk_add_f32 %s, %s, %s" % (vr(b + h, 2), vr(b + h, 2), vr(b + 4 + h, 2)))
                x("v_pk_add_f32 %s, %s, %s" % (vr(c + h, 2), vr(c + h, 2), vr(b + 8 + h, 2)))
            for h in (0, 2): x("v_pk_add_f32 %s, %s, %s" % (vr(c + h, 2), vr(c + h, 2), vr(b + h, 2)))
            for h in (0, 2): x("v_pk_mul_f32 %s, %s, %s" % (vr(c + h, 2), vr(c + h, 2), vr(self.GG + h, 2)))
        KO = self.KORD
        ksw = o.get("ksw", 4)
        if late_wo: ksw = 12
        order = [(kk, nt) for kk in KO[:ksw] for nt in range(5)] + [(kk, nt) for nt in range(5) for kk in KO[ksw:]]
        NB = 16; LA = o.get("la", 12)
        stream = [f for f in order if f[0] < 16]
        def rd(z):
            kk, nt = stream[z]
            slot = WSLOT[kk // 4]; hi = slot >= 2
            return I("ds_read_b128 %s, v%d offset:%d" % (vr(AF + 4 * (z % NB)), vBA[2 * hi], (slot - 2 * hi) * SLOT + 5120 * (kk % 4) + 256 * nt), tag="wf%d" % z)
        a.extend(flat(merge([x, take(o.get("nx", 8))])))
        self.stamp(a, "xchg")
        nr = 0; pend = []; vsp = o.get("vsp", 3)
        for idx, (kk, nt) in enumerate(order):
            a.wv("ao%d" % kk)
            if kk < 16:
                z = stream.index((kk, nt)); a.wl("wf%d" % z); w = vr(AF + 4 * (z % NB))
            else:
                w = ar(WE[(kk - 16) * 5 + nt])
            c = ACC + 4 * nt
            a("%s %s, %s, %s, %s" % (M, vr(c), ar(AO + 4 * kk), w, vr(c)))
            used = sum(1 for f in order[:idx + 1] if f[0] < 16)
            if nr < len(stream) and nr - used < LA and nr - NB < used - 1:
                if nr == 40 and late_wo:
                    a.extend(flat(take(99))) if any((not isinstance(y, G)) and y.tag == "wo3" for y in tailq) else None
                    a.wv("wo3"); a("s_barrier")
                a.append(rd(nr)); nr += 1
            if idx % vsp == 0: a.extend(flat(take(1)))
            if pend and idx >= pend[0][0]:
                a.append(pend.pop(0)[1])
            if kk == KO[-1]:
                for r in range(4):
                    pend.append((idx + 3 + 2 * r, I("buffer_store_dword v%d, v%d, %s, 0 offen offset:%d %s" % (c + r, (v_o0, v_o1)[r >> 1], srd(sOUT), 2560 * (r & 1) + 64 * nt, self.outflag), tag="out")))
        for _, s_ in pend: a.append(s_)
        self.stamp(a, "end")
        if self.stamps:
            a("s_waitcnt vmcnt(0)")
            self.stamp(a, "drain")
            a("s_sub_u32 s%d, 0x40000, s%d\nv_writelane_b32 v0, s%d, 62" % (s_t0, s_spin, s_t0))
            self.stamp(a, "rt1", real=True)
            a("v_readlane_b32 s%d, v0, 63\ns_nop 3\ns_lshl_b32 s%d, s%d, 2\ns_add_u32 s%d, s%d, s%d\ns_lshl_b32 s%d, s%d, 8\ns_add_u32 s%d, s%d, %d"
              % (s_t0, s_t0, s_t0, s_t0, s_t0, s_w, s_t0, s_t0, s_t0, s_t0, STAMP_OFF))
            a("v_lshlrev_b32 v2, 2, v%d\nbuffer_store_dword v0, v2, %s, s%d offen" % (v_lane, srd(sWS), s_t0))
        if self.padat != "-":
            a("s_waitcnt vmcnt(0)\nL_pad:\ns_memrealtime s[16:17]\ns_waitcnt lgkmcnt(0)\ns_sub_u32 s16, s16, s100\ns_cmp_lt_u32 s16, 4000\ns_cbranch_scc1 L_pad")
        a("L_end:\ns_endpgm")
        a.extend(self.slow)
        self.S = S
        return flat(a)

def make(verbose=False, **kw):
    g = Gen(**kw)
    ins = g.build()
    check_m0(ins, {"s%d" % s_so})
    o = g.opt
    if o.get("noc"):
        import re
        ins = [i for i in ins if not (i.tag and re.fullmatch(r"cr?\d+", str(i.tag)))]
    if o.get("now"):
        import re
        ins = [i for i in ins if not (i.tag in ("w8", "w9", "w10", "w11", "w12"))]
    if o.get("noval"):
        nm = 0; out = []
        for i in ins:
            if i.kind == "mfma": nm += 1
            if 240 < nm < 440 and i.kind == "valu" and i.text.startswith(("v_fma", "v_mul_f32", "v_exp", "v_rcp", "v_add_f32", "v_cvt_pk")): continue
            out.append(i)
        ins = out
    if o.get("nocomp"):
        ins = [i for i in ins if i.raw or not (i.kind == "mfma" or (i.kind == "valu" and i.text.startswith(("v_fma", "v_mul_f32", "v_exp", "v_rcp", "v_add_f32", "v_cvt_pk", "v_max_f32", "v_pk_", "v_sin", "v_cos", "v_fract", "v_permlane"))))]
        ins = [i for i in ins if not (i.kind == "branch" and ("scc1 L_slow" in i.text or ("vccnz L_slow" in i.text and not i.opt and not i.raw)))]
    if o.get("nomem"):
        import re
        ins = [i for i in ins if not (i.kind in ("vmem", "waitvm") and i.tag and re.fullmatch(r"(x|w|c|a|g|ao|wo)\d+|woE|sk|tx|tb|ct", str(i.tag)))]
        ins = [i for i in ins if not (i.kind == "branch" and ("scc1 L_slow" in i.text or ("vccnz L_slow" in i.text and not i.opt and not i.raw)))]
    if o.get("norp"):
        drop = {1: ("rp", "rs"), 2: ("rs",), 3: ("rp",), 4: ("rp", "rs", "ct")}[o["norp"]]
        ins = [i for i in ins if not (i.kind in ("vmem", "waitvm") and i.tag in drop)]
        ins = [i for i in ins if not (i.kind == "branch" and ("scc1 L_slow" in i.text or ("vccnz L_slow" in i.text and not i.opt and not i.raw)))]
    if o.get("drop"):
        import re
        pat = {1: r"c\d+", 2: r"wo\d|woE", 3: r"a\d", 4: r"ao\d+", 5: r"hst", 6: r"w([5-9]|1\d)", 7: r"x\d|w[0-4]", 8: r"out", 9: r"cr?\d+", 10: r"ag", 11: r"ost", 12: r"rp|rs", 13: r"g\d|kvst", 14: r"sk|ct|par|gate"}[o["drop"]]
        ins = [i for i in ins if not ((i.kind in ("vmem", "waitvm") or o["drop"] == 9) and i.tag and re.fullmatch(pat, str(i.tag)))]
        ins = [i for i in ins if not (i.kind == "branch" and ("scc1 L_slow" in i.text or ("vccnz L_slow" in i.text and not i.opt and not i.raw)))]
    if o.get("nomf"):
        ins = [i for i in ins if i.raw or i.kind != "mfma"]
        ins = [i for i in ins if not (i.kind == "branch" and ("scc1 L_slow" in i.text or ("vccnz L_slow" in i.text and not i.opt and not i.raw)))]
    if o.get("nofr"):
        import re
        ins = [i for i in ins if not (i.tag and re.fullmatch(r"f(2[1-9]|3\d)_\d", str(i.tag)))]
    ins = resolve_waits(ins)
    ins = hazards(ins, verbose=True)
    if verbose:
        S = g.S
        print("load per gap by step:", " ".join("%d:%.1f" % (k, sum(S.load[S.start[k]:S.start[k + 1]]) / S.counts[k]) for k in range(71)))
    K = NAME + "_kernel"
    txt = header([(K, 256, 256, 163840)]) + kernel_begin(K) + render(ins) + "L_codeend:\n" + rodata() + descriptor(K, 512, 102, 256)
    if o.get("al", 0):
        txt, n, left = align_pass(txt, o.get("nc", 0))
        if verbose: print("re-encoded", n, "misaligned left about", left)
    if g.stamps: txt += "; STAMPS " + " ".join(g.names) + "\n"
    return txt, g.nst

if __name__ == "__main__":
    out = sys.argv[1]
    kw = {}; opt = {}
    for x in sys.argv[2:]:
        k, v = x.split("=")
        if k == "stamps": kw[k] = int(v)
        elif k in ("mapping", "rot", "outflag"): kw[k] = v
        else: opt[k] = int(v)
    txt, nst = make(verbose=True, opt=opt, **kw)
    open(out, "w").write(txt)
```

```python
import re

TRANS = ("v_exp_f32", "v_log_f32", "v_rcp_f32", "v_rsq_f32", "v_sqrt_f32", "v_sin_f32", "v_cos_f32")

class I:
    __slots__ = ("text", "kind", "tag", "raw", "opt")
    def __init__(self, text, kind=None, tag=None, raw=False, opt=False):
        self.text = text.strip()
        self.tag = tag
        self.opt = opt
        self.raw = raw
        self.kind = kind or classify(self.text)
    def __repr__(self):
        return self.text

def classify(t):
    if t.endswith(":"): return "label"
    if t.startswith("."): return "dir"
    if t.startswith(";"): return "dir"
    m = t.split()[0]
    if m.startswith("v_mfma"): return "mfma"
    if m.startswith("v_"): return "valu"
    if m.startswith("ds_"): return "ds"
    if m.startswith("buffer_") or m.startswith("global_"): return "vmem"
    if m.startswith("s_load") or m.startswith("s_buffer_load") or m.startswith("s_memrealtime") or m.startswith("s_memtime"): return "smem"
    if m == "s_waitcnt": return "wait"
    if m == "s_nop": return "nop"
    if m == "s_barrier": return "barrier"
    if m.startswith("s_cbranch") or m == "s_branch" or m == "s_endpgm" or m == "s_setpc_b64": return "branch"
    if m.startswith("s_"): return "salu"
    raise ValueError("cannot classify " + t)

def WV(tag, opt=False): return I("WAITVM", "waitvm", tag, opt=opt)
def WL(tag, opt=False): return I("WAITLGKM", "waitlgkm", tag, opt=opt)

class L(list):
    def __call__(self, s, tag=None, raw=False, opt=False):
        for l in s.split("\n"):
            l = l.strip()
            if l:
                self.append(I(l, tag=tag, raw=raw, opt=opt))
        return self
    def delay(self, n): self.append(I("DELAY", "delay", n)); return self
    def wv(self, tag, opt=False): self.append(WV(tag, opt)); return self
    def wl(self, tag, opt=False): self.append(WL(tag, opt)); return self

def resolve_waits(ins):
    out = []
    q = {"vm": [], "lg": []}
    done = {"vm": 0, "lg": 0}
    smem_pending = False
    waited = set()
    for i in ins:
        if i.raw: continue
        if i.kind in ("waitvm", "waitlgkm"): waited.add((i.kind, i.tag))
        elif i.kind == "vmem": assert ("waitvm", i.tag) not in waited, "late op for tag %s" % i.tag
        elif i.kind == "ds": assert ("waitlgkm", i.tag) not in waited, "late op for tag %s" % i.tag
    def done_after(lst, n):
        k = len(lst); c = 0
        while k > 0 and c < n:
            k -= 1
            if lst[k][1]: c += 1
        return k if c == n else 0
    for i in ins:
        if i.kind == "delay": continue
        if i.raw:
            out.append(i); continue
        if i.kind == "vmem": q["vm"].append((i.tag, not i.opt))
        elif i.kind == "ds": q["lg"].append((i.tag, not i.opt))
        elif i.kind == "smem": smem_pending = True
        elif i.kind == "wait" and not i.opt:
            m = re.search(r"vmcnt\((\d+)\)", i.text)
            if m: done["vm"] = max(done["vm"], done_after(q["vm"], int(m.group(1))))
            m = re.search(r"lgkmcnt\((\d+)\)", i.text)
            if m:
                if int(m.group(1)) == 0: smem_pending = False
                if not smem_pending: done["lg"] = max(done["lg"], done_after(q["lg"], int(m.group(1))))
        if i.kind in ("waitvm", "waitlgkm"):
            c = "vm" if i.kind == "waitvm" else "lg"
            lst = q[c]
            idx = [k for k, t in enumerate(lst) if t[0] == i.tag]
            assert idx, "wait on unknown tag %s" % i.tag
            need = idx[-1] + 1
            if need <= done[c]: continue
            n = min(63 if c == "vm" else 15, sum(1 for t in lst[need:] if t[1]))
            if c == "lg" and smem_pending:
                n = 0
                if not i.opt: smem_pending = False
            if not i.opt: done[c] = max(done[c], done_after(lst, n), need)
            txt = ("vmcnt(%d)" if c == "vm" else "lgkmcnt(%d)") % n
            if out and out[-1].kind == "wait" and not out[-1].raw and out[-1].opt == i.opt and txt.split("(")[0] not in out[-1].text:
                out[-1] = I(out[-1].text + " " + txt, opt=i.opt)
            else:
                out.append(I("s_waitcnt " + txt, opt=i.opt))
            continue
        out.append(i)
    return out

_reg = re.compile(r"^-?(?:\|)?(?:abs\()?([vas])(?:(\d+)|\[(\d+):(\d+)\])\)?(?:\|)?$")
def regs(op):
    op = op.strip()
    if op in ("vcc", "exec", "m0", "scc"): return {op}
    if op in ("vcc_lo", "vcc_hi"): return {"vcc"}
    m = _reg.match(op)
    if not m: return set()
    c = m.group(1)
    if m.group(2) is not None: return {c + m.group(2)}
    return {c + str(k) for k in range(int(m.group(3)), int(m.group(4)) + 1)}

def operands(t):
    parts = t.split(None, 1)
    if len(parts) < 2: return []
    rest = parts[1].split(";")[0]
    ops = [o.strip() for o in rest.split(",")]
    res = []
    for o in ops:
        res.append(o.split()[0] if o else o)
    return res

def rw(i):
    t = i.text; m = t.split()[0]; ops = operands(t)
    W = set(); R = set(); info = {}
    if i.kind == "mfma":
        W = regs(ops[0]); info["A"] = regs(ops[1]); info["B"] = regs(ops[2]); info["C"] = regs(ops[3])
        R = info["A"] | info["B"] | info["C"]
        info["passes"] = 8 if "32x32" in m else 4
    elif i.kind == "valu":
        W = regs(ops[0])
        for o in ops[1:]: R |= regs(o)
        if m.startswith(("v_fmac", "v_mac", "v_dot2c", "v_pk_fmac", "v_writelane")): R |= W
        if "permlane" in m and "swap" in m:
            W = regs(ops[0]) | regs(ops[1]); R = set(W); info["permlane"] = True
        if m.startswith(("v_add_co", "v_sub_co", "v_addc_co", "v_subb_co")):
            W |= regs(ops[1]); R = set()
            for o in ops[2:]: R |= regs(o)
        if m.startswith("v_cndmask") and len(ops) == 3: R.add("vcc")
        if m.startswith("v_cmpx"): W.add("exec")
        if "row_" in t or "quad_perm" in t or "_dpp" in m:
            info["dpp"] = regs(ops[1])
            if "bound_ctrl" not in t: R |= regs(ops[0])
        if m.split("_e")[0] in TRANS or m in TRANS: info["trans"] = True
        if m.startswith(("v_readfirstlane", "v_readlane")): info["readlane"] = True
    elif i.kind == "ds":
        if m.startswith(("ds_read", "ds_bpermute", "ds_swizzle", "ds_permute")):
            W = regs(ops[0])
            for o in ops[1:]: R |= regs(o)
        else:
            for o in ops: R |= regs(o)
    elif i.kind == "vmem":
        lds = re.search(r"\blds\b", t) is not None
        if "load" in m and not lds:
            W = regs(ops[0])
            for o in ops[1:]: R |= regs(o)
            if "d16" in m: R |= W
        else:
            for o in ops: R |= regs(o)
            if lds: R.add("m0"); info["ldsdma"] = True
            if "store" in m and ("x3" in m or "x4" in m):
                info["widestore"] = regs(ops[0]) if m.startswith("buffer") else regs(ops[1])
    elif i.kind in ("salu", "smem"):
        if m.startswith(("s_cmp", "s_bitcmp", "s_setprio", "s_sleep")):
            for o in ops: R |= regs(o)
        else:
            if ops: W = regs(ops[0])
            for o in ops[1:]: R |= regs(o)
            if "saveexec" in m: W.add("exec")
    return W, R, info

def isv(s): return {r for r in s if r[0] in "va" and r not in ("vcc",)}
def iss(s): return {r for r in s if r[0] == "s" or r in ("vcc",)}

def hazards(ins, verbose=False):
    out = []
    hist = []
    nins = 0
    for i in ins:
        if i.kind in ("label", "dir"):
            out.append(i); continue
        W, R, info = rw(i)
        need = 0
        dist = 0
        for (p, pW, pR, pinfo, st) in reversed(hist):
            if dist >= 20: break
            req = 0
            if p.kind == "valu":
                vW = isv(pW); sW = iss(pW)
                if i.kind == "mfma" and vW & R: req = max(req, 2)
                if i.kind == "valu":
                    if info.get("dpp") and vW & info["dpp"]: req = max(req, 2)
                    if info.get("permlane") and vW & R: req = max(req, 2)
                    if info.get("readlane") and vW & R: req = max(req, 1)
                    if pinfo.get("trans") and vW & R: req = max(req, 1)
                    if sW & R: req = max(req, 4 if info.get("readlane") else 2)
                    if "exec" in pW and (info.get("dpp")): req = max(req, 5)
                    if "exec" in pW and (info.get("readlane") or info.get("permlane")): req = max(req, 4)
                if i.kind == "mfma" and "exec" in pW: req = max(req, 4)
                if i.kind == "vmem" and sW & R: req = max(req, 5)
                if i.kind in ("salu", "branch") and sW & R: req = max(req, 1)
                if i.kind == "branch" and "vcc" in pW and "vcc" in i.text: req = max(req, 1)
            elif p.kind == "mfma":
                n = pinfo["passes"]
                full = {4: 8, 8: 12}[n]; ovl = {4: 6, 8: 10}[n]; war = {4: 3, 8: 7}[n]
                if i.kind == "mfma":
                    if pW & (info["A"] | info["B"]): req = max(req, full)
                    if pW & info["C"] and not (pW == info["C"] and info["passes"] == n): req = max(req, ovl)
                    if pW & W and not (pW == info["C"]): req = max(req, ovl)
                elif i.kind == "valu":
                    if pW & (R | W): req = max(req, full)
                    if pinfo["C"] & W: req = max(req, war)
                elif i.kind in ("ds", "vmem"):
                    if pW & (R | W): req = max(req, full)
            elif p.kind == "salu":
                if "m0" in pW and info.get("ldsdma"): req = max(req, 1)
            elif p.kind == "vmem":
                if pinfo.get("widestore") and pinfo["widestore"] & W: req = max(req, 2 if i.kind == "valu" else 1)
            elif p.kind == "ds":
                if p.text.startswith(("ds_write_b128", "ds_write_b96")) and (pR & W) and i.kind == "valu": req = max(req, 1)
            need = max(need, req - dist)
            if (not p.opt) or p.opt == i.opt: dist += st
        if need > 0:
            nop = I("s_nop %d" % (need - 1), raw=i.raw, opt=i.opt)
            out.append(nop); hist.append((nop, set(), set(), {}, need)); nins += 1
        out.append(i)
        st = 1
        if i.kind == "nop": st = int(i.text.split()[1]) + 1
        hist.append((i, W, R, info, st))
        if len(hist) > 40: hist = hist[-30:]
    if verbose: print("hazard nops inserted:", nins)
    return out

def interleave(main, side, every=1, per=1, start=0):
    out = L(); k = 0; c = 0
    for i in main:
        out.append(i)
        if i.kind == "mfma":
            c += 1
            if c > start and (c - start) % every == 0:
                n = 0
                while k < len(side) and n < per:
                    out.append(side[k])
                    if side[k].kind not in ("waitvm", "waitlgkm", "label", "dir"): n += 1
                    k += 1
    out.extend(side[k:])
    return out

def render(ins):
    return "\n".join((i.text if i.kind in ("label",) else "    " + i.text) for i in ins) + "\n"

class G(list):
    pass

def cost(x):
    if isinstance(x, G): return sum(cost(i) for i in x)
    return 0 if x.kind in ("waitvm", "waitlgkm", "label", "dir", "delay") else 1

def flat(xs):
    out = L()
    for x in xs:
        if isinstance(x, G): out.extend(x)
        else: out.append(x)
    return out

def split(stream, n):
    tot = sum(cost(x) for x in stream)
    pieces = [[] for _ in range(n)]
    acc = 0
    for x in stream:
        k = min(n - 1, int(acc * n / max(tot, 1)))
        pieces[k].append(x)
        acc += cost(x)
    return pieces

def merge(streams):
    streams = [s for s in streams if s]
    tot = [max(1, sum(cost(x) for x in s)) for s in streams]
    pos = [0] * len(streams); done = [0] * len(streams)
    out = []
    while True:
        best = None
        for k, s in enumerate(streams):
            if pos[k] < len(s):
                f = done[k] / tot[k]
                if best is None or f < best[0]: best = (f, k)
        if best is None: break
        k = best[1]
        x = streams[k][pos[k]]; pos[k] += 1; done[k] += cost(x)
        out.append(x)
    return out

def weave(mf, side):
    out = L()
    pieces = split(side, len(mf))
    for m, p in zip(mf, pieces):
        out.append(m); out.extend(flat(p))
    return out


def wcost(x):
    if isinstance(x, G): return sum(wcost(i) for i in x)
    k = x.kind
    if k in ("label", "dir", "delay"): return 0.0
    if k in ("waitvm", "waitlgkm", "wait", "salu", "nop", "branch", "barrier"): return 0.6
    if k == "valu":
        m = x.text.split()[0]
        return 2.0 if m in TRANS else 1.0
    if k == "ds": return 3.0 if x.text.startswith("ds_write_b128") else 1.0
    if k == "vmem": return 4.0
    if k == "mfma": return 2.0
    return 1.0

class Sched:
    def __init__(self, counts):
        self.counts = counts
        self.start = [0]
        for c in counts: self.start.append(self.start[-1] + c)
        n = self.start[-1]
        self.gap = [[] for _ in range(n)]
        self.load = [0.0] * n
    def rng(self, g0, g1):
        def pos(g, end):
            k = int(g); f = g - k
            if f == 0: return self.start[k + 1] if end else self.start[k]
            return self.start[k] + int(round(f * self.counts[k]))
        return pos(g0, False), pos(g1, True)
    def place(self, stream, g0, g1):
        a, b = self.rng(g0, g1)
        stream = list(stream)
        ndelay = sum(x.tag for x in stream if not isinstance(x, G) and x.kind == "delay")
        tot = sum(wcost(x) for x in stream)
        lo, hi = 0.0, tot + max(self.load[a:b]) + 10
        def run(level, commit):
            k = a; cur = self.load[k]
            for x in stream:
                if not isinstance(x, G) and x.kind == "delay":
                    k += x.tag
                    if k >= b:
                        if not commit: return False
                        k = b - 1
                    cur = self.load[k]; continue
                c = wcost(x)
                while cur + c * 0.5 > level:
                    if k + 1 >= b:
                        if not commit: return False
                        break
                    k += 1; cur = self.load[k]
                if commit:
                    self.gap[k].append(x); self.load[k] += c
                cur += c
            return True
        for _ in range(30):
            mid = (lo + hi) / 2
            if run(mid, False): hi = mid
            else: lo = mid
        run(hi, True)
    def spread(self, stream, g0, g1):
        a, b = self.rng(g0, g1)
        units = []; cur = []
        for x in stream:
            cur.append(x)
            if isinstance(x, G) or x.kind in ("vmem", "ds"):
                units.append(cur); cur = []
        if cur:
            if units: units[-1].extend(cur)
            else: units.append(cur)
        n = len(units)
        for z, u in enumerate(units):
            k = a + (z * (b - a)) // n
            self.gap[k].extend(u); self.load[k] += sum(wcost(x) for x in u)
    def at(self, stream, g):
        a, b = self.rng(g, g if g == int(g) else int(g))
        self.gap[a].extend(stream); self.load[a] += sum(wcost(x) for x in stream)
    def emit(self, step, mf):
        out = L()
        for k, m in enumerate(mf):
            if m is not None: out.append(m)
            out.extend(flat(self.gap[self.start[step] + k]))
        return out


def check_m0(ins, sregs):
    last = {}
    for i in ins:
        if i.raw: continue
        if i.kind == "salu":
            W, R, _ = rw(i)
            for r in W:
                if r == "m0" or r in sregs: last[r] = i.tag
        elif i.kind == "vmem":
            W, R, info = rw(i)
            for r in R:
                if r == "m0" or r in sregs:
                    assert last.get(r) == i.tag, "packet clash on %s: %s (tag %s, set by %s)" % (r, i.text, i.tag, last.get(r))


def gap_time(items, has_mfma=True):
    n = 0; ex = 0
    for x in flat(items):
        k = x.kind
        if k in ("label", "dir", "delay"): continue
        n += 1
        if k == "valu" and x.text.split()[0] in TRANS: ex += 4
        elif k == "ds" and x.text.startswith("ds_write_b128"): ex += 40
        elif k == "ds" and x.text.startswith("ds_write"): ex += 10
        elif k == "mfma": ex += 8
        elif k == "barrier": ex += 80
        elif k == "branch": ex += 10
        elif k == "vmem": ex += 15
    if has_mfma: return max(16.5, 8 + 4.3 * n + ex)
    return 4.3 * n + ex

def ta_cost(x, T):
    t = x.text
    f = 0.5 if x.opt else 1.0
    if "store" in t: return f * (3.2 * T if "x4" in t else 1.8 * T if "x2" in t else T)
    if "atomic" in t: return f * T
    if "load_dword " in t: return f * 0.5 * T
    return f * T

class Pkt:
    def __init__(self, name, ins, first=0, after=(), lag=0):
        self.name = name; self.ins = list(ins); self.first = first; self.after = list(after); self.lag = lag
        self.done_t = None; self.done_gap = None

def pace(S, a, b, pkts, T, nomf=(), step_extra=None, t0=0.0):
    by = {p.name: p for p in pkts}
    todo = list(pkts); cur = None
    t = t0; tfree = t0
    stepof = {}
    for g in range(len(S.counts)):
        for k in range(S.start[g], S.start[g + 1]): stepof[k] = g
    def ready(p, k, t):
        if k < p.first: return False
        for n in p.after:
            q = by[n]
            if q.done_t is None or t < q.done_t + p.lag: return False
        return True
    isv = lambda x: any(i.kind == "vmem" for i in flat([x]))
    for k in range(a, b):
        if step_extra and k == S.start[stepof[k]]: t += step_extra.get(stepof[k], 0)
        for x in flat(S.gap[k]):
            if x.kind == "vmem": tfree = max(tfree, t) + ta_cost(x, T)
        for p in list(todo):
            if p is not cur and not any(isv(x) for x in p.ins) and ready(p, k, t):
                S.gap[k].extend(p.ins); p.done_t = t; p.done_gap = k; todo.remove(p)
                break
        if t + 8 >= tfree:
            if cur is None:
                for p in todo:
                    if any(isv(x) for x in p.ins) and ready(p, k, t):
                        cur = p; break
            if cur is not None:
                while cur.ins:
                    x = cur.ins.pop(0); S.gap[k].append(x)
                    if isv(x):
                        for i in flat([x]):
                            if i.kind == "vmem": tfree = max(tfree, t) + ta_cost(i, T)
                        break
                if not any(isv(x) for x in cur.ins):
                    S.gap[k].extend(cur.ins); cur.ins = []
                    cur.done_t = tfree; cur.done_gap = k; todo.remove(cur); cur = None
        t += gap_time(S.gap[k], stepof[k] not in nomf)
    return todo, t


def align_pass(txt, nopcost=0):
    import subprocess, tempfile, os
    d = tempfile.mkdtemp()
    open(d + "/a.s", "w").write(txt)
    subprocess.run(["clang", "-x", "assembler", "-target", "amdgcn-amd-amdhsa", "-mcpu=gfx950", "-c", d + "/a.s", "-o", d + "/a.o"], check=True)
    dis = subprocess.run(["llvm-objdump", "-d", "--mcpu=gfx950", d + "/a.o"], capture_output=True, text=True).stdout
    enc = []
    for l in dis.split("\n"):
        m = re.search(r"^\s+(\S+).*// ([0-9A-F]+): ((?:[0-9A-F]{8} ?)+)", l)
        if m: enc.append((m.group(1), len(m.group(3).split())))
    lines = txt.split("\n")
    idx = [k for k, l in enumerate(lines) if l.startswith("    ") and not l.strip().startswith((".", ";"))]
    assert len(idx) == len(enc), (len(idx), len(enc))
    no = ("v_readfirstlane", "v_permlane", "v_accvgpr", "v_nop", "v_fmaak", "v_fmamk", "v_cmpx")
    conv = [e[1] == 1 and e[0].endswith("_e32") and not e[0].startswith(no) for e in enc]
    INF = 1 << 30
    cost = [0, INF]; back = []
    for k, (mn, sz) in enumerate(enc):
        nc = [INF, INF]; bk = [None, None]
        for p in (0, 1):
            if cost[p] >= INF: continue
            for c in ((0, 1) if conv[k] else (0, 2) if (nopcost and sz == 1 and not mn.startswith(("s_cbranch", "s_branch", "s_endpgm", "s_getpc"))) else (0,)):
                s = sz + (1 if c else 0)
                v = cost[p] + (10 if (s == 2 and p == 1 and c != 2) else 0) + (c if c < 2 else nopcost)
                q = (p + s) & 1
                if v < nc[q]: nc[q] = v; bk[q] = (p, c)
        cost = nc; back.append(bk)
    p = 0 if cost[0] <= cost[1] else 1
    n = 0
    for k in range(len(enc) - 1, -1, -1):
        p, c = back[k][p]
        if c == 2: lines[idx[k]] += "\n    s_nop 0"; n += 1000
        elif c:
            t = lines[idx[k]].strip(); mn, _, rest = t.partition(" ")
            lines[idx[k]] = "    " + mn + "_e64 " + rest; n += 1
    return "\n".join(lines), n, min(cost) // 10
```

```python
import sys, struct
from asmgen import NAME, header, kernel_begin, descriptor, rodata, STAMP_OFF
from ir import *

def f2u(x): return struct.unpack("<I", struct.pack("<f", x))[0]
SLOT = 20480
PRIV = 81920; PRIV_SZ = 17408; P_HT = 12288
L_KVR = SLOT; L_RP0 = 3 * SLOT
MISC = PRIV + 4 * PRIV_SZ
M_G = MISC; M_GATE = MISC + 512; M_S = MISC + 2560; M_PARAM = M_S; L_KVX = M_S; M_DSK = MISC + 8960
C_R = 0; C_IMG = 2048
C_H, C_O = 0, 256
W_AGG = 0x10000; W_KVP = 0x40000; W_A2 = 0x200000
W_KVI = 0xA00000; W_QI = 0xC00000; W_WOI = 0xD00000
TSTR = 61440
LOG2E = 0x3fb8aa3b; EPS = f2u(1e-6); NEL = f2u(-1e-6 * 1.4426950408889634)
OOB = 0x7ffffff0

sX, sB, sRP, sC, sWS, sOUT, sDBG, sAG, sT = 48, 52, 56, 60, 64, 68, 72, 76, 80
sDSK = sB
def srd(b): return "s[%d:%d]" % (b, b + 3)
s_w, s_i, s_j, s_ct, s_rb, s_priv, s_wm0, s_bm0 = 3, 4, 5, 6, 7, 8, 9, 10
s_t0, s_t1, s_t2, s_t3, s_so = 11, 12, 13, 14, 15
s_cj, s_ci, s_rstep, s_rlds, s_w1, s_cct = 84, 85, 86, 87, 88, 89
s_am = 90; s_log2e, s_eps, s_a2p, s_spin, s_mask = 94, 95, 96, 97, 98
s_aggst, s_kvpst = 34, 35
s_kvi, s_aggld, s_aggld2, s_kvpld, s_woi, s_pt = 16, 17, 24, 25, 28, 29
s_qb, s_wob = 36, 37
s_rx, s_rbb, s_rk, s_rq = 0, 1, 2, 38
s_hs, s_hp, s_os, s_op = 39, 40, 41, 45
s_so2 = 31; s_gid = 99
s_lo2 = 46
s_rd = [18, 19, 20, 21]; s_rsig = 30
sR2 = 76
s_ao, s_ao2 = 22, 23

v_lane, v_n, v_q = 1, 2, 3
vXA = [4, 5]; vBA = [6, 7, 8, 9]; vGA = 10; vDX = [11, 12, 13, 14]; vDW = [15, 16, 17, 18, 19]
v_l16, v_col4 = 20, 21
vA8, vB8, vA128, vB128 = 22, 23, 24, 25
v_poll, v_one = 26, 27
vt = [28, 29, 30, 31]
v_nel = vGA
U0 = 32; KV0 = 80; Q0 = 192; S0 = 120; TE = 136; FB0 = 144; PR0 = 192
v_zero, v_crd, v_cwr = TE + 5, TE + 6, TE + 7
RB, RT, v_ct, v_pl = 73, 74, 75, 72
RV = KV0 + 16
vY, vI0, vI1, vI2, vWE = 76, 77, 78, 79, 9
RD1 = 236
EPSQ = 222; EPSX = 226; TT = 232
vC = [184, 185]; v_srow, v_htw, v_htr, v_hst, v_sad, v_kvw = 186, 187, 188, 189, 190, 191
vL4 = [v_l16, vA8, vB8, vA128]
v_o0, v_o1 = vDX[0], vDX[1]
vRX = [vDW[0], vDW[1], vDW[2], vDW[3]]
ACC = 32; AF = 112; NAF = 4; GB = 176; PQ = 240; OMG = 252
GA = 104; SEL = 216; GD = 224; v_l8 = vB128
AO = 104
WE = list(range(184, 256, 4)) + [0, 4]
WSLOT = [2, 1, 3, 0]
def vr(b, n=4): return "v[%d:%d]" % (b, b + n - 1)
def ar(b, n=4): return "a[%d:%d]" % (b, b + n - 1)
DPP = "row_ror:8 row_mask:0xf bank_mask:0xf"
M = "v_mfma_f32_16x16x32_bf16"
def grp(s, tag=None): return G(L()(s, tag=tag))

class Gen:
    def __init__(self, stamps=0, mapping="8x4", rot="ij", outflag="sc1", opt=None):
        self.stamps = stamps; self.mapping = mapping; self.rot = rot; self.outflag = outflag
        self.opt = opt or {}
        self.padat = ["-", "start", "karg2", "st0", "g19", "g39", "g59", "k9", "end"][self.opt.get("pad", 0)]
        self.slow = L(); self.nst = 2; self.nl = 0; self.names = ["rt0", "start"]
    def label(self, b):
        self.nl += 1
        return "L_%s_%d" % (b, self.nl)
    def stamp(self, a, name="", level=1, real=False):
        if self.padat == name: a.append(grp("s_memrealtime s[100:101]\ns_waitcnt lgkmcnt(0)"))
        if self.stamps and self.stamps >= level:
            k = self.nst; self.nst += 1
            assert k < 62
            self.names.append(name)
            a.append(grp("%s s[100:101]\ns_waitcnt lgkmcnt(0)\nv_writelane_b32 v0, s100, %d" % ("s_memrealtime" if real else "s_memtime", k)))
    def only(self, cond, body):
        lab = self.label("skip")
        g = L()
        g({"w0": "s_cmp_eq_u32 s%d, 0", "lo": "s_cmp_lt_u32 s%d, 2", "hi": "s_cmp_ge_u32 s%d, 2", "n3": "s_cmp_lt_u32 s%d, 3", "w3": "s_cmp_eq_u32 s%d, 3", "cw": "s_cmp_eq_u32 s%d, 800"}[cond] % (s_gid if cond == "cw" else s_w))
        g("s_cbranch_scc0 %s" % lab)
        for i in flat(body):
            i.opt = lab; g.append(i)
        g(lab + ":")
        return G(g)
    def spin_head(self, s, slow):
        s(slow + ":", raw=True)
        s("s_sub_u32 s%d, s%d, 1\ns_cmp_eq_u32 s%d, 0\ns_cbranch_scc1 L_end" % (s_spin, s_spin, s_spin), raw=True)
        if self.opt.get("sleep", 0): s("s_sleep %d" % self.opt["sleep"], raw=True)
    def poll_issue(self, srdb, soff, imm, tag):
        return L()("buffer_load_dword v%d, off, %s, %s offset:%d sc1" % (v_poll, srd(srdb), soff, imm), tag=tag)
    def poll_check(self, srdb, soff, imm, tag, target):
        slow = self.label("slow"); back = self.label("back")
        g = L()
        g.wv(tag)
        g("v_readfirstlane_b32 s%d, v%d" % (s_pt, v_poll))
        g("s_cmp_ge_u32 s%d, %d\ns_cbranch_scc0 %s" % (s_pt, target, slow))
        g(back + ":")
        s = self.slow
        self.spin_head(s, slow)
        s("buffer_load_dword v%d, off, %s, %s offset:%d sc1" % (v_poll, srd(srdb), soff, imm), raw=True)
        s("s_waitcnt vmcnt(0)\nv_readfirstlane_b32 s%d, v%d\ns_nop 1\ns_cmp_ge_u32 s%d, %d" % (s_pt, v_poll, s_pt, target), raw=True)
        s("s_cbranch_scc0 %s\ns_branch %s" % (slow, back), raw=True)
        return [G(g)]
    def signal(self, pairs, pre=None):
        b = L()
        if pre: b.extend(pre)
        b("s_mov_b64 exec, 1")
        for sreg, imm in pairs: b("buffer_atomic_add v%d, off, %s, s%d offset:%d sc1" % (v_one, srd(sWS), sreg, imm), tag="at")
        b("s_mov_b64 exec, -1")
        return [self.only("w0", b)]

    def rotso(self, a, base, c, lim, tag, add=None):
        a("s_add_u32 s%d, s%d, %d\ns_sub_u32 s%d, s%d, %d\ns_min_u32 s%d, s%d, s%d" % (s_so, base, c, s_so2, s_so, lim, s_so, s_so, s_so2), tag=tag)
        if add is not None: a("s_add_u32 s%d, s%d, s%d" % (s_so, s_so, add), tag=tag)
    def dma_x(self, sg):
        a = L(); tag = "x%d" % sg
        if sg >= 4: a.wl("xr%d" % (sg - 4))
        a("s_add_u32 m0, s%d, %d" % (s_priv, 4096 * (sg & 3)), tag=tag)
        if sg: self.rotso(a, s_rx, 128 * sg, 1280, tag)
        for ph in range(4):
            a("buffer_load_dwordx4 v%d, %s, s%d offen offset:%d lds" % (vDX[ph], srd(sX), s_so if sg else s_rx, 1024 * ph), tag=tag)
        return a
    def dma_w(self, st):
        a = L()
        slot = st % 4; tag = "w%d" % st
        if st < 5:
            a("s_add_u32 m0, s%d, %d" % (s_bm0, slot * SLOT), tag=tag)
            self.rotso(a, s_rbb, 256 * st, 1280, tag)
            for ph in range(4):
                a("buffer_load_dwordx4 v%d, %s, s%d offen offset:%d lds" % (vDW[ph], srd(sB), s_so, 1024 * ph), tag=tag)
            a("s_add_u32 m0, s%d, %d" % (s_bm0, slot * SLOT + 4096), tag=tag)
            a("buffer_load_dwordx4 v%d, %s, s%d offen lds" % (vDW[4], srd(sB), s_so), tag=tag)
            return a
        a("s_add_u32 m0, s%d, %d" % (s_wm0, slot * SLOT), tag=tag)
        if st < 10: self.rotso(a, s_rk, 20480 * (st - 5), 102400, tag, s_kvi)
        else: self.rotso(a, s_rq, 20480 * (st - 10), 51200, tag, s_qb)
        for ph in range(4):
            a("buffer_load_dwordx4 v%d, %s, s%d offen offset:%d sc1 lds" % (v_l16, srd(sWS), s_so, 1024 * ph), tag=tag)
        a("s_add_u32 m0, s%d, %d\ns_add_u32 s%d, s%d, 4096" % (s_wm0, slot * SLOT + 4096, s_so, s_so), tag=tag)
        a("buffer_load_dwordx4 v%d, %s, s%d offen sc1 lds" % (v_l16, srd(sWS), s_so), tag=tag)
        if st == 12: return [self.only("lo", a)]
        return a
    NCU = 6
    def c_un(self, u):
        return (u % 5, u // 5) if self.opt.get("crow", 0) else divmod(u, 5)
    def c_reg(self, kap, nt):
        u = (kap >> 1) * 5 + nt
        return (160 + 8 * u if u < 12 else 8 * (u - 12)) + 4 * (kap & 1)
    def dma_c(self, u):
        a = L(); sg, nt = divmod(u, 5); tag = "c%d" % u
        if u >= self.NCU: a.wl("cr%d" % (u - self.NCU))
        if u == 0: a.wl("xr9")
        a("s_add_u32 m0, s%d, %d" % (s_priv, 2048 * (u % self.NCU)), tag=tag)
        a("s_mov_b32 s%d, %d" % (s_so, nt * 20480 + 128 * sg), tag=tag)
        for h in range(2):
            a("buffer_load_dwordx4 v%d, %s, s%d offen offset:%d lds" % (vC[h], srd(sC), s_so, 1024 * h), tag=tag)
        return a
    def rd_c(self, u):
        a = L(); sg, nt = divmod(u, 5)
        a.wv("c%d" % u)
        for e in range(2):
            a("ds_read_b128 %s, v%d offset:%d" % (ar(self.c_reg(2 * sg + e, nt)), vXA[e], 2048 * (u % self.NCU)), tag="cr%d" % u)
        return a
    def rp_issue(self):
        b = L(); tag = "rp"
        for k in range(3):
            b("s_add_u32 m0, s%d, %d" % (s_rlds, 896 * k), tag=tag)
            b("buffer_load_dwordx4 v%d, %s, 0 offen offset:%d lds" % (RV, srd(sRP), 128 * k), tag=tag)
        b("s_add_u32 m0, s%d, 3072" % s_rlds, tag=tag)
        b("buffer_load_dwordx4 v%d, %s, 0 offen lds" % (RV + 1, srd(sR2)), tag=tag)
        return b
    def rp_read(self):
        b = L()
        b.wv("rp")
        for z in range(4):
            for e in range(2):
                b("ds_read_b64_tr_b16 %s, v%d offset:%d" % (vr(KV0 + 4 * z + 2 * e, 2), RT, 1024 * z + 512 * e), tag="rr")
        return b
    def rp_store(self):
        b = L()
        b.wl("rr")
        for z in range(4):
            b("buffer_store_dwordx4 %s, v%d, %s, s%d offen sc1" % (vr(KV0 + 4 * z), RV + 2 + z, srd(sWS), s_rd[z]), tag="rs")
        return b
    def rp_signal(self):
        b = L(flat(self.poll_check(sDBG, "0", 0, "clr", 1)))
        b("s_mov_b64 exec, 1\nbuffer_atomic_add v%d, off, %s, s%d sc1\ns_mov_b64 exec, -1" % (v_one, srd(sWS), s_rsig), tag="at")
        return [G(b)]
    def clears(self):
        b = L()
        b("buffer_store_dwordx4 %s, v%d, %s, s%d offen sc1" % (vr(S0), S0 + 4, srd(sWS), s_rstep), tag="rs")
        b("buffer_store_dword v%d, v%d, %s, s%d offen sc1" % (S0, v_col4, srd(sAG), s_aggst), tag="rs")
        return [self.only("lo", b)]
    def vpoll_issue(self, tag, raw=False):
        return L()("buffer_load_dword v%d, v%d, %s, 0 offen sc1" % (v_poll, v_pl, srd(sWS)), tag=tag, raw=raw)
    def vpoll_check(self, tag, target):
        slow = self.label("slow"); back = self.label("back")
        chk = "v_cmp_gt_u32 vcc, %d, v%d\n" % (target, v_poll)
        g = L(); g.wv(tag); g(chk + "s_cbranch_vccnz %s\n%s:" % (slow, back))
        s = self.slow
        self.spin_head(s, slow)
        s.extend(self.vpoll_issue(tag, raw=True))
        s("s_waitcnt vmcnt(0)\n" + chk + "s_cbranch_vccnz %s\ns_branch %s" % (slow, back), raw=True)
        return g
    def wsignal(self, tag, sreg):
        g = L(); g.wv(tag)
        g("s_mov_b64 exec, 1\nbuffer_atomic_add v%d, off, %s, s%d sc1\ns_mov_b64 exec, -1" % (v_one, srd(sWS), sreg), tag="at")
        return [G(g)]

    def stage_of(self, g):
        if g < 40: return g // 4, g % 4
        return 10 + (g - 40) // 8, (g - 40) % 8
    def fb(self, g): return FB0 + (20 if g < 40 else 12) * (g & 1)
    def frag_reads(self, g):
        a = L()
        st, kk = self.stage_of(g)
        slot = st % 4; hi = slot >= 2; off = (slot - 2 * hi) * SLOT
        fb = self.fb(g); tag = "f%d" % g
        if g < 20:
            adr = vBA[(kk & 1) + 2 * hi]
            for t in range(5):
                a("ds_read_b128 %s, v%d offset:%d" % (vr(fb + 4 * t), adr, off + 10240 * (kk >> 1) + 1024 * t), tag=tag + "_%d" % t)
        elif g < 40:
            o = off + 5120 * kk
            for t, (adr, to) in enumerate([(0, 0), (0, 384), (1, 0), (0, 640), (0, 1024)]):
                a("ds_read_b128 %s, v%d offset:%d" % (vr(fb + 4 * t), vBA[adr + 2 * hi], o + to), tag=tag + "_%d" % t)
        else:
            o = off + 5120 * (kk >> 1) + 640 * (kk & 1)
            a("ds_read_b128 %s, v%d offset:%d" % (vr(fb), vBA[2 * hi], o), tag=tag + "_0")
            y = L()("ds_read_b128 %s, v%d" % (vr(fb + 4), vY), tag=tag + "_1")
            if g < 59: y("v_add_u32 v%d, v%d, v%d" % (vY, vY, vI2 if g == 55 else vI1 if g & 1 else vI0))
            a.append(G(y))
            a("ds_read_b128 %s, v%d offset:%d" % (vr(fb + 8), vBA[2 * hi], o + 384), tag=tag + "_2")
        return a
    def x_reads(self, sg):
        a = L(); tag = "xr%d" % sg
        for e in range(2):
            for i in range(2):
                a("ds_read_b128 %s, v%d offset:%d" % (ar(8 * (2 * sg + e) + 4 * i), vXA[e], 4096 * (sg & 3) + 2048 * i), tag=tag)
        return a
    def mfmas(self, g):
        a = L()
        if g >= 60:
            k = g - 60
            if k < 8: lst = [(ml, k, nt) for ml in range(4) for nt in range(5)]
            else: lst = [(ml, kk, nt) for ml in (1, 2, 3, 0) for kk in (8, 9) for nt in range(5)][20 * (k - 8):20 * (k - 8) + 20]
            for ml, kk, nt in lst:
                dd = ACC + 20 * ml + 4 * nt
                a("%s %s, %s, %s, %s" % (M, vr(dd), vr(AF + 16 * (kk % NAF) + 4 * ml), ar(self.c_reg(kk, nt)), vr(dd) if (kk or ml == 0) else "0"))
            return a
        ks = g % 20; fb = self.fb(g)
        if g < 20:
            for t in range(5):
                for i in range(2):
                    d = U0 + 8 * t + 4 * i
                    a("%s %s, %s, %s, %s" % (M, vr(d), ar(8 * ks + 4 * i), vr(fb + 4 * t), vr(d) if ks else "0"))
        elif g < 40:
            for t in range(5):
                for i in range(2):
                    d = KV0 + 8 * t + 4 * i
                    c0 = [vr(EPSQ), vr(EPSQ), vr(EPSX), "0", "0"][t]
                    a("%s %s, %s, %s, %s" % (M, vr(d), ar(8 * ks + 4 * i), vr(fb + 4 * t), vr(d) if ks else c0))
        else:
            for t in range(3):
                for i in range(2):
                    d = Q0 + 8 * t + 4 * i
                    a("%s %s, %s, %s, %s" % (M, vr(d), vr(fb + 4 * t), ar(8 * ks + 4 * i), vr(d) if ks else vr(EPSQ)))
        return a
    def phi8(self, a, r, tmp):
        for k in range(8): a("v_fma_f32 v%d, v%d, s%d, v%d" % (tmp + k, r + k, s_log2e, v_nel))
        for k in range(8):
            a("v_exp_f32 v%d, v%d clamp" % (tmp + k, tmp + k))
            a("v_max_f32 v%d, s%d, v%d" % (r + k, s_eps, r + k))
        for k in range(8): a("v_add_f32 v%d, v%d, v%d" % (r + k, r + k, tmp + k))
    def mk(self, b, lo, add_reg, nrec):
        if add_reg is None: t = "s_mov_b32 s%d, s%d\ns_mov_b32 s%d, s%d\n" % (b, lo, b + 1, lo + 1)
        else: t = "s_add_u32 s%d, s%d, s%d\ns_addc_u32 s%d, s%d, 0\n" % (b, lo, add_reg, b + 1, lo + 1)
        if isinstance(nrec, int): t += "s_mov_b32 s%d, 0x%x\n" % (b + 2, nrec)
        elif nrec: t += nrec + "\n"
        return t + "s_mov_b32 s%d, 0x20000\n" % (b + 3)
    def prologue(self):
        a = L()
        t0, t1, t2, t3 = vt
        a("s_cmp_ge_u32 s2, 256\ns_cbranch_scc1 L_end")
        a("s_load_dwordx16 s[16:31], s[0:1], 0\ns_load_dwordx16 s[32:47], s[0:1], 64")
        if self.stamps: a("s_memrealtime s[98:99]\ns_memtime s[100:101]")
        if self.padat == "start": a("s_memrealtime s[100:101]")
        a("s_getpc_b64 s[%d:%d]\nL_pc0:" % (sT, sT + 1))
        a("s_mov_b32 s%d, L_codeend-L_pc0\ns_mov_b32 s%d, 0x20000" % (sT + 2, sT + 3))
        a("s_lshr_b32 s%d, s2, 3\ns_lshl_b32 s%d, s%d, 10" % (s_t1, s_t2, s_t1))
        a("v_lshrrev_b32 v%d, 5, v0\nv_lshlrev_b32 v%d, 7, v%d" % (t1, t1, t1))
        a("buffer_load_dword v255, v%d, %s, s%d offen" % (t1, srd(sT), s_t2), tag="pf")
        a("v_lshrrev_b32 v%d, 6, v0\nv_and_b32 v%d, 63, v0" % (t0, v_lane))
        a("v_readfirstlane_b32 s%d, v%d" % (s_w, t0))
        tl = self.opt.get("tlb", 0)
        if tl:
            TI, TO, TA = U0 + 8, U0 + 9, U0 + 10
            a("v_min_u32 v%d, 15, v%d\nv_subrev_u32 v%d, 15, v%d\nv_max_i32 v%d, 0, v%d" % (TI, v_lane, TO, v_lane, TO, TO))
            a("v_cmp_lt_u32 vcc, 21, v%d\nv_subrev_u32 v%d, 6, v%d\nv_cndmask_b32 v%d, v%d, v%d, vcc\nv_mov_b32 v%d, 13\nv_cndmask_b32 v%d, v%d, v%d, vcc" % (v_lane, TA, TO, TO, TO, TA, TA, TI, TI, TA))
            a("v_cmp_lt_u32 vcc, 23, v%d\nv_mov_b32 v%d, 1\nv_cndmask_b32 v%d, v%d, v%d, vcc\nv_and_b32 v%d, 1, v%d\nv_mul_u32_u24 v%d, 10, v%d\nv_cndmask_b32 v%d, v%d, v%d, vcc" % (v_lane, TA, TO, TO, TA, TA, v_lane, TA, TA, TI, TI, TA))
            a("v_lshlrev_b32 v%d, 3, v%d\nv_lshlrev_b32 v%d, 21, v%d" % (TI, TI, TO, TO))
            a("global_load_dwordx2 %s, v%d, s[0:1]" % (vr(TA, 2), TI), tag="kp")
        g_, o_, b_ = s_cj, s_ci, s_cct
        a("s_lshl_b32 s%d, s%d, 8\ns_add_u32 s%d, s%d, s2\ns_mul_i32 s%d, s%d, 6554\ns_lshr_b32 s%d, s%d, 16\ns_mul_i32 s%d, s%d, 10\ns_sub_u32 s%d, s%d, s%d"
          % (g_, s_w, g_, g_, o_, g_, o_, o_, s_t0, o_, b_, g_, s_t0))
        a("s_lshl_b32 s%d, s%d, 12\ns_add_u32 s%d, s%d, %d" % (s_rlds, s_w, s_rlds, s_rlds, L_RP0))
        a("s_mul_i32 s%d, s%d, %d\ns_mul_i32 s%d, s%d, 384\ns_add_u32 s%d, s%d, s%d" % (s_am, o_, 8 * 3840, s_t0, b_, s_am, s_am, s_t0))
        a("s_mul_i32 s%d, s%d, 205\ns_lshr_b32 s%d, s%d, 10\ns_mul_i32 s%d, s%d, 5\ns_sub_u32 s%d, s%d, s%d" % (s_t0, o_, s_t0, s_t0, s_t0, s_t0, s_t2, o_, s_t0))
        a("s_add_u32 s%d, s%d, s%d\ns_mul_i32 s%d, s%d, 5120\ns_lshl_b32 s%d, s%d, 7\ns_add_u32 s%d, s%d, s%d" % (s_t0, s_t0, o_, s_t0, s_t0, s_t3, b_, s_am + 1, s_t0, s_t3))
        a("s_cmp_lt_u32 s%d, 4\ns_cselect_b32 s%d, %d, 0" % (s_t2, s_t2, 20 * 1280))
        a("s_cmp_lt_u32 s%d, 800\ns_cselect_b32 s%d, %d, 0\ns_cselect_b32 s%d, %d, 0" % (g_, sRP + 2, 7 * 3840 + 384, sR2 + 2, 27 * 1280 + 128))
        a("s_mov_b32 s%d, 0x20000\ns_mov_b32 s%d, 0x20000" % (sRP + 3, sR2 + 3))
        a("v_lshrrev_b32 v%d, 3, v%d\nv_and_b32 v%d, 7, v%d\nv_lshlrev_b32 v%d, 4, v%d" % (t0, v_lane, t3, v_lane, t1, t3))
        a("v_mul_u32_u24 v%d, 3840, v%d\nv_add_u32 v%d, v%d, v%d\nv_mul_u32_u24 v%d, 1280, v%d\nv_add_u32 v%d, v%d, v%d" % (RV, t0, RV, RV, t1, vC[0], t0, RV + 1, vC[0], t1))
        a("v_lshrrev_b32 v%d, 2, v%d\nv_mad_u32_u24 v%d, v%d, s%d, v%d" % (t1, t0, RV + 1, t1, s_t2, RV + 1))
        a("s_or_b32 s%d, s2, s%d\ns_mov_b32 s%d, s2\ns_and_b32 s%d, s%d, 1\ns_and_b32 s%d, s2, 7" % (s_a2p, s_w, s_spin, s_w1, s_w, s_t0))
        a("s_waitcnt lgkmcnt(0)")
        if self.stamps:
            a("v_writelane_b32 v0, s98, 0\nv_writelane_b32 v0, s100, 1\nv_writelane_b32 v0, s2, 63")
            self.stamp(a, "karg", level=2)
        self.stamp(a, "karg2", level=9)
        q = L()
        q("v_lshlrev_b32 v%d, 7, v%d\nv_mov_b32 v%d, 0\nv_add_u32 v%d, 8192, v%d\nv_add_u32 v%d, 16384, v%d" % (U0, v_lane, U0 + 1, U0 + 2, U0, U0 + 3, U0))
        q("global_store_dword v%d, v%d, s[46:47] sc1\nglobal_store_dword v%d, v%d, s[46:47] sc1\nglobal_store_dword v%d, v%d, s[46:47] sc1" % (U0, U0 + 1, U0 + 2, U0 + 1, U0 + 3, U0 + 1), tag="cs")
        a("s_mov_b32 s%d, s%d" % (s_gid, g_))
        a.append(self.only("cw", q))
        q = L(); q.wv("cs"); q("buffer_store_dword v%d, off, %s, 0 sc1" % (v_one, srd(sDBG)), tag="cf")
        self.cflag = [self.only("cw", q)]
        a("s_add_u32 s%d, s36, s%d\ns_addc_u32 s%d, s37, 0\ns_add_u32 s%d, s38, s%d\ns_addc_u32 s%d, s39, 0" % (sRP, s_am, sRP + 1, sR2, s_am + 1, sR2 + 1))
        def touch():
            q = L(); q.wv("kp")
            q("v_add_co_u32 v%d, vcc, v%d, v%d\nv_addc_co_u32 v%d, vcc, 0, v%d, vcc\nglobal_load_dword v255, %s, off" % (TA, TA, TO, TA + 1, TA + 1, vr(TA, 2)), tag="tl")
            return q
        if tl == 1: a.extend(touch())
        if tl == 3: a.append(self.only("w3", touch()))
        a.extend(self.rp_issue())
        if tl == 2: a.extend(touch())
        if self.mapping == "8x4":
            a("s_and_b32 s%d, s%d, 1\ns_lshl_b32 s%d, s%d, 3\ns_and_b32 s%d, s%d, 7\ns_add_u32 s%d, s%d, s%d" % (s_i, s_t0, s_i, s_i, s_t2, s_t1, s_i, s_i, s_t2))
            a("s_lshr_b32 s%d, s%d, 1\ns_lshl_b32 s%d, s%d, 2\ns_lshr_b32 s%d, s%d, 3\ns_add_u32 s%d, s%d, s%d" % (s_j, s_t0, s_j, s_j, s_t2, s_t1, s_j, s_j, s_t2))
        else:
            a("s_and_b32 s%d, s%d, 3\ns_lshl_b32 s%d, s%d, 2\ns_and_b32 s%d, s%d, 3\ns_add_u32 s%d, s%d, s%d" % (s_i, s_t0, s_i, s_i, s_t2, s_t1, s_i, s_i, s_t2))
            a("s_lshr_b32 s%d, s%d, 2\ns_lshl_b32 s%d, s%d, 3\ns_lshr_b32 s%d, s%d, 2\ns_add_u32 s%d, s%d, s%d" % (s_j, s_t0, s_j, s_j, s_t2, s_t1, s_j, s_j, s_t2))
        if self.rot == "none":
            a("s_mov_b32 s%d, 0" % s_t3)
        elif self.rot == "xcd":
            tab = [0, 2, 5, 7, 5, 7, 0, 2] if self.mapping == "4x8" else [0, 5, 2, 7, 5, 0, 7, 2]
            K = sum(v << (4 * k) for k, v in enumerate(tab))
            a("s_lshl_b32 s%d, s%d, 2\ns_lshr_b32 s%d, 0x%x, s%d\ns_and_b32 s%d, s%d, 15" % (s_t3, s_t0, s_t3, K, s_t3, s_t3, s_t3))
        elif self.rot.startswith("jx"):
            mj = int(self.rot[2:] or 1)
            sh, mu = (2, 3) if self.mapping == "4x8" else (3, 5)
            if self.mapping == "4x8": a("s_lshr_b32 s%d, s%d, 2\ns_mul_i32 s%d, s%d, 5\ns_lshr_b32 s%d, s%d, 1" % (s_t3, s_i, s_t3, s_t3, s_t3, s_t3))
            else: a("s_lshr_b32 s%d, s%d, 3\ns_mul_i32 s%d, s%d, 5" % (s_t3, s_i, s_t3, s_t3))
            a("s_mul_i32 s%d, s%d, %d\ns_add_u32 s%d, s%d, s%d\ns_mul_i32 s%d, s%d, 205\ns_lshr_b32 s%d, s%d, 11\ns_mul_i32 s%d, s%d, 10\ns_sub_u32 s%d, s%d, s%d"
              % (s_t2, s_j, mj, s_t3, s_t3, s_t2, s_t2, s_t3, s_t2, s_t2, s_t2, s_t2, s_t3, s_t3, s_t2))
        elif self.rot == "r4":
            a("s_xor_b32 s%d, s%d, s%d\ns_and_b32 s%d, s%d, 1\ns_mul_i32 s%d, s%d, 5" % (s_t3, s_i, s_j, s_t3, s_t3, s_t3, s_t3))
            a("s_lshr_b32 s%d, s%d, 2\ns_xor_b32 s%d, s%d, s%d\ns_and_b32 s%d, s%d, 1\ns_lshl_b32 s%d, s%d, 1\ns_add_u32 s%d, s%d, s%d" % (s_t2, s_t0, s_t2, s_t2, s_t0, s_t2, s_t2, s_t2, s_t2, s_t3, s_t3, s_t2))
        else:
            mul = {"ij": 1, "ij2": 2, "ij3": 3}[self.rot]
            a("s_add_u32 s%d, s%d, s%d\ns_mul_i32 s%d, s%d, %d\ns_mul_i32 s%d, s%d, 205\ns_lshr_b32 s%d, s%d, 11\ns_mul_i32 s%d, s%d, 10\ns_sub_u32 s%d, s%d, s%d"
              % (s_t3, s_i, s_j, s_t3, s_t3, mul, s_t2, s_t3, s_t2, s_t2, s_t2, s_t2, s_t3, s_t3, s_t2))
        a("v_lshrrev_b32 v%d, 4, v%d" % (v_q, v_lane))
        a("s_mul_i32 s%d, s%d, %d\ns_add_u32 s%d, s%d, %d" % (s_priv, s_w, PRIV_SZ, s_priv, s_priv, PRIV))
        a("v_xor_b32 v%d, v%d, v%d\nv_lshlrev_b32 v%d, 4, v%d" % (t1, t3, v_q, t1, t1))
        a("v_and_b32 v%d, 4, v%d\ns_lshl_b32 s%d, s%d, 5\nv_add3_u32 v%d, v%d, v%d, s%d" % (t2, t0, s_t2, s_w, t2, t2, t0, s_t2))
        a("v_mul_u32_u24 v%d, 1280, v%d\nv_add_u32 v%d, v%d, v%d" % (t2, t2, vDX[0], t2, t1))
        a("v_xor_b32 v%d, 64, v%d\nv_add_u32 v%d, %d, v%d" % (vDX[1], vDX[0], vDX[1], 16 * 1280 - 1024, vDX[1]))
        a("v_add_u32 v%d, %d, v%d\nv_add_u32 v%d, %d, v%d" % (vDX[2], 4 * 1280 - 2048, vDX[0], vDX[3], 4 * 1280 - 2048, vDX[1]))
        a("s_mul_i32 s%d, s%d, 163840\ns_lshl_b32 s%d, s%d, 7" % (s_t0, s_i, s_rx, s_t3)); a(self.mk(sX, 16, s_t0, 163840))
        a.extend(self.dma_x(0))
        a("s_cmp_lt_u32 s%d, 2\ns_cselect_b32 s22, s22, s24\ns_cselect_b32 s23, s23, s25\ns_cselect_b32 s26, s26, s28\ns_cselect_b32 s27, s27, s29" % s_w)
        a("s_mul_i32 s%d, s%d, 51200" % (s_t1, s_j)); a(self.mk(sB, 22, s_t1, 51200))
        a("s_mul_i32 s%d, s%d, 10240\ns_lshr_b32 s%d, s%d, 1\ns_mul_i32 s%d, s%d, 5120\ns_add_u32 s%d, s%d, s%d"
          % (s_bm0, s_w1, s_t1, s_w, s_t2, s_t1, s_bm0, s_bm0, s_t2))
        a("s_lshl_b32 s%d, s%d, 6\ns_lshl_b32 s%d, s%d, 7\ns_add_u32 s%d, s%d, s%d" % (s_t1, s_t1, s_t2, s_w1, s_rbb, s_rx, s_t2))
        a("v_add_u32 v%d, v%d, v%d\nv_xor_b32 v%d, s%d, v%d" % (vC[0], vC[0], t1, vDW[0], s_t1, vC[0]))
        for t in range(1, 5):
            a("v_add_u32 v%d, %d, v%d" % (vDW[t], 10240 * t - (1024 * t if t < 4 else 0), vDW[0]))
        a("s_mul_i32 s%d, s%d, 40\nv_min_u32 v%d, 39, v%d\nv_add_lshl_u32 v%d, v%d, s%d, 1" % (s_t1, s_j, TT + 9, v_lane, t1, TT + 9, s_t1))
        a("global_load_ushort v%d, v%d, s[18:19]" % (TT, t1), tag="par")
        a("global_load_ushort v%d, v%d, s[20:21]" % (TT + 1, t1), tag="par")
        a("global_load_ushort v%d, v%d, s[30:31]" % (TT + 2, t1), tag="par")
        order = self.opt.get("order", 1)
        if order == 0: a.extend(self.dma_w(0))
        self.stamp(a, "iss0", level=2)
        c = a
        c("v_lshlrev_b32 v%d, 4, v%d\nv_and_b32 v%d, 15, v%d" % (v_l16, v_lane, v_n, v_lane))
        c(self.mk(sWS, 46, None, 0x10000000 if self.stamps else 0x1000000))
        c(self.mk(sDBG, 44, None, 256))
        c("s_and_b32 s%d, s%d, 7\ns_lshr_b32 s%d, s%d, 3\ns_mul_i32 s%d, s%d, 5120" % (s_ct, s_j, s_rb, s_j, s_wm0, s_w))
        kvo, qo = s_qb, s_wob
        c("s_lshl_b32 s%d, s%d, 1\ns_and_b32 s%d, s%d, 6\ns_bfe_u32 s%d, s%d, 0x10002\ns_or_b32 s%d, s%d, s%d\ns_andn2_b32 s%d, s%d, 7\ns_or_b32 s%d, s%d, s%d"
          % (s_t0, o_, s_t0, s_t0, s_t1, o_, s_t0, s_t0, s_t1, s_t1, o_, s_t0, s_t0, s_t1))
        c("s_mul_i32 s%d, s%d, 640\ns_add_u32 s%d, s%d, %d\ns_mul_i32 s%d, s%d, 1280\ns_add_u32 s%d, s%d, %d\ns_add_u32 s%d, s%d, %d"
          % (qo, s_t0, qo, qo, W_QI, kvo, o_, s_rd[3], kvo, W_WOI, kvo, kvo, W_KVI - 640))
        c("s_mul_i32 s%d, s%d, 3" % (s_t2, b_))
        for z in range(4):
            d_ = RV + 2 + z
            if z < 3:
                c("s_add_u32 s%d, s%d, %d\ns_mul_i32 s%d, s%d, 26\ns_lshr_b32 s%d, s%d, 8\ns_mul_i32 s%d, s%d, 640\ns_lshl_b32 s%d, s%d, 6\ns_sub_u32 s%d, s%d, s%d"
                  % (s_t0, s_t2, z, s_t1, s_t0, s_t1, s_t1, s_t1, s_t1, s_t0, s_t0, s_t0, s_t0, s_t1))
                c("s_add_u32 s%d, s%d, s%d\ns_cmp_eq_u32 s%d, 0\ns_cselect_b32 s%d, s%d, s%d\ns_cselect_b32 s%d, 0, 51200\ns_add_u32 s%d, s%d, %d"
                  % (s_rd[z], kvo, s_t1, s_t1, s_rd[z], qo, s_rd[z], s_t1, s_t1, s_t1, 51200 - 640))
                c("v_add_u32 v%d, s%d, v%d\nv_mul_u32_u24 v%d, 1639, v%d\nv_lshrrev_b32 v%d, 16, v%d\nv_lshlrev_b32 v%d, 4, v%d\nv_mad_u32_u24 v%d, v%d, s%d, v%d"
                  % (t0, s_t0, v_lane, t1, t0, t1, t1, t0, t0, d_, t1, s_t1, t0))
            else:
                c("s_lshl_b32 s%d, s%d, 6\ns_mov_b32 s%d, %d" % (s_t0, b_, s_t1, 102400 - 1280))
                c("v_add_u32 v%d, s%d, v%d\nv_mul_u32_u24 v%d, 1639, v%d\nv_lshrrev_b32 v%d, 17, v%d\nv_lshlrev_b32 v%d, 4, v%d\nv_mad_u32_u24 v%d, v%d, s%d, v%d"
                  % (t0, s_t0, v_lane, t1, t0, t1, t1, t0, t0, d_, t1, s_t1, t0))
        c("s_lshr_b32 s%d, s%d, 1\ns_lshl_b32 s%d, s%d, 7\ns_add_u32 s%d, s%d, %d" % (s_rsig, o_, s_rsig, s_rsig, s_rsig, s_rsig, C_IMG))
        c("s_cmp_lt_u32 s%d, 800" % g_)
        for r in s_rd + [s_rsig]: c("s_cselect_b32 s%d, s%d, 0x70000000" % (r, r))
        c("v_and_b32 v%d, 3, v%d\nv_lshl_add_u32 v%d, v%d, 2, v%d" % (t0, v_lane, t0, v_q, t0))
        c("v_bfe_u32 v%d, v%d, 2, 2\nv_lshlrev_b32 v%d, 7, v%d\nv_lshl_add_u32 v%d, v%d, 3, v%d" % (t1, v_lane, t1, t1, t0, t0, t1))
        c("v_add_u32 v%d, s%d, v%d\nv_mov_b32 v%d, 1" % (RT, s_rlds, t0, v_one))
        if order == 1: a.extend(self.dma_w(0))
        self.rsl = self.opt.get("rsl", 1)
        if not self.rsl:
            a.extend(self.rp_read()); a.extend(self.rp_store())
        c("v_lshrrev_b32 v%d, 1, v%d\nv_xor_b32 v%d, v%d, v%d\nv_lshlrev_b32 v%d, 4, v%d" % (t0, v_n, t0, t0, v_q, t0, t0))
        c("v_lshl_add_u32 v%d, v%d, 7, v%d" % (t1, v_n, t0))
        c("v_add_u32 v%d, s%d, v%d\nv_xor_b32 v%d, 64, v%d" % (vXA[0], s_priv, t1, vXA[1], vXA[0]))
        c("v_lshrrev_b32 v%d, 3, v%d\nv_mul_u32_u24 v%d, %d, v%d" % (t3, v_n, t3, 5120 - 1024, t3))
        c("v_add_u32 v%d, v%d, v%d\nv_xor_b32 v%d, 64, v%d" % (vBA[0], t1, t3, vBA[1], vBA[0]))
        c("v_add_u32 v%d, %d, v%d\nv_add_u32 v%d, %d, v%d" % (vBA[2], 2 * SLOT, vBA[0], vBA[3], 2 * SLOT, vBA[1]))
        c("s_lshl_b32 s%d, s%d, 1\ns_add_u32 s%d, s%d, s%d\ns_mul_i32 s%d, s%d, 1600\ns_mov_b32 s%d, 0x40000" % (s_t2, s_spin, s_t2, s_t2, s_w1, s_t2, s_t2, s_spin))
        c("v_min_u32 v%d, 12, v%d\nv_lshl_add_u32 v%d, v%d, 7, s%d" % (t0, v_lane, v_ct, t0, s_t2))
        c(self.mk(sT, 26, None, 819200))
        c = late2 = L()
        c("s_mov_b32 s%d, 0x%x\ns_mov_b32 s%d, 0x%x" % (s_log2e, LOG2E, s_eps, EPS))
        c("v_xor_b32 v%d, 64, v%d\nv_add_u32 v%d, %d, v%d" % (vC[1], vC[0], vC[1], 8 * 1280 - 1024, vC[1]))
        c("s_mul_i32 s%d, s%d, 51200\ns_add_u32 s%d, s%d, %d\ns_mul_i32 s%d, s%d, 102400\ns_add_u32 s%d, s%d, %d" % (s_qb, s_j, s_qb, s_qb, W_QI, s_wob, s_ct, s_wob, s_wob, W_WOI))
        c("s_mul_i32 s%d, s%d, 102400\ns_add_u32 s%d, s%d, %d" % (s_kvi, s_j, s_kvi, s_kvi, W_KVI))
        c("v_lshlrev_b32 v%d, 7, v%d\nv_add_u32 v%d, %d, v%d" % (v_pl, TT + 9, v_pl, C_IMG, v_pl))
        c("s_lshl_b32 s%d, s%d, 6\nv_add_u32 v%d, s%d, v%d\nv_add_u32 v%d, 64, v%d\nv_min_u32 v%d, v%d, v%d\nv_lshlrev_b32 v%d, 2, v%d" % (s_t2, s_w1, t2, s_t2, v_lane, t1, v_n, t2, t2, t1, v_col4, t2))
        c("s_lshl_b32 s%d, s%d, 13\ns_add_u32 s%d, s%d, %d" % (s_t1, s_j, s_t1, s_t1, W_AGG)); c.append(grp(self.mk(sAG, 46, s_t1, 8192)))
        c("s_sub_u32 s%d, 15, s%d\ns_lshl_b32 s%d, s%d, 9" % (s_aggst, s_i, s_aggst, s_aggst))
        c("s_lshl_b32 s%d, s%d, 2\ns_add_u32 s%d, s%d, s%d\ns_lshl_b32 s%d, s%d, 13\ns_add_u32 s%d, s%d, %d" % (s_kvpld, s_j, s_kvpld, s_kvpld, s_w, s_kvpld, s_kvpld, s_kvpld, s_kvpld, W_KVP))
        c("s_lshl_b32 s%d, s%d, 9\ns_add_u32 s%d, s%d, s%d" % (s_kvpst, s_i, s_kvpst, s_kvpst, s_kvpld))
        for k in range(4): c("v_mov_b32 v%d, -1" % (S0 + k))
        c("v_and_b32 v%d, 32, v%d\nv_mul_u32_u24 v%d, 240, v%d\nv_add_u32 v%d, v%d, v%d" % (S0 + 4, v_lane, S0 + 4, S0 + 4, S0 + 4, S0 + 4, v_l16))
        c("s_lshl_b32 s%d, s%d, 13\ns_add_u32 s%d, s%d, s%d" % (s_rstep, s_w, s_rstep, s_rstep, s_kvpst))
        c("s_lshl_b32 s%d, s%d, 7" % (s_cj, s_j))
        s2 = list(self.setup2())
        ip = [k for k, x in enumerate(s2) if not isinstance(x, G) and x.kind == "waitvm"][0]
        B1 = list(late2) + s2[:ip] + list(self.late_addr())
        self.partC = s2[ip:] + list(self.setup3())
        nb = len(B1) * self.opt.get("pb", 30) // 100
        a.extend(flat(B1[:nb])); self.partB = B1[nb:]
        self.stamp(a, "setup", level=2)
        self.first = L()
        if self.opt.get("ct", 0) == 0: self.first("buffer_load_dword v255, v%d, %s, 0 offen" % (v_ct, srd(sT)), tag="ct")
        cf = self.opt.get("cf", 0)
        if cf == 0: self.first.extend(self.cflag)
        self.first.extend(self.dma_x(1))
        if cf == 1: self.first.extend(self.cflag)
        self.pc = list(self.poll_issue(sDBG, "0", 0, "clr"))
        self.second = list(self.dma_x(2)) + list(self.dma_w(1)) + list(self.dma_x(3))
        if cf == 2: self.second[7:8] = [G([self.second[7]] + list(flat(self.cflag)))]
        return a

    def setup2(self):
        a = L()
        t0 = vt[0]
        a.append(grp("s_mul_i32 s%d, s%d, 640\ns_mul_i32 s%d, s%d, 102400\ns_add_u32 s%d, s%d, s%d\n" % (s_t2, s_w1, s_t1, s_ct, s_t1, s_t1, s_t2)
                     + self.mk(sC, 26, s_t1, "s_sub_u32 s%d, 102400, s%d" % (sC + 2, s_t2))))
        a("s_lshl_b32 s%d, s%d, 1\ns_add_u32 s%d, s%d, s%d\ns_mul_i32 s%d, s%d, 163840\ns_mul_i32 s%d, s%d, 320\ns_add_u32 s%d, s%d, s%d\n"
          % (s_t1, s_i, s_t1, s_t1, s_rb, s_t1, s_t1, s_t2, s_ct, s_t1, s_t1, s_t2))
        a.append(grp(self.mk(sOUT, 42, s_t1, "s_sub_u32 s%d, 163840, s%d" % (sOUT + 2, s_t2))))
        a("s_lshr_b32 s%d, s%d, 1\ns_mul_i32 s%d, s%d, 10240\ns_mul_i32 s%d, s%d, 80\ns_add_u32 s%d, s%d, s%d" % (s_t2, s_w, s_t2, s_t2, s_rk, s_rx, s_rk, s_rk, s_t2))
        a("s_mul_i32 s%d, s%d, 40\ns_add_u32 s%d, s%d, s%d" % (s_rq, s_rx, s_rq, s_rq, s_wm0))
        a("s_add_u32 s%d, s%d, 512\ns_add_u32 s%d, s%d, 4608" % (s_aggld, s_aggst, s_aggld2, s_aggst))
        a.append(grp("s_cmp_lt_u32 s%d, 2\ns_cselect_b32 s40, s40, s32\ns_cselect_b32 s41, s41, s33\n" % s_w + self.mk(sRP, 40, None, 1280)))
        a("s_lshl_b32 s%d, s%d, 10\ns_add_u32 s%d, s%d, s%d\ns_mul_i32 s%d, s%d, 160\ns_add_u32 s%d, s%d, %d" % (s_t2, s_w1, s_t1, s_t2, s_rx, s_t0, s_ct, s_rlds, s_t2, M_GATE))
        a.append(grp("s_add_u32 s%d, s%d, %d\ns_cmp_lt_u32 s%d, 2\ns_cselect_b32 s%d, s%d, s%d\ns_cselect_b32 s%d, s%d, s%d" % (s_t2, s_t2, M_DSK, s_w, s_t1, s_t1, s_t0, s_rlds, s_rlds, s_t2)))
        a("v_add_u32 v%d, s%d, v%d" % (RB, s_t1, v_l16))
        a("v_subrev_u32 v%d, 1280, v%d\nv_min_u32 v%d, v%d, v%d" % (t0, RB, RB, RB, t0))
        a("s_lshl_b32 s%d, s%d, 10\ns_add_u32 s%d, s%d, 8192" % (s_ci, s_i, s_ci, s_ci))
        a("s_lshr_b32 s%d, s%d, 1\ns_lshl_b32 s%d, s%d, 7\ns_add_u32 s%d, s%d, s%d" % (s_t2, s_w, s_t2, s_t2, s_hs, s_ci, s_t2))
        a("s_lshl_b32 s%d, s%d, 7\ns_add_u32 s%d, s%d, s%d" % (s_t1, s_rb, s_hp, s_ci, s_t1))
        a("s_add_u32 s%d, s%d, s%d\ns_add_u32 s%d, s%d, s%d\ns_add_u32 s%d, s%d, %d" % (s_op, s_hp, s_t1, s_op, s_op, s_t2, s_op, s_op, C_O))
        a("s_lshl_b32 s%d, s%d, 7\ns_add_u32 s%d, s%d, s%d\ns_add_u32 s%d, s%d, %d" % (s_t2, s_w, s_os, s_ci, s_t2, s_os, s_os, C_O))
        a("s_add_u32 s%d, s%d, s%d" % (s_woi, s_wob, s_wm0))
        a("s_mul_i32 s%d, s%d, 5120\ns_add_u32 s%d, s%d, s%d" % (s_t2, s_w1, s_kvi, s_kvi, s_t2))
        a("s_lshl_b32 s%d, s%d, 2\ns_add_u32 s%d, s%d, s%d\ns_mul_i32 s%d, s%d, %d\ns_mul_i32 s%d, s%d, 1280\ns_add_u32 s%d, s%d, s%d\ns_add_u32 s%d, s%d, %d"
          % (s_t2, s_i, s_t2, s_t2, s_w, s_t2, s_t2, 2 * TSTR, s_t1, s_j, s_t2, s_t2, s_t1, s_a2p, s_t2, W_A2))
        a.append(grp("s_cmp_lt_u32 s%d, 2\ns_cselect_b64 s[%d:%d], -1, 0" % (s_w, s_lo2, s_lo2 + 1)))
        a.wv("par")
        Lr, Li, dt, e1, c1, s1, x0, x1 = [TT + k for k in range(8)]
        pa, pb, pc1, pc2, zr, rv, a8, b8, a128, b128 = [TT + 10 + k for k in range(10)]
        a("v_lshlrev_b32 v%d, 16, v%d\nv_lshlrev_b32 v%d, 16, v%d\nv_lshlrev_b32 v%d, 16, v%d" % (Lr, Lr, Li, Li, dt, dt))
        a("v_mul_f32 v%d, s%d, v%d\nv_exp_f32 v%d, v%d" % (dt, s_log2e, dt, dt, dt))
        a("v_mul_u32_u24 v%d, 48, v%d\nv_add_u32 v%d, %d, v%d" % (t0, TT + 9, t0, M_PARAM, t0))
        a("v_cvt_pk_bf16_f32 v%d, v%d, v%d\nv_lshlrev_b32 v%d, 16, v%d" % (dt, dt, dt, dt, dt))
        a("v_mul_f32 v%d, v%d, v%d\nv_mul_f32 v%d, s%d, v%d" % (zr, dt, Lr, zr, s_log2e, zr))
        a("v_mul_f32 v%d, v%d, v%d\nv_mul_f32 v%d, 0.15915494, v%d" % (rv, dt, Li, rv, rv))
        def power(k, da, db):
            if k == 1:
                a("v_exp_f32 v%d, v%d\nv_fract_f32 v%d, v%d" % (e1, zr, x0, rv))
            else:
                a("v_mul_f32 v%d, 0x%x, v%d\nv_exp_f32 v%d, v%d" % (e1, f2u(float(k)), zr, e1, e1))
                a("v_mul_f32 v%d, 0x%x, v%d\nv_fract_f32 v%d, v%d" % (x0, f2u(float(k)), rv, x0, x0))
            a("v_cos_f32 v%d, v%d\nv_sin_f32 v%d, v%d" % (c1, x0, s1, x0))
            a("v_mul_f32 v%d, v%d, v%d\nv_mul_f32 v%d, v%d, v%d" % (da, e1, c1, db, e1, s1))
        power(8, a8, b8); power(128, a128, b128); power(1, pa, pb)
        a("v_add_f32 v%d, -1.0, v%d" % (x0, pa))
        a("v_mul_f32 v%d, v%d, v%d\nv_fmac_f32 v%d, v%d, v%d\nv_rcp_f32 v%d, v%d" % (x1, Lr, Lr, x1, Li, Li, x1, x1))
        a("v_mul_f32 v%d, v%d, v%d\nv_fmac_f32 v%d, v%d, v%d" % (pc1, x0, Lr, pc1, pb, Li))
        a("v_mul_f32 v%d, v%d, v%d\nv_fma_f32 v%d, -v%d, v%d, v%d" % (pc2, x0, Li, pc2, pb, Lr, pc2))
        a("v_add_f32 v%d, v%d, v%d" % (x1, x1, x1))
        a("v_mul_f32 v%d, v%d, v%d\nv_mul_f32 v%d, v%d, v%d" % (pc1, pc1, x1, pc2, pc2, x1))
        a("ds_write_b128 v%d, %s\nds_write_b128 v%d, %s offset:16\nds_write_b64 v%d, %s offset:32" % (t0, vr(pa), t0, vr(zr), t0, vr(a128, 2)), tag="pw")
        return a
    def setup3(self):
        a = L()
        t0, kf, sg, t3 = vt
        a("v_and_b32 v%d, 7, v%d\nv_mul_u32_u24 v%d, 48, v%d\nv_add_u32 v%d, %d, v%d" % (t0, v_n, t0, t0, t0, M_PARAM, t0))
        for t in range(5):
            a("ds_read_b128 %s, v%d offset:%d" % (vr(PR0 + 6 * t), t0, 384 * t), tag="pr")
            a("ds_read_b64 %s, v%d offset:%d" % (vr(PR0 + 6 * t + 4, 2), t0, 384 * t + 16), tag="pr")
        a("v_lshrrev_b32 v%d, 6, v%d\nv_mul_u32_u24 v%d, 384, v%d\nv_add_u32 v%d, v%d, v%d" % (t3, v_col4, t3, t3, t3, t3, t0))
        a("ds_read_b64 %s, v%d offset:24\nds_read_b64 %s, v%d offset:32" % (vr(vA8, 2), t3, vr(vA128, 2), t3), tag="pr")
        a.append(grp("s_lshl_b32 s%d, s%d, 5\nv_lshl_add_u32 v%d, v%d, 3, s%d" % (s_t0, s_w, kf, v_q, s_t0)))
        a("v_cvt_f32_u32 v%d, v%d" % (kf, kf))
        a("v_and_b32 v%d, 8, v%d\nv_lshlrev_b32 v%d, 28, v%d\nv_xor_b32 v%d, v%d, v%d" % (sg, v_n, sg, sg, t3, sg, kf))
        for k in range(4): a("v_mov_b32 v%d, s%d" % (EPSQ + k, s_eps))
        a("v_cmp_gt_u32 vcc, 8, v%d" % v_n)
        for k in range(4): a("v_cndmask_b32 v%d, 0, v%d, vcc" % (EPSX + k, EPSQ))
        a.wl("pr")
        R = range(5)
        z = lambda t: PR0 + 6 * t + 4
        for t in R: a("v_mul_f32 v%d, v%d, v%d\nv_mul_f32 v%d, v%d, v%d" % (z(t), z(t), kf, z(t) + 1, z(t) + 1, t3))
        for t in R: a("v_exp_f32 v%d, v%d\nv_fract_f32 v%d, v%d" % (z(t), z(t), z(t) + 1, z(t) + 1))
        for t in R: a("v_cos_f32 v%d, v%d\nv_sin_f32 v%d, v%d" % (TT + 2 * t, z(t) + 1, TT + 2 * t + 1, z(t) + 1))
        for t in R: a("v_xor_b32 v%d, v%d, v%d\nv_xor_b32 v%d, v%d, v%d" % (z(t) - 3, z(t) - 3, sg, z(t) - 2, z(t) - 2, sg))
        for t in R: a("v_mul_f32 v%d, v%d, v%d\nv_mul_f32 v%d, v%d, v%d" % (TT + 2 * t, TT + 2 * t, z(t), TT + 2 * t + 1, TT + 2 * t + 1, z(t)))
        for t in R: a("v_mul_f32 v%d, v%d, v%d\nv_mul_f32 v%d, v%d, v%d" % (z(t), z(t) - 2, TT + 2 * t, z(t) + 1, z(t) - 1, TT + 2 * t))
        for t in R: a("v_fmac_f32 v%d, v%d, v%d\nv_fma_f32 v%d, -v%d, v%d, v%d" % (z(t), z(t) - 1, TT + 2 * t + 1, z(t) + 1, z(t) - 2, TT + 2 * t + 1, z(t) + 1))
        a("v_xor_b32 v%d, v%d, v%d\nv_xor_b32 v%d, v%d, v%d" % (vB8, vB8, sg, vB128, vB128, sg))
        return a
    def calc_kvaddr(self):
        a = L(); t0 = vt[0]
        a("v_mul_u32_u24 v%d, 1280, v%d\nv_lshl_add_u32 v%d, v%d, 4, v%d" % (vBA[0], v_q, vBA[0], v_n, vBA[0]))
        a("v_and_b32 v%d, 8, v%d\nv_lshl_add_u32 v%d, v%d, 6, v%d\nv_add_u32 v%d, 256, v%d" % (t0, v_n, vBA[1], t0, vBA[0], vBA[1], vBA[1]))
        a("v_add_u32 v%d, %d, v%d\nv_add_u32 v%d, %d, v%d" % (vBA[2], 2 * SLOT, vBA[0], vBA[3], 2 * SLOT, vBA[1]))
        return a
    def late_addr(self):
        a = L()
        t0, t1, t2, t3 = vt
        a("v_mul_u32_u24 v%d, 80, v%d\nv_add_u32 v%d, %d, v%d" % (t0, v_n, v_crd, M_S + 8, t0))
        a("v_lshl_add_u32 v%d, v%d, 2, v%d" % (t0, v_q, t0))
        a("s_lshl_b32 s%d, s%d, 4\ns_add_u32 s%d, s%d, %d\nv_add_u32 v%d, s%d, v%d" % (s_t0, s_w, s_t0, s_t0, M_S + 12, v_sad, s_t0, t0))
        a("v_mul_u32_u24 v%d, 20, v%d\nv_add_u32 v%d, %d, v%d" % (v_srow, v_col4, v_srow, M_S, v_srow))
        a.append(grp("s_cmp_lt_u32 s%d, 2\ns_cselect_b32 s%d, 8, 4\nv_add_u32 v%d, s%d, v%d" % (s_w, s_t0, v_cwr, s_t0, v_srow)))
        a("v_and_b32 v%d, 3, v%d\nv_lshlrev_b32 v%d, 8, v%d" % (t1, v_lane, t1, t1))
        a("v_and_b32 v%d, 44, v%d\nv_lshl_add_u32 v%d, v%d, 2, v%d" % (t2, v_lane, t1, t2, t1))
        a("v_and_b32 v%d, 16, v%d\nv_lshrrev_b32 v%d, 1, v%d" % (t2, v_lane, t2, t2))
        a("s_add_u32 s%d, s%d, %d\nv_add_u32 v%d, s%d, v%d\nv_add3_u32 v%d, v%d, v%d, s%d" % (s_t0, s_priv, P_HT, v_htw, s_t0, v_l16, v_htr, t1, t2, s_t0))
        a("v_and_b32 v%d, 1, v%d\nv_mul_u32_u24 v%d, %d, v%d" % (t2, v_q, t2, TSTR, t2))
        a("v_lshrrev_b32 v%d, 1, v%d\nv_mul_u32_u24 v%d, 20480, v%d" % (t3, v_q, t3, t3))
        a("v_lshlrev_b32 v%d, 4, v%d\nv_add3_u32 v%d, v%d, v%d, v%d" % (t0, v_n, v_hst, t2, t3, t0))
        a("s_lshl_b32 s%d, s%d, 12\ns_add_u32 s%d, s%d, %d\nv_add_u32 v%d, s%d, v%d" % (s_t0, s_w, s_t0, s_t0, L_KVR, v_kvw, s_t0, v_l16))
        a("v_mov_b32 v%d, 0\nv_mov_b32 v%d, 0x%x" % (v_zero, v_nel, NEL))
        a("s_lshl_b32 s%d, s%d, 1\ns_add_u32 s%d, s%d, s%d\ns_mul_i32 s%d, s%d, %d\ns_add_u32 s%d, s%d, %d" % (s_t1, s_i, s_t1, s_t1, s_rb, s_t1, s_t1, 4 * TSTR, s_t1, s_t1, W_A2))
        a("s_mul_i32 s%d, s%d, %d\ns_add_u32 s%d, s%d, s%d\ns_add_u32 s%d, s%d, 40960\ns_add_u32 s%d, s%d, 16384" % (s_t2, s_w, TSTR, s_ao, s_t1, s_t2, s_ao, s_ao, s_ao2, s_ao))
        a("s_mul_i32 s%d, s%d, 10240\ns_add_u32 s%d, s%d, s%d" % (s_t2, s_w, s_t1, s_t1, s_t2))
        for ml in range(4):
            a("s_add_u32 s%d, s%d, %d\ns_and_b32 s%d, s%d, 3\ns_mul_i32 s%d, s%d, %d\ns_add_u32 s%d, s%d, s%d" % (s_t2, s_w, ml, s_t2, s_t2, s_t2, s_t2, TSTR, s_am + ml, s_t2, s_t1))
        a("v_cmp_gt_u32 vcc, 8, v%d" % v_n)
        a("v_mul_u32_u24 v%d, 1280, v%d\nv_add3_u32 v%d, v%d, v%d, v%d" % (t1, v_q, t1, t1, t0, v_zero))
        a("v_add_u32 v%d, %d, v%d\nv_lshlrev_b32 v%d, 4, v%d\nv_add_u32 v%d, %d, v%d" % (t1, 2 * SLOT + 256, t1, t2, v_q, t2, M_GATE, t2))
        a("v_cndmask_b32 v%d, v%d, v%d, vcc" % (vY, t2, t1))
        for r, val in ((vI0, 640), (vI1, 4480), (vI2, (4480 - 4 * SLOT) & 0xffffffff)):
            a("v_mov_b32 v%d, 0x%x\nv_cndmask_b32 v%d, 64, v%d, vcc" % (t1, val, r, t1))
        return a

    def pass1(self):
        a = L()
        prev = [U0 + 8 * t for t in range(5)]
        for j8 in range(1, 8):
            cur = [TT + 5 * (j8 & 1) + t for t in range(5)]
            for t in range(5): a("v_fma_f32 v%d, v%d, v%d, v%d" % (cur[t], PR0 + 6 * t, prev[t], U0 + 8 * t + j8))
            for t in range(5): a("v_fmac_f32_dpp v%d, -v%d, v%d %s" % (cur[t], prev[t], PR0 + 6 * t + 1, DPP))
            prev = cur
        for t in range(5): a("ds_write_b32 v%d, v%d offset:%d" % (v_sad, prev[t], 4 + 1280 * t), tag="sw")
        return a
    def sread(self):
        a = L()
        for k in range(4): a("ds_read_b128 %s, v%d offset:%d" % (vr(S0 + 4 * k), v_srow, 16 + 16 * k), tag="sr")
        return a
    def horner1(self):
        a = L()
        a.wl("sr")
        for k in range(1, 16):
            a.append(grp("v_fmac_f32 v%d, v%d, v%d\nv_fmac_f32_dpp v%d, -v%d, v%d %s" % (S0 + k, vA8, S0 + k - 1, S0 + k, S0 + k - 1, vB8, DPP)))
        a("v_min_u32 v%d, -2, v%d" % (S0 + 15, S0 + 15))
        a("buffer_store_dword v%d, v%d, %s, s%d offen sc1" % (S0 + 15, v_col4, srd(sAG), s_aggst), tag="aggst")
        return a
    def eback(self):
        b = L()
        b("ds_write_b32 v%d, v%d offset:12" % (v_srow, v_zero), tag="ew")
        for k in range(4): b("ds_write_b128 v%d, %s offset:%d" % (v_srow, vr(S0 + 4 * k), 16 + 16 * k), tag="ew")
        return [self.only("hi", b)]
    def coef(self):
        a = L()
        for j8 in range(8):
            for t in range(5): a("v_mul_f32_dpp v%d, v%d, v%d %s" % (TT + 16 + t, U0 + 8 * t + j8, PR0 + 6 * t + 3, DPP))
            for t in range(5):
                u = U0 + 8 * t + j8
                a("v_fma_f32 v%d, v%d, v%d, v%d" % (u, u, PR0 + 6 * t + 2, TT + 16 + t))
        return a
    def te_rd(self):
        a = L()
        for t in range(5): a("ds_read_b32 v%d, v%d offset:%d" % (TE + t, v_sad, 1280 * t), tag="er")
        return a
    def te(self):
        a = L()
        a.wl("er")
        for t in range(5): a("v_mul_f32_dpp v%d, v%d, v%d %s" % (TT + 16 + t, TE + t, PR0 + 6 * t + 3, DPP))
        for t in range(5): a("v_fma_f32 v%d, v%d, v%d, v%d" % (TE + t, TE + t, PR0 + 6 * t + 2, TT + 16 + t))
        return a
    def agg_loads(self, raw=False):
        a = L()
        for m in range(14, -1, -1):
            a("buffer_load_dword v%d, v%d, %s, s%d offen offset:%d sc1" % (TT + m, v_col4, srd(sAG), s_aggld if m < 8 else s_aggld2, 512 * (m & 7)), tag="ag", raw=raw)
        if raw: return a
        return [self.only("lo", a[:8]), self.only("lo", a[8:])]
    def agg_chk(self, raw=False):
        a = L(); c = TT + 15
        a("v_max3_u32 v%d, v%d, v%d, v%d" % (c, TT, TT + 1, TT + 2), raw=raw)
        for m in range(3, 15, 2): a("v_max3_u32 v%d, v%d, v%d, v%d" % (c, c, TT + m, TT + m + 1), raw=raw)
        return a
    def horner2(self):
        a = L()
        slow = self.label("slow"); back = self.label("back")
        a.wv("ag")
        a.extend(self.agg_chk())
        a.append(grp("v_cmp_eq_u32 vcc, -1, v%d\ns_and_b64 vcc, vcc, s[%d:%d]\ns_cbranch_scc1 %s\n%s:" % (TT + 15, s_lo2, s_lo2 + 1, slow, back)))
        s = self.slow
        self.spin_head(s, slow)
        s.extend(self.agg_loads(raw=True)); s("s_waitcnt vmcnt(0)", raw=True); s.extend(self.agg_chk(raw=True))
        s("v_cmp_eq_u32 vcc, -1, v%d\ns_cbranch_vccnz %s\ns_branch %s" % (TT + 15, slow, back), raw=True)
        for m in range(13, -1, -1):
            a.append(grp("v_fmac_f32 v%d, v%d, v%d\nv_fmac_f32_dpp v%d, -v%d, v%d %s" % (TT + m, vA128, TT + m + 1, TT + m, TT + m + 1, vB128, DPP)))
        a("ds_write_b32 v%d, v%d" % (v_cwr, TT), tag="cw")
        return a
    def pass2(self):
        a = L()
        for t in range(5): a("ds_read_b32 v%d, v%d offset:%d" % (TT + t, v_crd, 1280 * t), tag="ir")
        for k in range(1, 4): a("v_add_u32 v%d, %d, v%d" % (vL4[k], 4096 * k, v_l16))
        a("v_lshlrev_b32 v%d, 3, v%d" % (v_l8, v_lane))
        a.delay(3)
        a.wl("ir")
        for t in range(5): a("v_fmac_f32 v%d, v%d, v%d" % (TE + t, PR0 + 6 * t + 4, TT + t))
        for t in range(5): a("v_fmac_f32_dpp v%d, v%d, v%d %s" % (TE + t, TT + t, PR0 + 6 * t + 5, DPP))
        def chain(t):
            c = []
            prev = TE + t
            for j8 in range(8):
                cur = U0 + 8 * t + j8
                c.append("v_fmac_f32 v%d, v%d, v%d\nv_fmac_f32_dpp v%d, v%d, v%d %s" % (cur, PR0 + 6 * t, prev, cur, prev, PR0 + 6 * t + 1, DPP))
                prev = cur
            return c
        def fin(t):
            u0 = U0 + 8 * t; f = L()
            for k in range(4): f("v_cvt_pk_bf16_f32 v%d, v%d, v%d" % (u0 + k, u0 + 2 * k, u0 + 2 * k + 1))
            f("ds_write_b128 v%d, %s offset:%d" % (v_htw, vr(u0), 1024 * t), tag="hw")
            for e in range(2):
                f("ds_read_b64_tr_b16 %s, v%d offset:%d" % (vr(u0 + 4 + 2 * e, 2), v_htr, 1024 * t + 64 * e), tag="hr%d" % t)
            return f
        def st(t):
            f = L(); f.wl("hr%d" % t)
            f("buffer_store_dwordx4 %s, v%d, %s, s%d offen offset:%d sc1" % (vr(U0 + 8 * t + 4), v_hst, srd(sWS), s_a2p, 256 * t), tag="hst")
            return f
        for t in range(6):
            ch = [grp(x) for x in chain(t)] if t < 5 else []
            fi = list(fin(t - 1)) if t >= 1 else []
            if t >= 2: fi = fi[:4] + list(st(t - 2)) + fi[4:]
            a.extend(merge([ch, fi]))
        a.delay(4)
        a.extend(st(4))
        return a

    def kv1a(self):
        a = L()
        kA, kB, X, vA, vB = [KV0 + 8 * t for t in range(5)]
        PA, PB, PX, VA, VB, VX = [S0 + 4 * k for k in range(6)]
        t0 = vt[0]
        a("v_cmp_gt_u32 vcc, 8, v%d\nv_mov_b32 v%d, 0x3f803f80" % (v_n, t0))
        for (src, dst) in ((X, VX), (vA, VA), (vB, VB)):
            for k in range(4): a("v_cvt_pk_bf16_f32 v%d, v%d, v%d" % (dst + k, src + 2 * k, src + 2 * k + 1))
        for k in range(4): a("v_cndmask_b32 v%d, v%d, v%d, vcc" % (VX + k, VX + k, t0))
        T4a, T4b, T5, T1, T3a, T2, T3b = vA, vA + 4, vB, vB + 4, X, X + 4, kA
        a("s_mov_b32 s%d, 0x0f550f55\ns_mov_b32 s%d, 0x0f550f55" % (s_mask, s_mask + 1))
        a("v_cmp_gt_u32 vcc, 16, v%d" % v_lane)
        def part(src, dst, mm):
            self.phi8(a, src, TT)
            for k in range(4): a("v_cvt_pk_bf16_f32 v%d, v%d, v%d" % (dst + k, src + 2 * k, src + 2 * k + 1))
            for d, x, y in mm: a("%s %s, %s, %s, 0" % (M, vr(d), vr(x), vr(y)))
        part(X, PX, ((T4a, PX, VA), (T4b, PX, VB), (T5, PX, VX)))
        part(kA, PA, ((T1, PA, VA), (T3a, PA, VX)))
        for k in range(4): a("v_cndmask_b32 v%d, v%d, v%d, vcc" % (T4a + k, T4b + k, T4a + k))
        for k in range(4): a("v_permlane32_swap_b32 v%d, v%d" % (T4a + k, T5 + k))
        a("ds_write_b128 v%d, %s offset:3072" % (v_kvw, vr(T4a)), tag="kw")
        a("ds_write_b128 v%d, %s" % (v_kvw, vr(T1)), tag="kw")
        part(kB, PB, ((T3b, PB, VX), (T2, PB, VB)))
        a.delay(2)
        for k in range(4): a("v_cndmask_b32 v%d, v%d, v%d, s[%d:%d]" % (T3a + k, T3b + k, T3a + k, s_mask, s_mask + 1))
        a("ds_write_b128 v%d, %s offset:1024" % (v_kvw, vr(T2)), tag="kw")
        a("ds_write_b128 v%d, %s offset:2048" % (v_kvw, vr(T3a)), tag="kw")
        a.append(grp("s_lshl_b32 s%d, s%d, 10\ns_add_u32 s%d, s%d, %d\nv_add_u32 v%d, s%d, v%d" % (s_t0, s_w, s_t0, s_t0, L_KVR, v_kvw, s_t0, v_l16)))
        return a
    def kv1b(self):
        a = L(); K = KV0
        for k in range(4): a("ds_read_b128 %s, v%d offset:%d" % (vr(K + 4 * k), v_kvw, 4096 * k), tag="kr")
        a.delay(4)
        a.wl("kr")
        for k in range(4): a("v_add_f32 v%d, v%d, v%d\nv_add_f32 v%d, v%d, v%d" % (K + k, K + k, K + 4 + k, K + 8 + k, K + 8 + k, K + 12 + k))
        for k in range(4): a("v_add_f32 v%d, v%d, v%d" % (K + k, K + k, K + 8 + k))
        for k in range(2): a("v_cvt_pk_bf16_f32 v%d, v%d, v%d" % (K + k, K + 2 * k, K + 2 * k + 1))
        for k in range(2): a("v_min_u32 v%d, -2, v%d" % (K + k, K + k))
        a("buffer_store_dwordx2 %s, v%d, %s, s%d offen sc1" % (vr(K, 2), v_l8, srd(sWS), s_kvpst), tag="kvst")
        return a
    def phiq(self):
        a = L(); t0 = vt[2]
        Z = SEL
        a("v_and_b32 v%d, 12, v%d\nv_add_u32 v%d, v%d, v%d" % (t0, v_n, t0, t0, v_n))
        a.append(grp("s_lshl_b32 s%d, s%d, 7\ns_add_u32 s%d, s%d, %d\nv_lshl_add_u32 v%d, v%d, 2, s%d" % (s_t0, s_w, s_t0, s_t0, M_G, t0, t0, s_t0)))
        for i in range(2): a("v_fma_f32 v%d, v%d, s%d, v%d" % (Z + i, Q0 + 8 + 4 * i, s_log2e, v_nel))
        for i in range(2): a("v_exp_f32 v%d, -v%d" % (Z + i, Z + i))
        for i in range(2): a("v_add_f32 v%d, 1.0, v%d" % (Z + i, Z + i))
        for i in range(2): a("v_rcp_f32 v%d, v%d" % (Z + i, Z + i))
        for i in range(2): a("v_sub_f32 v%d, 1.0, v%d" % (Z + 2 + i, Z + i))
        a.append(grp("s_mov_b32 exec_lo, 0\nds_write_b32 v%d, v%d\nds_write_b32 v%d, v%d offset:16\ns_mov_b32 exec_lo, -1" % (t0, Z, t0, Z + 1), tag="gw"))
        for i in range(2): a("v_permlane32_swap_b32 v%d, v%d" % (Z + 2 + i, OMG + i))
        for t in range(3):
            self.phi8(a, Q0 + 8 * t, TT)
            for i in range(2):
                for k in range(2):
                    a("v_cvt_pk_bf16_f32 v%d, v%d, v%d" % (PQ + 6 * i + 2 * t + k, Q0 + 8 * t + 4 * i + 2 * k, Q0 + 8 * t + 4 * i + 2 * k + 1))
        return a
    def gather_loads(self, raw=False):
        a = L()
        for c in range(8):
            a("buffer_load_dwordx4 %s, v%d, %s, s%d offen offset:%d sc1" % (vr(KV0 + 4 * c), vL4[c // 4], srd(sWS), s_kvpld, 1024 * (c % 4)), tag="g%d" % c, raw=raw)
        return a
    def gsel(self):
        a = L()
        t1, t2, t3 = vt[1], vt[2], vt[3]
        a("v_lshrrev_b32 v%d, 3, v%d\nv_xor_b32 v%d, v%d, v%d\nv_and_b32 v%d, 1, v%d\nv_lshlrev_b32 v%d, 3, v%d" % (t1, v_n, t1, t1, v_q, t1, t1, t1, t1))
        a("v_bfe_u32 v%d, v%d, 1, 2\nv_or_b32 v%d, v%d, v%d" % (t2, v_n, t1, t1, t2))
        a("v_and_b32 v%d, 1, v%d\nv_lshlrev_b32 v%d, 4, v%d\nv_mov_b32 v%d, 0x3f80\nv_lshlrev_b32 v%d, v%d, v%d" % (t2, v_n, t2, t2, t3, t3, t2, t3))
        for k in range(4):
            a.append(grp("v_cmp_eq_u32 vcc, %d, v%d\nv_cndmask_b32 v%d, 0, v%d, vcc" % (k, t1, SEL + k, t3)))
        a("v_and_b32 v%d, 2, v%d\nv_lshlrev_b32 v%d, 7, v%d\nv_lshl_add_u32 v%d, v%d, 4, v%d\nv_and_b32 v%d, 1, v%d\nv_lshl_add_u32 v%d, v%d, 3, v%d" % (t1, v_q, t1, t1, t1, v_n, t1, t2, v_q, t1, t2, t1))
        a.append(grp("s_lshl_b32 s%d, s%d, 9\ns_add_u32 s%d, s%d, %d\nv_add_u32 v%d, s%d, v%d" % (s_t0, s_w, s_t0, s_t0, L_KVX, GD - 2, s_t0, t1)))
        return a
    def gsum(self, raw=False):
        a = L()
        for c in range(8):
            if not raw: a.wv("g%d" % c)
            a("%s %s, %s, %s, %s" % (M, vr(GD), vr(SEL), vr(KV0 + 4 * c), vr(GD) if c else "0"), raw=raw)
        return a
    def gather_sum(self):
        a = L()
        t0, t1 = vt[0], vt[1]
        slow = self.label("slow"); back = self.label("back")
        a.extend(self.gsum())
        a("v_xor_b32 v%d, 256, v%d\nv_add_u32 v%d, %d, v%d\nv_add_u32 v%d, %d, v%d" % (t1, v_l8, t1, L_KVX, t1, t0, L_KVX, v_l8))
        a.delay(2)
        a.append(grp("v_cmp_u_f32 vcc, v%d, v%d\ns_cbranch_vccnz %s\n%s:" % (GD, GD + 1, slow, back)))
        s = self.slow
        self.spin_head(s, slow)
        s.extend(self.gather_loads(raw=True)); s("s_waitcnt vmcnt(0)\nv_mov_b32 v%d, 0" % vt[2], raw=True)
        for m in range(0, 32, 2): s("v_max3_u32 v%d, v%d, v%d, v%d" % (vt[2], vt[2], KV0 + m, KV0 + m + 1), raw=True)
        s("v_cmp_eq_u32 vcc, -1, v%d\ns_cbranch_vccnz %s" % (vt[2], slow), raw=True)
        s.extend(self.gsum(raw=True)); s("s_nop 7\ns_branch %s" % back, raw=True)
        a("v_cvt_pk_bf16_f32 v%d, v%d, v%d\nv_cvt_pk_bf16_f32 v%d, v%d, v%d" % (GD + 4, GD, GD + 1, GD + 5, GD + 2, GD + 3))
        a("ds_write_b64 v%d, %s" % (GD - 2, vr(GD + 4, 2)), tag="xw")
        return a
    def attn2(self):
        a = L()
        t0, t1, t2, t3 = vt
        FA, FB_, FZA, FZB, R3, R4, R5 = GB, GB + 4, GB + 8, GB + 12, GD, GD + 2, GD + 4
        E = Q0; SC = SEL; O = GB
        a("ds_read_b64 %s, v%d offset:%d" % (vr(R3, 2), t0, 1024), tag="xr")
        a("ds_read_b64 %s, v%d offset:%d" % (vr(R5, 2), t1, 1536), tag="xr")
        a("ds_read_b64 %s, v%d offset:%d" % (vr(R4, 2), t0, 1536), tag="xr")
        a("ds_read_b64 %s, v%d offset:%d" % (vr(FA, 2), t0, 0), tag="xr")
        a("ds_read_b64 %s, v%d offset:%d" % (vr(FB_ + 2, 2), t0, 512), tag="xr")
        a.delay(4)
        a.wl("xr")
        def masked(dst, src, lo, hi):
            a("s_mov_b32 s%d, 0x%x\ns_mov_b32 s%d, 0x%x" % (s_mask, lo, s_mask + 1, hi))
            for k in range(2): a("v_cndmask_b32 v%d, 0, v%d, s[%d:%d]" % (dst + k, src + k, s_mask, s_mask + 1))
        masked(FZA, R3, 0x0f550f55, 0x0f550f55); masked(FZA + 2, R5, 0x00000f55, 0)
        masked(FZB + 2, R3, 0xf0aaf0aa, 0xf0aaf0aa); masked(FZB, R5, 0xf0aa0000, 0)
        masked(FA + 2, R4, 0x0000ffff, 0); masked(FB_, R4, 0xffff0000, 0)
        self.nf = len(a)
        for i in range(2): a("%s %s, %s, %s, 0" % (M, vr(E + 12 * i + 8), vr(FZA), vr(PQ + 6 * i)))
        for i in range(2): a("%s %s, %s, %s, %s" % (M, vr(E + 12 * i + 8), vr(FZB), vr(PQ + 6 * i + 2), vr(E + 12 * i + 8)))
        a("v_lshrrev_b32 v%d, 1, v%d\nv_mul_u32_u24 v%d, %d, v%d" % (t2, v_q, t2, TSTR, t2))
        a("v_and_b32 v%d, 1, v%d\nv_lshl_add_u32 v%d, v%d, 3, v%d\nv_lshl_add_u32 v%d, v%d, 4, v%d" % (t3, v_q, t2, t3, t2, t2, v_n, t2))
        a("s_add_u32 s%d, s%d, %d\ns_add_u32 s%d, s%d, %d" % (s_t1, s_a2p, 160 * 256, s_t2, s_a2p, 160 * 256 + TSTR))
        for i in range(2):
            a("%s %s, %s, %s, 0" % (M, vr(E + 12 * i), vr(FA), vr(PQ + 6 * i)))
            a("%s %s, %s, %s, 0" % (M, vr(E + 12 * i + 4), vr(FB_), vr(PQ + 6 * i + 2)))
        a("s_mov_b32 s%d, 0\ns_mov_b32 s%d, 0x0000ffff" % (s_mask, s_mask + 1))
        ih = [(i, h) for i in range(2) for h in range(2)]
        for i, h in ih: a("v_add_f32 v%d, s%d, v%d" % (SC + 6 * i + 2 * h, s_eps, E + 12 * i + 8 + h))
        for i, h in ih: a("v_rcp_f32 v%d, v%d" % (SC + 6 * i + 2 * h, SC + 6 * i + 2 * h))
        for i, h in ih: a("v_mul_f32 v%d, v%d, v%d" % (SC + 6 * i + 2 * h, SC + 6 * i + 2 * h, OMG + i))
        for i, h in ih: a("v_mov_b32 v%d, v%d" % (SC + 6 * i + 2 * h + 1, SC + 6 * i + 2 * h))
        for i, h in ih: a("v_permlane32_swap_b32 v%d, v%d" % (SC + 6 * i + 2 * h, SC + 6 * i + 2 * h + 1))
        for i in range(2):
            sc = SC + 6 * i
            a("v_cndmask_b32 v%d, v%d, v%d, s[%d:%d]" % (sc + 4, sc + 2, sc, s_mask, s_mask + 1))
            for k in range(4):
                a("v_mul_f32 v%d, v%d, v%d" % (E + 12 * i + k, E + 12 * i + k, sc))
                a("v_mul_f32 v%d, v%d, v%d" % (E + 12 * i + 4 + k, E + 12 * i + 4 + k, sc + 2))
            for k in range(4): a("v_cvt_pk_bf16_f32 v%d, v%d, v%d" % (O + 4 * i + k, E + 12 * i + 2 * k, E + 12 * i + 2 * k + 1))
            a("buffer_store_dwordx4 %s, v%d, %s, s%d offen sc1" % (vr(O + 4 * i), v_l16, srd(sWS), (s_t1, s_t2)[i]), tag="ost")
        for i in range(2):
            ez = E + 12 * i + 8; sc = SC + 6 * i
            for k in range(4): a("v_mul_f32 v%d, v%d, v%d" % (ez + k, ez + k, sc + 4))
            for k in range(2): a("v_cvt_pk_bf16_f32 v%d, v%d, v%d" % (O + 8 + 2 * i + k, ez + 2 * k, ez + 2 * k + 1))
        for k in range(2): a("v_permlane32_swap_b32 v%d, v%d" % (O + 8 + k, O + 10 + k))
        a("buffer_store_dwordx2 %s, v%d, %s, s%d offen offset:1024 sc1" % (vr(O + 10, 2), t2, srd(sWS), s_t1), tag="ost")
        return a

    def dma_wo(self, blk):
        a = L(); tag = "wo%d" % blk if blk < 4 else "woE"
        base, off = (s_wm0, WSLOT[blk] * SLOT) if blk < 4 else (s_priv, P_HT)
        if blk == 4: a.wl("sx")
        a("s_add_u32 s%d, s%d, %d\ns_add_u32 m0, s%d, %d" % (s_so, s_woi, blk * SLOT, base, off), tag=tag)
        for ph in range(4):
            a("buffer_load_dwordx4 v%d, %s, s%d offen offset:%d sc1 lds" % (v_l16, srd(sWS), s_so, 1024 * ph), tag=tag)
        a("s_add_u32 m0, s%d, %d" % (base, off + 4096), tag=tag)
        a("buffer_load_dwordx4 v%d, %s, s%d offen sc1 lds" % (vL4[1], srd(sWS), s_so), tag=tag)
        return a
    def rd_we(self):
        a = L()
        a("v_add_u32 v%d, %d, v%d" % (vWE, PRIV + P_HT, vBA[0]))
        for f in range(20):
            kk, nt = divmod(f, 5)
            a("ds_read_b128 %s, v%d offset:%d" % (ar(WE[f]), vWE, kk * PRIV_SZ + 256 * nt), tag="we")
        return a
    KORD = [16, 17, 18, 19] + list(range(16))
    def ao_loads(self):
        a = L()
        for kk in self.KORD:
            a("buffer_load_dwordx4 %s, v%d, %s, s%d offen offset:%d sc1" % (ar(AO + 4 * kk), vL4[(kk // 4) % 4], srd(sWS), s_ao if kk < 16 else s_ao2, 1024 * (kk % 4)), tag="ao%d" % kk)
        return a
    GG = GB; DS = ACC + 20; SKV = [vDX[2], vDX[3], vDW[4]]; v_ga = v_col4
    def skip_addr(self):
        a = L()
        t0, t1, t2 = vt[1], vt[2], vt[3]
        a("s_lshr_b32 s%d, s%d, 1\ns_lshl_b32 s%d, s%d, 5\ns_lshl_b32 s%d, s%d, 2\ns_add_u32 s%d, s%d, s%d" % (s_t1, s_w, s_t1, s_t1, s_t2, s_w1, s_t1, s_t1, s_t2))
        a("v_lshl_add_u32 v%d, v%d, 3, s%d" % (t0, v_q, s_t1))
        a("v_mul_u32_u24 v%d, 2560, v%d\nv_lshl_add_u32 v%d, v%d, 2, v%d\nv_add_u32 v%d, 5120, v%d" % (v_o0, t0, v_o0, v_n, v_o0, v_o1, v_o0))
        a("s_lshl_b32 s%d, s%d, 6\ns_add_u32 s%d, s%d, s%d\ns_lshl_b32 s%d, s%d, 2\ns_add_u32 s%d, s%d, %d" % (s_t2, s_rb, s_t1, s_t1, s_t2, s_rstep, s_t1, s_rstep, s_rstep, M_G))
        a("s_mul_i32 s%d, s%d, 1280\ns_mul_i32 s%d, s%d, 160\ns_add_u32 s%d, s%d, s%d" % (s_t1, s_t1, s_t2, s_ct, s_t1, s_t1, s_t2))
        for ph in range(3):
            a("v_add_u32 v%d, %d, v%d\nv_mul_u32_u24 v%d, 6554, v%d\nv_lshrrev_b32 v%d, 16, v%d" % (t0, 64 * ph, v_lane, t1, t0, t1, t1))
            a("v_mul_u32_u24 v%d, 10, v%d\nv_sub_u32 v%d, v%d, v%d" % (t2, t1, t0, t0, t2))
            a("v_and_b32 v%d, 28, v%d\nv_add_u32 v%d, v%d, v%d\nv_mul_u32_u24 v%d, 1280, v%d" % (t2, t1, t1, t1, t2, t1, t1))
            a("v_lshl_add_u32 v%d, v%d, 4, v%d\nv_add_u32 v%d, s%d, v%d" % (t1, t0, t1, self.SKV[ph], s_t1, t1))
            if ph < 2: a("s_sub_u32 s%d, s%d, 1024" % (s_t1, s_t1))
        a("v_add_u32 v%d, s%d, v%d" % (vRX[0], s_priv, v_l16))
        for ml in range(1, 4):
            a("s_sub_u32 s%d, s%d, %d\ns_and_b32 s%d, s%d, 3\ns_mul_i32 s%d, s%d, %d\ns_add_u32 s%d, s%d, %d\nv_add_u32 v%d, s%d, v%d"
              % (s_t1, s_w, ml, s_t1, s_t1, s_t1, s_t1, PRIV_SZ, s_t1, s_t1, PRIV, vRX[ml], s_t1, v_l16))
        a("v_lshrrev_b32 v%d, 2, v%d\nv_mul_u32_u24 v%d, 160, v%d\nv_and_b32 v%d, 3, v%d\nv_lshl_add_u32 v%d, v%d, 3, v%d" % (t0, v_lane, t0, t0, t1, v_lane, t0, t1, t0))
        a("v_add_u32 v%d, s%d, v%d\nv_lshlrev_b32 v%d, 1, v%d\nv_add_u32 v%d, %d, v%d" % (230, s_priv, t0, 231, v_n, 231, M_DSK, 231))
        return a
    def skip_dma(self):
        a = L()
        a.wl("hr4")
        a("s_add_u32 m0, s%d, %d" % (s_priv, P_HT), tag="sk")
        for ph in range(3):
            a("buffer_load_dwordx4 v%d, %s, 0 offen offset:%d lds" % (self.SKV[ph], srd(sX), 1024 * ph), tag="sk")
        return a
    def skip_rd(self):
        a = L()
        a.wv("sk")
        for nt in range(5): a("ds_read_b64_tr_b16 %s, v%d offset:%d" % (vr(ACC + 4 * nt + 2, 2), 230, P_HT + 32 * nt), tag="sx")
        for nt in range(5): a("ds_read_u16 v%d, v%d offset:%d" % (self.DS + nt, 231, 32 * nt), tag="sd")
        return a
    def skip_calc(self):
        a = L()
        a.wl("sd")
        for nt in range(5): a("v_lshlrev_b32 v%d, 16, v%d" % (self.DS + nt, self.DS + nt))
        for nt in range(5):
            c = ACC + 4 * nt
            a("v_lshlrev_b32 v%d, 16, v%d\nv_and_b32 v%d, 0xffff0000, v%d\nv_lshlrev_b32 v%d, 16, v%d\nv_and_b32 v%d, 0xffff0000, v%d" % (c, c + 2, c + 1, c + 2, c + 2, c + 3, c + 3, c + 3))
            for r in range(4): a("v_mul_f32 v%d, v%d, v%d" % (c + r, c + r, self.DS + nt))
        return a
    def aload(self, k):
        b = L(); kk = k
        for ml in range(4):
            b("buffer_load_dwordx4 %s, v%d, %s, s%d offen offset:%d sc1" % (vr(AF + 16 * (k % NAF) + 4 * ml), vL4[kk // 4], srd(sWS), s_am + ml, 1024 * (kk % 4)), tag="a%d" % k)
        return b

    def build(self):
        o = self.opt
        a = L()
        t0, t1, t2, t3 = vt
        a.extend(self.prologue())
        NS = 71
        n60 = o.get("n60", 16)
        S = Sched([10] * 40 + [6] * 20 + [n60] + [20] * 10)
        pre = [L() for _ in range(NS)]; post = [L() for _ in range(NS)]
        cj, ci_, cct = "s%d" % s_cj, "s%d" % s_ci, "s%d" % s_cct
        n3 = [0, 8, 18, 99][o.get("n3", 2)]
        rsig = o.get("rsig", 2)
        stl = list(self.rp_store()) + self.clears() + self.pc
        d = list(self.first) + list(self.second[:n3]) + [G(self.rp_read())]
        if self.rsl == 1: d += stl; stl = []
        fill = list(self.partB) + list(self.partC)
        nf = len(fill) * o.get("pf", 70) // 100
        nv = sum(1 for x in d if not isinstance(x, G) and x.kind == "vmem")
        sh = split(fill[:nf], nv); k = 0
        for x in d:
            a.extend(flat([x]))
            if not isinstance(x, G) and x.kind == "vmem":
                a.extend(flat(sh[k])); k += 1
        self.fill = fill[nf:]
        self.stamp(a, "prol")
        a.wv("x1")
        self.stamp(a, "st0", level=2); a("s_barrier")
        a.extend(self.x_reads(0)); a.extend(self.frag_reads(0))
        S.at(self.rp_signal(), rsig)
        for g in range(59):
            st1, kk1 = self.stage_of(g + 1)
            rd = list(self.frag_reads(g + 1))
            if g + 1 < 20 and kk1 == 0: rd = list(self.x_reads(2 * st1)) + rd
            if g + 1 < 20 and kk1 == 1: rd = rd + list(self.x_reads(2 * st1 + 1))
            for k, x in enumerate(rd):
                S.gap[S.start[g] + k].append(x); S.load[S.start[g] + k] += wcost(x)
        for g in range(60):
            for t in ((1, 3) if g < 40 else (1,)) if o.get("w2", 1) else range(1, 5 if g < 40 else 3):
                S.gap[S.start[g] + 2 * t - 1].append(WL("f%d_%d" % (g, t + o.get("w2", 1))))
        X = self.dma_x; W = self.dma_w
        gate = list(L()("s_mov_b32 m0, s%d\nbuffer_load_dwordx4 v%d, %s, 0 offen lds" % (s_rlds, RB, srd(sRP)), tag="gate"))
        S.spread(stl + list(self.second[n3:]) + list(X(4)) + list(X(5)), 0, 2)
        S.spread(list(W(2)) + list(X(6)) + list(X(7)), 3, 6)
        pi_ = [self.only("w0", self.vpoll_issue("pI"))]
        gi = o.get("gi", 11)
        S.spread(list(W(3)) + (pi_ if gi == 11 else []) + list(X(8)) + list(X(9)), 7, 10)
        S.spread(list(W(4)) + (pi_ if gi == 15 else []) + gate, 11, 12)
        pre[gi].append(self.only("w0", self.vpoll_check("pI", 20)))
        if self.fill: S.place(self.fill, 0, 10)
        S.place(self.skip_addr(), 13, 18)
        hp, op_ = "s%d" % s_hp, "s%d" % s_op
        co = self.coef(); ga = o.get("ga", 29)
        if o.get("xb", 0):
            S.place(self.pass1(), 20, 21); post[21].wl("sw"); post[21]("s_barrier")
            S.place(self.sread(), 22, 22.4); pre[23].wl("sr")
            S.place(co[:20], 22, 22)
            S.place(self.horner1(), 23, 24.6)
            S.place(self.eback(), 24.6, 25); pre[27].wl("ew")
            S.place(co[20:], 24.6, 28)
            S.place(self.te_rd(), 28.5, 28); S.place(self.te(), 29.5, ga + 2)
        else:
            S.place(self.pass1(), 20, 22); pre[23].wl("sw")
            S.place(self.sread(), 23.5, 23); S.place(co[:20], 23, 23)
            S.place(self.horner1(), 24.3, 25); pre[27].wl("sr")
            S.place(self.eback(), 27.5, 27); pre[31].wl("ew")
            S.place(co[20:], 26, 29)
            S.place(self.te_rd(), 31.5, 31); S.place(self.te(), 32.3, 32)
            ga = o.get("ga", 29)
        S.spread(self.agg_loads(), ga, ga)
        S.place(self.horner2(), ga + 3, 34); pre[35].wl("cw")
        S.place(self.pass2(), 35, 39)
        ke = o.get("ke", 40)
        S.at(self.wsignal("hst", s_hs), o.get("hs", ke + 1))
        S.place(self.kv1a(), 40, ke)
        post[ke].wl("kw"); post[ke]("s_barrier")
        S.place(self.kv1b(), ke + 1, ke + 2)
        pre[47].wl("kr")
        S.place(self.gsel(), 45, 48); S.place(self.skip_calc(), 49, 55)
        B = 61
        gsw = o.get("gsw", 57)
        S.place(self.gather_sum(), gsw, 59)
        post[59].wl("xw"); post[59].wv("woE"); post[59]("s_barrier")
        at2 = list(self.attn2())
        pw = o.get("pw", 0) / 10.0
        pe = B + pw if pw else 60
        S.place(at2[:self.nf], 60, pe); S.place(self.phiq(), 60, pe)
        ge = o.get("ge", 9) / 10.0
        S.place(at2[self.nf:], B + pw, B + ge)
        S.at(self.wsignal("ost", s_os), B + o.get("os", 30) / 10.0)
        S.spread(list(self.rd_we()), B + 6, B + 7)
        post[B + 7].wl("we"); post[B + 7]("s_barrier")
        S.gap[S.start[B + 9] + 2].extend(L()("v_lshl_add_u32 v%d, v%d, 5, s%d\nds_read_b128 %s, v%d" % (self.v_ga, v_q, s_rstep, vr(self.GG), self.v_ga), tag="g2"))
        for z in range(15):
            k = S.start[B + 8] + 10 + 10 * (z // 5) + 2 * (z % 5)
            S.gap[k].append(I("ds_write_b128 v%d, %s offset:%d" % (vRX[0], vr(ACC + 20 * (1 + z // 5) + 4 * (z % 5)), z * 1024), tag="rw"))
        S.gap[S.start[B + 8] + 4].append(WV("a9"))
        st_ = lambda g: S.rng(g, int(g))[0]
        T = o.get("T", 72); LAT = o.get("lat", 800); PL = o.get("pl", 1000)
        P = []
        gl = self.gather_loads(); aol = self.ao_loads()
        P.append(Pkt("pH", self.poll_issue(sWS, hp, 0, "pH"), st_(o.get("ph", 47))))
        P.append(Pkt("cH", self.poll_check(sWS, hp, 0, "pH", 32), after=["pH"], lag=PL))
        P.append(Pkt("pO", self.poll_issue(sWS, op_, 0, "pO"), st_(B + o.get("po", 50) / 10.0), after=["cH"]))
        P.append(Pkt("cO", self.poll_check(sWS, op_, 0, "pO", 16), after=["pO"], lag=o.get("plo", PL)))
        for c in range(8): P.append(Pkt("g%d" % c, [gl[c]], st_(o.get("gg", 51))))
        for st in range(5, 13):
            fr = max(gi, 4 * st - 13) if st > 5 else gi
            P.append(Pkt("w%d" % st, W(st), st_(fr)))
        P.append(Pkt("sk", self.skip_dma(), st_(40)))
        P.append(Pkt("skr", self.skip_rd(), after=["sk"], lag=LAT))
        for k in range(10):
            P.append(Pkt("a%d" % k, self.aload(k), st_(ke + 3) if k < 2 else st_(60) if k < 4 else st_(B + k - 3), after=["cH"]))
        for u in range(25):
            P.append(Pkt("c%d" % u, self.dma_c(u), st_(17), after=["cr%d" % (u - self.NCU)] if u >= self.NCU else [], lag=60))
            P.append(Pkt("cr%d" % u, self.rd_c(u), 0 if u < 12 else st_(41 + u - 12), after=["c%d" % u], lag=LAT))
        P.append(Pkt("woE", self.dma_wo(4), after=["skr"], lag=60))
        P.append(Pkt("wo0", self.dma_wo(0), st_(o.get("w0", 47))))
        P.append(Pkt("wo1", self.dma_wo(1), st_(o.get("w1", 58))))
        if o.get("w2e", 1): P.append(Pkt("wo2", self.dma_wo(2), st_(o.get("w1", 58))))
        for z in range(8): P.append(Pkt("ao%d" % z, [aol[z]], after=["cO"]))
        if not o.get("w2e", 1): P.append(Pkt("wo2", self.dma_wo(2), st_(55), after=["cO"]))
        for z in range(8, 12): P.append(Pkt("ao%d" % z, [aol[z]], after=["cO"]))
        P.append(Pkt("wo3", self.dma_wo(3), st_(60)))
        for z in range(12, 20): P.append(Pkt("ao%d" % z, [aol[z]], after=["cO"]))
        extra = {g: 110 for g in range(60) if g + 1 < 60 and self.stage_of(g + 1)[1] == 0}
        extra[ke + 1] = 110; extra[B + 8] = 110; extra[60] = 110
        left, tend = pace(S, st_(13), S.start[B + 10], P, T, nomf=(60,), step_extra=extra)
        if o.get("v", 0):
            stepof = lambda k: max(g for g in range(len(S.counts)) if S.start[g] <= k)
            print("model end", int(tend), " ".join("%s@%d" % (p.name, stepof(p.done_gap)) for p in P if p.done_gap is not None), "| left:", [p.name for p in left])
        tailq = [x for p in left for x in p.ins]
        def take(n):
            out = []
            while tailq and n > 0:
                x = tailq.pop(0); out.append(x)
                if not isinstance(x, G) and x.kind == "vmem": n -= 1
            return out
        for g in range(60):
            p = L()
            nt_ = 5 if g < 40 else 3
            p.wl("f%d_0" % g)
            if g + 1 < 60:
                st1, kk1 = self.stage_of(g + 1)
                if kk1 == 0:
                    p.wl("f%d_%d" % (g, nt_ - 1))
                    fine = o.get("f0", 99) <= g <= o.get("f1", -1)
                    p.extend(pre[g]); p.wv("w%d" % st1)
                    if st1 < 5: p.wv("x%d" % (2 * st1 + 1))
                    if fine: self.stamp(p, "wv%d" % g)
                    p("s_barrier")
                    if fine: self.stamp(p, "bar%d" % g)
                    if st1 == 5: p.extend(self.calc_kvaddr())
                else:
                    assert not pre[g], g
            a.extend(flat(p))
            a.extend(S.emit(g, self.mfmas(g)))
            a.extend(post[g])
            if g in (19, 39, 59) or o.get("f0", 99) <= g <= o.get("f1", -1): self.stamp(a, "g%d" % g)
            elif g % 4 == 3: self.stamp(a, "g%d" % g, level=2)
        a.extend(S.emit(60, [None] * n60))
        self.stamp(a, "phiq")
        for k in range(10):
            a.wv("a%d" % k)
            a.wl("cr%d" % ((k >> 1) * 5 + 4))
            a.extend(S.emit(B + k, self.mfmas(60 + k)))
            a.extend(post[B + k])
            self.stamp(a, "k%d" % k, level=2 if k != 9 else 1)
        late_wo = any((not isinstance(y, G)) and y.tag in ("wo2", "wo3") for y in tailq) or o.get("midbar", 0)
        a.wl("rw"); a.wv("wo1" if late_wo else "wo3"); a("s_barrier")
        x = L()
        P = ACC + 20
        for nt in range(5):
            for ml in range(1, 4):
                x("ds_read_b128 %s, v%d offset:%d" % (vr(P + 12 * nt + 4 * (ml - 1)), vRX[ml], ((ml - 1) * 5 + nt) * 1024), tag="rr%d" % nt)
        for nt in range(5):
            x.wl("rr%d" % nt)
            b = P + 12 * nt; c = ACC + 4 * nt
            for h in (0, 2):
                x("v_pk_add_f32 %s, %s, %s" % (vr(b + h, 2), vr(b + h, 2), vr(b + 4 + h, 2)))
                x("v_pk_add_f32 %s, %s, %s" % (vr(c + h, 2), vr(c + h, 2), vr(b + 8 + h, 2)))
            for h in (0, 2): x("v_pk_add_f32 %s, %s, %s" % (vr(c + h, 2), vr(c + h, 2), vr(b + h, 2)))
            for h in (0, 2): x("v_pk_mul_f32 %s, %s, %s" % (vr(c + h, 2), vr(c + h, 2), vr(self.GG + h, 2)))
        KO = self.KORD
        ksw = o.get("ksw", 4)
        if late_wo: ksw = 12
        order = [(kk, nt) for kk in KO[:ksw] for nt in range(5)] + [(kk, nt) for nt in range(5) for kk in KO[ksw:]]
        NB = 16; LA = o.get("la", 12)
        stream = [f for f in order if f[0] < 16]
        def rd(z):
            kk, nt = stream[z]
            slot = WSLOT[kk // 4]; hi = slot >= 2
            return I("ds_read_b128 %s, v%d offset:%d" % (vr(AF + 4 * (z % NB)), vBA[2 * hi], (slot - 2 * hi) * SLOT + 5120 * (kk % 4) + 256 * nt), tag="wf%d" % z)
        a.extend(flat(merge([x, take(o.get("nx", 8))])))
        self.stamp(a, "xchg")
        nr = 0; pend = []; vsp = o.get("vsp", 3)
        for idx, (kk, nt) in enumerate(order):
            a.wv("ao%d" % kk)
            if kk < 16:
                z = stream.index((kk, nt)); a.wl("wf%d" % z); w = vr(AF + 4 * (z % NB))
            else:
                w = ar(WE[(kk - 16) * 5 + nt])
            c = ACC + 4 * nt
            a("%s %s, %s, %s, %s" % (M, vr(c), ar(AO + 4 * kk), w, vr(c)))
            used = sum(1 for f in order[:idx + 1] if f[0] < 16)
            if nr < len(stream) and nr - used < LA and nr - NB < used - 1:
                if nr == 40 and late_wo:
                    a.extend(flat(take(99))) if any((not isinstance(y, G)) and y.tag == "wo3" for y in tailq) else None
                    a.wv("wo3"); a("s_barrier")
                a.append(rd(nr)); nr += 1
            if idx % vsp == 0: a.extend(flat(take(1)))
            if pend and idx >= pend[0][0]:
                a.append(pend.pop(0)[1])
            if kk == KO[-1]:
                for r in range(4):
                    pend.append((idx + 3 + 2 * r, I("buffer_store_dword v%d, v%d, %s, 0 offen offset:%d %s" % (c + r, (v_o0, v_o1)[r >> 1], srd(sOUT), 2560 * (r & 1) + 64 * nt, self.outflag), tag="out")))
        for _, s_ in pend: a.append(s_)
        self.stamp(a, "end")
        if self.stamps:
            a("s_waitcnt vmcnt(0)")
            self.stamp(a, "drain")
            a("s_sub_u32 s%d, 0x40000, s%d\nv_writelane_b32 v0, s%d, 62" % (s_t0, s_spin, s_t0))
            self.stamp(a, "rt1", real=True)
            a("v_readlane_b32 s%d, v0, 63\ns_nop 3\ns_lshl_b32 s%d, s%d, 2\ns_add_u32 s%d, s%d, s%d\ns_lshl_b32 s%d, s%d, 8\ns_add_u32 s%d, s%d, %d"
              % (s_t0, s_t0, s_t0, s_t0, s_t0, s_w, s_t0, s_t0, s_t0, s_t0, STAMP_OFF))
            a("v_lshlrev_b32 v2, 2, v%d\nbuffer_store_dword v0, v2, %s, s%d offen" % (v_lane, srd(sWS), s_t0))
        if self.padat != "-":
            a("s_waitcnt vmcnt(0)\nL_pad:\ns_memrealtime s[16:17]\ns_waitcnt lgkmcnt(0)\ns_sub_u32 s16, s16, s100\ns_cmp_lt_u32 s16, 4000\ns_cbranch_scc1 L_pad")
        a("L_end:\ns_endpgm")
        a.extend(self.slow)
        self.S = S
        return flat(a)

def make(verbose=False, **kw):
    g = Gen(**kw)
    ins = g.build()
    check_m0(ins, {"s%d" % s_so})
    o = g.opt
    if o.get("noc"):
        import re
        ins = [i for i in ins if not (i.tag and re.fullmatch(r"cr?\d+", str(i.tag)))]
    if o.get("now"):
        import re
        ins = [i for i in ins if not (i.tag in ("w8", "w9", "w10", "w11", "w12"))]
    if o.get("noval"):
        nm = 0; out = []
        for i in ins:
            if i.kind == "mfma": nm += 1
            if 240 < nm < 440 and i.kind == "valu" and i.text.startswith(("v_fma", "v_mul_f32", "v_exp", "v_rcp", "v_add_f32", "v_cvt_pk")): continue
            out.append(i)
        ins = out
    if o.get("nocomp"):
        ins = [i for i in ins if i.raw or not (i.kind == "mfma" or (i.kind == "valu" and i.text.startswith(("v_fma", "v_mul_f32", "v_exp", "v_rcp", "v_add_f32", "v_cvt_pk", "v_max_f32", "v_pk_", "v_sin", "v_cos", "v_fract", "v_permlane"))))]
        ins = [i for i in ins if not (i.kind == "branch" and ("scc1 L_slow" in i.text or ("vccnz L_slow" in i.text and not i.opt and not i.raw)))]
    if o.get("nomem"):
        import re
        ins = [i for i in ins if not (i.kind in ("vmem", "waitvm") and i.tag and re.fullmatch(r"(x|w|c|a|g|ao|wo)\d+|woE|sk|tx|tb|ct", str(i.tag)))]
        ins = [i for i in ins if not (i.kind == "branch" and ("scc1 L_slow" in i.text or ("vccnz L_slow" in i.text and not i.opt and not i.raw)))]
    if o.get("norp"):
        drop = {1: ("rp", "rs"), 2: ("rs",), 3: ("rp",), 4: ("rp", "rs", "ct")}[o["norp"]]
        ins = [i for i in ins if not (i.kind in ("vmem", "waitvm") and i.tag in drop)]
        ins = [i for i in ins if not (i.kind == "branch" and ("scc1 L_slow" in i.text or ("vccnz L_slow" in i.text and not i.opt and not i.raw)))]
    if o.get("drop"):
        import re
        pat = {1: r"c\d+", 2: r"wo\d|woE", 3: r"a\d", 4: r"ao\d+", 5: r"hst", 6: r"w([5-9]|1\d)", 7: r"x\d|w[0-4]", 8: r"out", 9: r"cr?\d+", 10: r"ag", 11: r"ost", 12: r"rp|rs", 13: r"g\d|kvst", 14: r"sk|ct|par|gate"}[o["drop"]]
        ins = [i for i in ins if not ((i.kind in ("vmem", "waitvm") or o["drop"] == 9) and i.tag and re.fullmatch(pat, str(i.tag)))]
        ins = [i for i in ins if not (i.kind == "branch" and ("scc1 L_slow" in i.text or ("vccnz L_slow" in i.text and not i.opt and not i.raw)))]
    if o.get("nomf"):
        ins = [i for i in ins if i.raw or i.kind != "mfma"]
        ins = [i for i in ins if not (i.kind == "branch" and ("scc1 L_slow" in i.text or ("vccnz L_slow" in i.text and not i.opt and not i.raw)))]
    if o.get("nofr"):
        import re
        ins = [i for i in ins if not (i.tag and re.fullmatch(r"f(2[1-9]|3\d)_\d", str(i.tag)))]
    ins = resolve_waits(ins)
    ins = hazards(ins, verbose=True)
    if verbose:
        S = g.S
        print("load per gap by step:", " ".join("%d:%.1f" % (k, sum(S.load[S.start[k]:S.start[k + 1]]) / S.counts[k]) for k in range(71)))
    K = NAME + "_kernel"
    txt = header([(K, 256, 256, 163840)]) + kernel_begin(K) + render(ins) + "L_codeend:\n" + rodata() + descriptor(K, 512, 102, 256)
    if o.get("al", 0):
        txt, n, left = align_pass(txt, o.get("nc", 0))
        if verbose: print("re-encoded", n, "misaligned left about", left)
    if g.stamps: txt += "; STAMPS " + " ".join(g.names) + "\n"
    return txt, g.nst

if __name__ == "__main__":
    out = sys.argv[1]
    kw = {}; opt = {}
    for x in sys.argv[2:]:
        k, v = x.split("=")
        if k == "stamps": kw[k] = int(v)
        elif k in ("mapping", "rot", "outflag"): kw[k] = v
        else: opt[k] = int(v)
    txt, nst = make(verbose=True, opt=opt, **kw)
    open(out, "w").write(txt)
```
